```python
import torch

def _softmax(x, axis=-1):
    return torch.softmax(x, dim=axis)
def _gelu(x):
    return torch.nn.functional.gelu(x, approximate="tanh")
def _silu(x):
    return torch.nn.functional.silu(x)
def _sigmoid(x):
    return torch.sigmoid(x)
def _layernorm(x, axis=-1, eps=1e-5):
    m = x.mean(dim=axis, keepdim=True)
    v = x.var(dim=axis, keepdim=True, unbiased=False)
    return (x - m) / torch.sqrt(v + eps)
def _scatter_add(tgt, idx, src, axis=0):
    return tgt.clone().index_add_(axis, idx, src)
def _segment_sum(src, seg, n):
    out = torch.zeros((n,) + src.shape[1:], dtype=src.dtype)
    return out.index_add_(0, seg, src)
def _pad(x, pw):
    flat = tuple(v for pair in reversed(pw) for v in pair)
    return torch.nn.functional.pad(x, flat)

kernel_name = 'gated_mix__linear_attn_block__dense_activation_relu__prompt'

def setup_inputs():

    _w = (lambda a: (lambda t: t.to(torch.bfloat16) if t.is_floating_point() else t)(torch.as_tensor(a)))
    def _A_setup():
        B, S, D = 1, 2048, 640
        return {
            "x": _w((lambda *s: torch.randn(*s, dtype=torch.bfloat16) * 0.05)(B, S, D)),
            "wqkv": _w((lambda *s: torch.randn(*s, dtype=torch.bfloat16) * 0.8)(D, 3 * D)),
            "wo": _w((lambda *s: torch.randn(*s, dtype=torch.bfloat16) * 0.2)(D, D)),
        }
    _A_in = _A_setup()

    def _B_setup():
        B, S, D, Dff = 1, 2048, 640, 1536
        return {
            "x": _w((lambda *s: torch.randn(*s, dtype=torch.bfloat16) * 0.05)(B, S, D)),
            "w1": _w((lambda *s: torch.randn(*s, dtype=torch.bfloat16) * 0.05)(D, Dff)),
            "w2": _w((lambda *s: torch.randn(*s, dtype=torch.bfloat16) * 0.05)(Dff, D)),
        }
    _B_in = _B_setup()

    return {
        "A_x": _A_in["x"],
        "A_wqkv": _A_in["wqkv"],
        "A_wo": _A_in["wo"],
        "B_x": _B_in["x"],
        "B_w1": _B_in["w1"],
        "B_w2": _B_in["w2"],
        "gate_w": _w((lambda *s: torch.randn(*s, dtype=torch.bfloat16) * 0.05)(640) * 16.0),
    }

def reference(A_x, A_wqkv, A_wo, B_x, B_w1, B_w2, gate_w):
    def _A_ref(x, wqkv, wo):
        B, S, D = x.shape
        H = 32; Dh = D // H
        qkv = (lambda x, *d: x.permute(*d))((x @ wqkv).reshape(B, S, 3, H, Dh), 2, 0, 3, 1, 4)
        q, k, v = qkv[0], qkv[1], qkv[2]
        phi = lambda t: torch.where(t > 0, t + 1, torch.exp(t)) + 1e-6
        pq, pk = phi(q), phi(k)
        kv = torch.einsum("bhsd,bhse->bhde", pk, v)
        z = torch.einsum("bhsd->bhd", pk)
        num = torch.einsum("bhqd,bhde->bhqe", pq, kv)
        den = torch.einsum("bhqd,bhd->bhq", pq, z)[..., None] + 1e-6
        o = num / den
        return (lambda x, *d: x.permute(*d))(o, 0, 2, 1, 3).reshape(B, S, D) @ wo

    def _B_ref(x, w1, w2):
        h = torch.einsum("bsd,df->bsf", x, w1)
        zero = torch.zeros_like(h)
        h = torch.maximum(h, zero)
        return torch.einsum("bsf,fd->bsd", h, w2)

    x = A_x
    g = _sigmoid((x * gate_w).sum(-1, keepdims=True))
    a = _A_ref(x, A_wqkv, A_wo)
    b = _B_ref(x, B_w1, B_w2)
    return g * a + (1 - g) * b
```

```python
import re

REG_RE = re.compile(r'^(-|\|)?([vas])(\d+)\|?$')
RNG_RE = re.compile(r'^(-)?([vas])\[(\d+):(\d+)\]$')

def parse_reg(tok):
    tok = tok.strip()
    if tok.startswith('abs(') and tok.endswith(')'):
        tok = tok[4:-1]
    if tok.startswith('-abs(') and tok.endswith(')'):
        tok = tok[5:-1]
    m = REG_RE.match(tok)
    if m:
        return [(m.group(2), int(m.group(3)))]
    m = RNG_RE.match(tok)
    if m:
        return [(m.group(2), i) for i in range(int(m.group(3)), int(m.group(4)) + 1)]
    if tok in ('vcc',):
        return [('s', 106), ('s', 107)]
    if tok == 'vcc_lo': return [('s', 106)]
    if tok == 'vcc_hi': return [('s', 107)]
    if tok == 'm0': return [('m', 0)]
    if tok in ('exec','exec_lo','exec_hi'): return [('x', 0)]
    return []

TRANS = ('v_exp_f32', 'v_log_f32', 'v_rcp_f32', 'v_rsq_f32', 'v_sqrt_f32', 'v_sin_f32', 'v_cos_f32')

class Ins:
    __slots__ = ('text', 'op', 'kind', 'dst', 'src', 'srcA', 'srcB', 'srcC', 'passes', 'nop', 'flags')
    def __init__(self, text):
        self.text = text
        t = text.split(';')[0].strip()
        self.nop = 1
        self.flags = set()
        self.srcA = self.srcB = self.srcC = []
        self.passes = 0
        if not t or t.endswith(':') or t.startswith('.'):
            self.op = None; self.kind = 'label' if t.endswith(':') else 'dir'; self.dst = []; self.src = []
            return
        parts = t.split(None, 1)
        self.op = op = parts[0]
        rest = parts[1] if len(parts) > 1 else ''
        ops = [o.strip() for o in rest.split(',')] if rest else []
        mods = []
        clean = []
        for o in ops:
            sp = o.split()
            if not sp: continue
            clean.append(sp[0]); mods += sp[1:]
        ops = clean
        self.flags = set(m.split(':')[0] for m in mods)
        R = [parse_reg(o) for o in ops]
        flat = lambda l: [r for x in l for r in x]
        if op == 's_nop':
            self.kind = 'nop'; self.nop = int(ops[0], 0) + 1; self.dst = []; self.src = []
        elif op.startswith('v_mfma'):
            self.kind = 'mfma'
            self.dst = R[0]; self.srcA = R[1]; self.srcB = R[2]; self.srcC = R[3]
            self.src = R[1] + R[2] + R[3]
            self.passes = 4 if '16x16x32' in op or '16x16x16' in op else 8
        elif op.startswith('v_cmp'):
            self.kind = 'valu'; self.dst = R[0]; self.src = flat(R[1:])
        elif op.startswith('v_readfirstlane') or op.startswith('v_readlane'):
            self.kind = 'valu'; self.dst = R[0]; self.src = flat(R[1:]); self.flags.add('readlane')
        elif op.startswith('v_'):
            self.kind = 'valu'
            if op.startswith(('v_add_co', 'v_sub_co', 'v_addc_co', 'v_subb_co', 'v_subrev_co')):
                self.dst = R[0] + R[1]; self.src = flat(R[2:])
            elif op.startswith('v_permlane') and 'swap' in op:
                self.dst = R[0] + R[1]; self.src = R[0] + R[1]; self.flags.add('permlane')
            else:
                self.dst = R[0]; self.src = flat(R[1:])
                if op.startswith(('v_fmac', 'v_dot2c', 'v_mac')):
                    self.src = self.src + R[0]
                if op.startswith('v_cndmask') and len(ops) == 3:
                    self.src = self.src + [('s', 106), ('s', 107)]
            if op.split('_e')[0] in TRANS or op in TRANS: self.flags.add('trans')
            if any(m.startswith(('row_', 'quad_perm', 'wave_', 'row_bcast')) for m in mods): self.flags.add('dpp')
        elif op.startswith('ds_'):
            self.kind = 'ds'
            if op.startswith(('ds_read', 'ds_bpermute', 'ds_permute', 'ds_swizzle')):
                self.dst = R[0]; self.src = flat(R[1:])
            else:
                self.dst = []; self.src = flat(R)
        elif op.startswith(('buffer_', 'global_')):
            self.kind = 'vmem'
            if 'lds' in self.flags:
                self.dst = []; self.src = flat(R) + [('m', 0)]; self.flags.add('ldsdma')
            elif '_load' in op:
                self.dst = R[0]; self.src = flat(R[1:])
            elif 'atomic' in op:
                self.dst = R[0] if 'sc0' in self.flags else []; self.src = flat(R)
            elif op.startswith('global_store'):
                self.dst = []; self.src = flat(R); self.storedata = R[1]
            else:
                self.dst = []; self.src = flat(R)
            if '_store' in op:
                self.flags.add('store')
                data = R[1] if op.startswith('global_') else R[0]
                self.srcC = data
                if 'x4' in op or 'x3' in op: self.flags.add('widestore')
        elif op.startswith('s_'):
            self.kind = 'salu'
            if op.startswith(('s_cmp', 's_bitcmp', 's_cbranch', 's_branch', 's_waitcnt', 's_barrier', 's_endpgm', 's_sleep', 's_setprio', 's_sendmsg')):
                self.dst = []; self.src = flat(R)
                if op.startswith(('s_cbranch', 's_branch')): self.kind = 'branch'
            elif op.startswith(('s_load', 's_buffer_load', 's_memtime', 's_memrealtime')):
                self.kind = 'smem'; self.dst = R[0]; self.src = flat(R[1:])
            elif 'saveexec' in op:
                self.dst = R[0] + [('x', 0)]; self.src = flat(R[1:]) + [('x', 0)]
            else:
                self.dst = R[0]; self.src = flat(R[1:])
                if op.startswith(('s_addk', 's_mulk')): self.src = self.src + R[0]
        else:
            raise ValueError("unknown op " + text)

def isv(r): return r[0] in 'va'

def fix_hazards(lines, verbose=False):
    out = []
    hist = []
    pos = 0
    ninserted = 0
    for text in lines:
        ins = Ins(text)
        if ins.kind in ('label', 'dir') or ins.op is None:
            out.append(text); continue
        need = 0
        src = set(ins.src); dst = set(ins.dst)
        for (p, h) in reversed(hist):
            dist = pos - p - 1 + 0
            dist = pos - (p + h.nop)
            if dist >= 20: break
            req = 0
            hd = set(h.dst)
            if h.kind == 'valu':
                hv = set(r for r in hd if isv(r))
                hs = set(r for r in hd if r[0] == 's')
                if ins.kind == 'mfma' and hv & src: req = max(req, 2)
                if hv & src and 'readlane' in ins.flags: req = max(req, 1)
                if hv & src and 'permlane' in ins.flags: req = max(req, 2)
                if hv & src and 'dpp' in ins.flags: req = max(req, 2)
                if 'trans' in h.flags and ins.kind in ('valu', 'mfma') and 'trans' not in ins.flags and hv & src: req = max(req, 1)
                if 'trans' in h.flags and ins.kind in ('vmem', 'ds') and hv & src: req = max(req, 1)
                if h.op.startswith('v_dot') and ins.op != h.op and hv & (src | dst): req = max(req, 3)
                if h.op.startswith('v_dot') and ins.op == h.op and hv & set(ins.src[:-len(h.dst)]): req = max(req, 3)
                if hs & src:
                    if ins.kind == 'valu': req = max(req, 4 if 'readlane' in ins.flags and ins.op.startswith('v_readlane') else 2)
                    if ins.kind == 'vmem': req = max(req, 5)
                    if ins.kind in ('salu', 'branch', 'smem'): req = max(req, 2)
            if h.kind == 'mfma':
                n_other = 8 if h.passes == 4 else 12
                n_ovl = 6 if h.passes == 4 else 10
                if ins.kind == 'mfma':
                    if hd & (set(ins.srcA) | set(ins.srcB)): req = max(req, n_other)
                    if hd & set(ins.srcC):
                        if not (h.dst == ins.srcC and h.passes == ins.passes): req = max(req, n_ovl)
                    if hd & dst and not (h.dst == ins.dst): req = max(req, n_ovl)
                elif ins.kind in ('valu', 'vmem', 'ds'):
                    if hd & (src | dst): req = max(req, n_other)
                    if ins.kind == 'valu' and set(h.srcC) & dst: req = max(req, 3 if h.passes == 4 else 7)
            if h.kind == 'salu':
                if ('m', 0) in hd and 'ldsdma' in ins.flags: req = max(req, 1)
            if h.kind == 'vmem' and 'widestore' in h.flags:
                if set(h.srcC) & dst:
                    req = max(req, 2 if ins.kind == 'valu' else 1)
            if req > dist: need = max(need, req - dist)
        while need > 0:
            n = min(need, 16)
            nt = f"s_nop {n-1}"
            out.append(nt)
            hist.append((pos, Ins(nt))); pos += n
            need -= n; ninserted += 1
        out.append(text)
        hist.append((pos, ins)); pos += ins.nop
        if len(hist) > 64: hist = hist[-40:]
    if verbose: print(f"[fix_hazards] inserted {ninserted} s_nop")
    return out

class Prog:
    def __init__(self):
        self.lines = []
        self._lab = 0
    def e(self, text):
        self.lines.append(text)
    def __call__(self, text):
        for l in text.split('\n'):
            l = l.strip()
            if l: self.lines.append(l)
    def label(self, name):
        self.lines.append(name + ":")
    def newlabel(self, base):
        self._lab += 1
        return f"{base}_{self._lab}"
    def text(self, fix=True, verbose=False):
        L = fix_hazards(self.lines, verbose) if fix else self.lines
        return "\n".join(L) + "\n"

def vr(base, n=1):
    return f"v{base}" if n == 1 else f"v[{base}:{base+n-1}]"
def ar(base, n=1):
    return f"a{base}" if n == 1 else f"a[{base}:{base+n-1}]"
def sr(base, n=1):
    return f"s{base}" if n == 1 else f"s[{base}:{base+n-1}]"
```

```python
import sys
from asmlib import *

NAME = "gated_mix__linear_attn_block__dense_activation_relu__prompt"

AP_ST = 68 * 1024
WS_AP = 0
WS_WP = 9 << 20
WP_CG = 68 * 5 * 1024
WS_PQ = 12 << 20
PQ_ST = 8 * 2560
WS_KVP = 15 << 20
WS_G = 16 << 20
WS_TS = 17 << 20
WS_SIZE = 18 << 20
OOB = 0x80000000

SQ = 16384 + 30768 + 2048
SH = 40960
SEG = 10256
LOG2E = 0x3fb8aa3b
EPS6 = 0x358637bd

class Cfg:
    stamps = False

def stamp(p, idx, cfg, sreg=90):
    if not cfg.stamps: return
    p(f"s_memtime s[{sreg+2*idx}:{sreg+2*idx+1}]")

def stamp_flush(p, n, cfg, slot_sgpr, sreg=90):
    if not cfg.stamps: return
    p("s_waitcnt lgkmcnt(0)")
    p(f"s_lshl_b32 s88, {slot_sgpr}, 6")
    p(f"s_add_u32 s88, s88, {WS_TS}")
    p("v_mov_b32 v4, s88")
    p("s_mov_b64 s[86:87], exec")
    p("s_mov_b64 exec, 1")
    for i in range(n):
        p(f"v_mov_b32 v2, s{sreg+2*i}")
        p(f"v_mov_b32 v3, s{sreg+2*i+1}")
        p(f"buffer_store_dwordx2 v[2:3], v4, s[40:43], 0 offen offset:{8*i}")
        p("s_nop 1")
    p("s_mov_b64 exec, s[86:87]")

def prologue_common(p):
    p("""
    s_cmp_ge_u32 s2, 256
    s_cbranch_scc1 L_end
    s_load_dwordx16 s[4:19], s[0:1], 0
    s_load_dwordx4 s[20:23], s[0:1], 64
    v_and_b32 v1, 63, v0
    v_lshrrev_b32 v2, 6, v0
    v_readfirstlane_b32 s24, v2
    s_and_b32 s25, s24, 3
    s_and_b32 s44, s2, 7
    s_lshr_b32 s45, s2, 3
    s_lshr_b32 s46, s44, 1
    s_and_b32 s47, s44, 1
    """)

def emit_k1(p, cfg):
    prologue_common(p)
    p("""
    s_and_b32 s28, s45, 1
    s_lshr_b32 s45, s45, 1
    s_and_b32 s26, s45, 3
    s_lshl_b32 s46, s46, 2
    s_add_u32 s26, s26, s46
    s_lshr_b32 s27, s45, 2
    s_lshl_b32 s47, s47, 2
    s_add_u32 s27, s27, s47
    s_waitcnt lgkmcnt(0)
    """)
    stamp(p, 0, cfg)
    p(f"""
    s_mov_b32 s40, s22
    s_mov_b32 s41, s23
    s_mov_b32 s42, {WS_SIZE}
    s_mov_b32 s43, 0x20000
    s_mov_b32 s32, s4
    s_mov_b32 s33, s5
    s_mul_i32 s44, s26, 163840
    s_add_u32 s32, s32, s44
    s_addc_u32 s33, s33, 0
    s_sub_u32 s34, 2621440, s44
    s_mov_b32 s35, 0x20000
    s_cmp_eq_u32 s28, 0
    s_cselect_b32 s36, s6, s12
    s_cselect_b32 s37, s7, s13
    s_movk_i32 s45, 384
    s_cselect_b32 s44, 160, s45
    s_mov_b32 s45, 1966080
    s_cselect_b32 s38, 2457600, s45
    s_mul_i32 s44, s44, s27
    s_add_u32 s36, s36, s44
    s_addc_u32 s37, s37, 0
    s_sub_u32 s38, s38, s44
    s_mov_b32 s39, 0x20000
    s_cmp_ge_u32 s24, 4
    s_cbranch_scc1 L_k1_loader
    s_cmp_eq_u32 s28, 0
    s_cbranch_scc0 L_k1_hc
    """)
    emit_k1_compute(p, cfg, 'q')
    p.label("L_k1_hc")
    emit_k1_compute(p, cfg, 'h')
    p.label("L_k1_loader")
    emit_k1_loader(p, cfg)

def emit_x_dma_setup(p, v0r):
    p(f"""
    v_lshrrev_b32 v2, 3, v1
    v_and_b32 v3, 7, v1
    v_xor_b32 v4, v3, v2
    v_lshlrev_b32 v4, 4, v4
    s_lshl_b32 s44, s25, 5
    v_add_u32 v5, s44, v2
    v_mul_u32_u24 v5, 1280, v5
    v_add_u32 v{v0r}, v5, v4
    v_add_u32 v{v0r+1}, 10240, v{v0r}
    v_add_u32 v{v0r+2}, 20480, v{v0r}
    v_add_u32 v{v0r+3}, 30720, v{v0r}
    """)

def emit_k1_loader(p, cfg):
    VX = 8
    VW = 12
    SD = 48
    emit_x_dma_setup(p, VX)
    p("s_lshl_b32 s56, s25, 12")
    p("s_cmp_eq_u32 s28, 0")
    p("s_cbranch_scc0 L_k1_ld_h")
    for a in range(8):
        p(f"""
        s_add_u32 s44, s25, {4*a}
        s_mul_i32 s45, s44, 26
        s_lshr_b32 s45, s45, 8
        s_mul_i32 s46, s45, 10
        s_sub_u32 s46, s44, s46
        s_lshl_b32 s47, s46, 6
        v_add_u32 v2, s47, v1
        v_mul_u32_u24 v3, 6554, v2
        v_lshrrev_b32 v3, 16, v3
        v_mul_u32_u24 v4, 10, v3
        v_sub_u32 v4, v2, v4
        v_and_b32 v5, 0x33, v3
        v_and_b32 v6, 4, v3
        v_lshl_or_b32 v5, v6, 1, v5
        v_and_b32 v6, 8, v3
        v_lshrrev_b32 v6, 1, v6
        v_or_b32 v5, v5, v6
        v_mul_u32_u24 v5, 3840, v5
        v_lshl_add_u32 v5, v4, 4, v5
        s_mul_i32 s47, s45, 1280
        s_cmp_eq_u32 s45, 3
        s_cselect_b32 s47, {OOB}, s47
        v_add_u32 v{VW+a}, s47, v5
        s_mul_i32 s47, s45, {SEG}
        s_lshl_b32 s46, s46, 10
        s_add_u32 s47, s47, s46
        s_add_u32 s{SD+a}, s47, 16384
        """)
    def issue_q(sbuf, sx, sw):
        p(f"s_add_u32 s57, {sbuf}, s56")
        for b in range(4):
            p(f"s_add_u32 m0, s57, {b*1024}")
            p(f"buffer_load_dwordx4 v{VX+b}, s[32:35], {sx} offen lds")
        for a in range(8):
            p(f"s_add_u32 m0, {sbuf}, s{SD+a}")
            p(f"buffer_load_dwordx4 v{VW+a}, s[36:39], {sw} offen lds")
    loader_loop(p, cfg, issue_q, 12, SQ, 245760, "q")
    p("s_branch L_k1_jobs")
    p.label("L_k1_ld_h")
    for a in range(6):
        pat = a % 3
        p(f"""
        v_add_u32 v2, {64*pat}, v1
        v_mul_u32_u24 v3, 2731, v2
        v_lshrrev_b32 v3, 16, v3
        v_mul_u32_u24 v4, 24, v3
        v_sub_u32 v4, v2, v4
        v_and_b32 v5, 6, v3
        v_xor_b32 v4, v4, v5
        v_lshrrev_b32 v5, 2, v3
        v_lshlrev_b32 v5, 3, v5
        v_and_b32 v6, 3, v3
        v_add_u32 v5, v5, v6
        s_lshl_b32 s44, s25, 4
        s_add_u32 s44, s44, {4*(a//3)}
        v_add_u32 v5, s44, v5
        v_mul_u32_u24 v5, 3072, v5
        v_lshl_add_u32 v{VW+a}, v4, 4, v5
        """)
    p("s_mul_i32 s58, s25, 6144")
    p("s_add_u32 s58, s58, 16384")
    def issue_h(sbuf, sx, sw):
        p(f"s_add_u32 s57, {sbuf}, s56")
        for b in range(4):
            p(f"s_add_u32 m0, s57, {b*1024}")
            p(f"buffer_load_dwordx4 v{VX+b}, s[32:35], {sx} offen lds")
        p(f"s_add_u32 s57, {sbuf}, s58")
        for a in range(6):
            p(f"s_add_u32 m0, s57, {a*1024}")
            p(f"buffer_load_dwordx4 v{VW+a}, s[36:39], {sw} offen lds")
    loader_loop(p, cfg, issue_h, 10, SH, 196608, "h")
    p.label("L_k1_jobs")
    emit_k1_jobs(p, cfg)
    p("s_branch L_end")

def loader_loop(p, cfg, issue, nper, stage_bytes, wstep, tag):
    def lst(i):
        if cfg.stamps:
            p(f"s_memtime s[{64+2*i}:{65+2*i}]")
    p("s_mov_b32 s60, 0"); p("s_mov_b32 s61, 0"); p("s_mov_b32 s62, 0")
    lst(0)
    for st in range(3):
        issue("s60", "s61", "s62")
        p(f"s_add_u32 s60, s60, {stage_bytes}")
        p("s_add_u32 s61, s61, 128")
        p(f"s_add_u32 s62, s62, {wstep}")
    p("s_mov_b32 s60, 0")
    lst(1)
    p(f"s_waitcnt vmcnt({2*nper})")
    lst(2)
    p("s_barrier")
    def adv():
        p(f"s_add_u32 s60, s60, {stage_bytes}")
        p(f"s_cmp_eq_u32 s60, {3*stage_bytes}")
        p("s_cselect_b32 s60, 0, s60")
        p("s_add_u32 s61, s61, 128")
        p(f"s_add_u32 s62, s62, {wstep}")
    if cfg.stamps:
        for i in range(7):
            p(f"s_waitcnt vmcnt({nper})")
            p("s_barrier")
            lst(3+i)
            issue("s60", "s61", "s62")
            adv()
    else:
        p("s_mov_b32 s63, 7")
        L = f"L_ld_loop_{tag}"
        p.label(L)
        p(f"s_waitcnt vmcnt({nper})")
        p("s_barrier")
        issue("s60", "s61", "s62")
        adv()
        p("s_sub_u32 s63, s63, 1")
        p("s_cmp_lg_u32 s63, 0")
        p(f"s_cbranch_scc1 {L}")
    p(f"s_waitcnt vmcnt({nper})")
    p("s_barrier")
    lst(10)
    p("s_waitcnt vmcnt(0)")
    p("s_barrier")
    lst(11)
    p("s_barrier")
    lst(12)
    if cfg.stamps:
        p("s_waitcnt lgkmcnt(0)")
        p("s_lshl_b32 s92, s2, 2"); p("s_add_u32 s92, s92, s25")
        p("s_lshl_b32 s92, s92, 7")
        p(f"s_add_u32 s92, s92, {WS_TS + (1<<18)}")
        p("v_mov_b32 v4, s92")
        p("s_mov_b64 exec, 1")
        for i in range(13):
            p(f"v_mov_b32 v2, s{64+2*i}")
            p(f"v_mov_b32 v3, s{65+2*i}")
            p(f"buffer_store_dwordx2 v[2:3], v4, s[40:43], 0 offen offset:{8*i}")
            p("s_nop 1")
        p(f"v_mov_b32 v2, s90")
        p(f"v_mov_b32 v3, s91")
        p(f"buffer_store_dwordx2 v[2:3], v4, s[40:43], 0 offen offset:{8*13}")
        p("s_mov_b64 exec, -1")

def emit_k1_jobs(p, cfg):
    p("s_lshl_b32 s64, s2, 2")
    p("s_add_u32 s64, s64, s25")
    p("s_cmp_ge_u32 s64, 544")
    p("s_cbranch_scc1 L_job_gate")
    p("s_lshr_b32 s65, s64, 3")
    p("s_and_b32 s66, s64, 7")
    p("s_cmp_eq_u32 s28, 0")
    p(f"s_mov_b32 s67, {2*SH}")
    p(f"s_cselect_b32 s67, {2*SQ}, s67")
    p("s_mul_i32 s44, s25, 5120")
    p("s_add_u32 s67, s67, s44")
    p("s_cmp_lt_u32 s65, 48")
    p("s_cselect_b32 s68, s14, s8")
    p("s_cselect_b32 s69, s15, s9")
    p("s_mov_b32 s70, 819200")
    p("s_cselect_b32 s70, 1966080, s70")
    p("s_mov_b32 s71, 0x20000")
    for u in range(5):
        p(f"""
        v_add_u32 v2, {64*u}, v1
        v_mul_u32_u24 v3, 6554, v2
        v_lshrrev_b32 v3, 16, v3
        v_mul_u32_u24 v4, 10, v3
        v_sub_u32 v4, v2, v4
        v_mov_b32 v{20+u}, v3
        v_lshlrev_b32 v{26+u}, 4, v4
        """)
    p("s_cmp_lt_u32 s65, 48")
    p("s_cbranch_scc0 L_job_rB")
    p("s_lshl_b32 s44, s65, 5")
    for u in range(5):
        p(f"v_add_u32 v{20+u}, s44, v{20+u}")
    p("s_branch L_job_rdone")
    p.label("L_job_rB")
    p("s_cmp_lt_u32 s65, 64")
    p("s_cbranch_scc0 L_job_rC")
    p("s_sub_u32 s44, s65, 48")
    p("s_mul_i32 s44, s44, 40")
    for u in range(5):
        p(f"""
        v_lshrrev_b32 v2, 4, v{20+u}
        v_mul_u32_u24 v2, 20, v2
        v_and_b32 v3, 15, v{20+u}
        v_add3_u32 v{20+u}, v2, v3, s44
        """)
    p("s_branch L_job_rdone")
    p.label("L_job_rC")
    p("s_sub_u32 s44, s65, 64")
    p("s_lshl_b32 s44, s44, 3")
    for u in range(5):
        p(f"""
        v_lshrrev_b32 v2, 4, v{20+u}
        v_lshlrev_b32 v2, 2, v2
        v_bfe_u32 v3, v{20+u}, 2, 2
        v_add_u32 v3, 2, v3
        v_and_b32 v3, 3, v3
        v_add3_u32 v2, v2, v3, s44
        v_mul_u32_u24 v2, 20, v2
        v_and_b32 v3, 3, v{20+u}
        v_add3_u32 v{20+u}, v2, v3, 16
        """)
    p.label("L_job_rdone")
    p("s_mul_i32 s44, s66, 160")
    for u in range(5):
        p(f"v_mul_u32_u24 v2, 1280, v{20+u}")
        p(f"v_add3_u32 v{20+u}, v2, v{26+u}, s44")
    for u in range(5):
        p(f"s_add_u32 m0, s67, {u*1024}")
        p(f"buffer_load_dwordx4 v{20+u}, s[68:71], 0 offen lds")
    p("""
    v_lshrrev_b32 v2, 4, v1
    v_bfe_u32 v3, v1, 2, 2
    v_lshl_add_u32 v2, v2, 2, v3
    v_mul_u32_u24 v2, 160, v2
    v_and_b32 v3, 3, v1
    v_mul_u32_u24 v3, 40, v3
    v_add3_u32 v2, v2, v3, s67
    """)
    p(f"s_mul_i32 s44, s66, {WP_CG}")
    p("s_mul_i32 s45, s65, 5120")
    p("s_add_u32 s44, s44, s45")
    p(f"s_add_u32 s44, s44, {WS_WP}")
    p("v_lshlrev_b32 v3, 4, v1")
    p("v_add_u32 v3, s44, v3")
    p("v_add_u32 v4, 4096, v3")
    p("s_waitcnt vmcnt(0)")
    for t in range(5):
        for b2 in range(2):
            p(f"ds_read_b64_tr_b16 v[{32+4*t+2*b2}:{32+4*t+2*b2+1}], v2 offset:{16*b2*160+8*t}")
    p("s_waitcnt lgkmcnt(0)")
    for t in range(5):
        if t < 4:
            p(f"buffer_store_dwordx4 v[{32+4*t}:{35+4*t}], v3, s[40:43], 0 offen offset:{1024*t}")
        else:
            p(f"buffer_store_dwordx4 v[{32+4*t}:{35+4*t}], v4, s[40:43], 0 offen")
    p.label("L_job_gate")
    p("s_cmp_lt_u32 s64, 512")
    p("s_cbranch_scc1 L_job_end")
    p("s_sub_u32 s65, s64, 512")
    p("s_mov_b32 s68, s4"); p("s_mov_b32 s69, s5"); p("s_mov_b32 s70, 2621440"); p("s_mov_b32 s71, 0x20000")
    p("s_mov_b32 s72, s16"); p("s_mov_b32 s73, s17"); p("s_mov_b32 s74, 1280"); p("s_mov_b32 s75, 0x20000")
    p("""
    v_lshrrev_b32 v2, 4, v1
    v_and_b32 v3, 15, v1
    v_lshlrev_b32 v3, 4, v3
    s_lshl_b32 s44, s65, 2
    v_add_u32 v2, s44, v2
    v_mul_u32_u24 v4, 1280, v2
    v_add_u32 v4, v4, v3
    """)
    for i in range(5):
        p(f"buffer_load_dwordx4 v[{20+4*i}:{23+4*i}], v4, s[68:71], 0 offen offset:{256*i}")
        p(f"buffer_load_dwordx4 v[{40+4*i}:{43+4*i}], v3, s[72:75], 0 offen offset:{256*i}")
    p("v_mov_b32 v5, 0")
    p("s_waitcnt vmcnt(0)")
    for i in range(20):
        p(f"v_dot2_f32_bf16 v5, v{20+i}, v{40+i}, v5")
    for sh in (8, 4, 2, 1):
        p(f"v_add_f32_dpp v5, v5, v5 row_ror:{sh} row_mask:0xf bank_mask:0xf")
    p(f"s_mov_b32 s44, {LOG2E}")
    p("v_mul_f32 v5, s44, v5")
    p("v_sub_f32 v5, 0, v5")
    p("v_exp_f32 v5, v5")
    p("v_add_f32 v5, 1.0, v5")
    p("v_rcp_f32 v5, v5")
    p("v_lshlrev_b32 v2, 2, v2")
    p(f"v_add_u32 v2, {WS_G}, v2")
    p("v_and_b32 v3, 15, v1")
    p("v_cmp_eq_u32 vcc, 0, v3")
    p(f"v_mov_b32 v6, {OOB}")
    p("v_cndmask_b32 v2, v6, v2, vcc")
    p("buffer_store_dword v5, v2, s[40:43], 0 offen")
    p.label("L_job_end")

def emit_k1_compute(p, cfg, kind):
    NT = 8 if kind == 'q' else 6
    SETSZ = 16 + 4 * NT
    ACC = 32
    stage = SQ if kind == 'q' else SH
    def xf(s, st): return 0 + SETSZ * s + 4 * st
    def wf(s, t): return SETSZ * s + 16 + 4 * t
    def acc(t, st): return ACC + (t * 4 + st) * 4
    VX0, VX1 = 8, 9
    VWB = 10
    p("""
    s_lshr_b32 s48, s25, 1
    s_and_b32 s49, s25, 1
    v_lshrrev_b32 v2, 4, v1
    v_bfe_u32 v3, v1, 2, 2
    v_and_b32 v4, 3, v1
    v_bfe_u32 v5, v1, 3, 1
    s_lshl_b32 s44, s48, 3
    v_add_u32 v5, s44, v5
    v_lshlrev_b32 v5, 10, v5
    v_and_b32 v6, 7, v1
    v_lshl_add_u32 v5, v6, 7, v5
    v_xor_b32 v7, v2, v6
    v_lshl_add_u32 v8, v7, 4, v5
    v_xor_b32 v7, 4, v7
    v_lshl_add_u32 v9, v7, 4, v5
    """)
    p("""
    v_lshrrev_b32 v5, 1, v2
    v_lshlrev_b32 v5, 4, v5
    v_and_b32 v6, 1, v2
    v_lshl_add_u32 v5, v6, 2, v5
    v_add_u32 v5, v5, v3
    """)
    if kind == 'q':
        p(f"""
        v_mul_u32_u24 v6, 160, v5
        v_add_u32 v6, 16384, v6
        s_mul_i32 s44, s49, 80
        v_lshlrev_b32 v7, 3, v4
        v_add3_u32 v10, v6, v7, s44
        """)
        p(f"""
        v_lshrrev_b32 v7, 1, v4
        v_xor_b32 v7, s49, v7
        v_mul_u32_u24 v7, {SEG}, v7
        v_and_b32 v13, 1, v4
        v_mul_u32_u24 v13, 40, v13
        v_add3_u32 v13, v13, v6, s44
        v_add_u32 v11, {SEG+32}, v13
        v_add_u32 v11, v11, v7
        v_add_u32 v12, 32, v13
        """)
        def wread(t, s, b2):
            ro = (32 * s + 8 * b2) * 160
            if t in (0, 1): return ("v10", SEG + 40 * t + ro)
            if t in (2, 3): return ("v10", 2 * SEG + 40 * (t - 2) + ro)
            if t == 4: return ("v11", ro)
            if t in (5, 6): return ("v10", 40 * (t - 5) + ro)
            return ("v12", ro)
        addr_regs = [8, 9, 10, 11, 12]
        transposed = lambda t: t >= 5
    else:
        p(f"""
        v_mul_u32_u24 v6, 384, v5
        v_add_u32 v6, 16384, v6
        v_and_b32 v7, 1, v4
        v_lshl_add_u32 v6, v7, 3, v6
        v_and_b32 v7, 6, v5
        v_lshrrev_b32 v16, 1, v4
        s_mul_i32 s44, s49, 12
        v_add_u32 v16, s44, v16
        """)
        for t in range(6):
            p(f"""
            v_add_u32 v17, {2*t}, v16
            v_xor_b32 v17, v17, v7
            v_lshl_add_u32 v{10+t}, v17, 4, v6
            """)
        def wread(t, s, b2):
            return (f"v{10+t}", (32 * s + 8 * b2) * 384)
        addr_regs = [8, 9, 10, 11, 12, 13, 14, 15]
        transposed = lambda t: True

    def reads(s_dst, s_k):
        L = []
        vx = "v8" if s_k == 0 else "v9"
        for st in range(4):
            L.append(f"ds_read_b128 {ar(xf(s_dst, st), 4)}, {vx} offset:{st*2048}")
        for t in range(NT):
            for b2 in range(2):
                a, off = wread(t, s_k, b2)
                L.append(f"ds_read_b64_tr_b16 {ar(wf(s_dst, t) + 2*b2, 2)}, {a} offset:{off}")
        xs, ws = L[:4], L[4:]
        return [xs[0]] + ws[:4] + [xs[1]] + ws[4:8] + [xs[2]] + ws[8:12] + [xs[3]] + ws[12:]

    def mfmas(s):
        L = []
        for st in range(4):
            for t in range(NT):
                A, B = (ar(wf(s, t), 4), ar(xf(s, st), 4)) if transposed(t) else (ar(xf(s, st), 4), ar(wf(s, t), 4))
                c = vr(acc(t, st), 4)
                L.append(f"v_mfma_f32_16x16x32_bf16 {c}, {A}, {B}, {c}")
        return L

    def phase(s, rd, extra=()):
        M = mfmas(s)
        other = list(rd) + list(extra)
        for i, m in enumerate(M):
            p(m)
            if i < len(other): p(other[i])
        for o in other[len(M):]: p(o)

    for i in range(NT * 16):
        p(f"v_mov_b32 v{ACC+i}, 0")
    p("s_mov_b32 s50, 0")
    p("s_mov_b32 s51, 10")
    p(f"s_mov_b32 s55, {stage}")
    stamp(p, 1, cfg)
    p("s_barrier")
    for r in reads(0, 0): p(r)
    p("s_waitcnt lgkmcnt(0)")
    stamp(p, 2, cfg)
    L = f"L_k1_loop_{kind}"
    p.label(L)
    upd = ["s_add_u32 s50, s50, 1",
           "s_cmp_eq_u32 s50, 3",
           f"s_cselect_b32 s52, {(-2*stage) & 0xffffffff}, s55",
           "s_cselect_b32 s50, 0, s50"] + [f"v_add_u32 v{r}, s52, v{r}" for r in addr_regs]
    phase(0, reads(1, 1), upd)
    p("s_waitcnt lgkmcnt(0)")
    p("s_barrier")
    phase(1, reads(0, 0))
    p("s_waitcnt lgkmcnt(0)")
    p("s_sub_u32 s51, s51, 1")
    p("s_cmp_lg_u32 s51, 0")
    p(f"s_cbranch_scc1 {L}")
    stamp(p, 3, cfg)
    if kind == 'h':
        epilogue_h(p, cfg, acc)
    else:
        epilogue_q(p, cfg, acc)
    stamp(p, 4, cfg)
    p("s_waitcnt vmcnt(0)")
    stamp(p, 5, cfg)
    if cfg.stamps:
        p("s_lshl_b32 s89, s2, 3"); p("s_add_u32 s89, s89, s24")
        stamp_flush(p, 6, cfg, "s89")
    p("s_branch L_end")

def epilogue_h(p, cfg, acc):
    p(f"""
    s_lshl_b32 s44, s26, 3
    s_lshl_b32 s45, s48, 2
    s_add_u32 s44, s44, s45
    s_mul_i32 s44, s44, {AP_ST}
    s_mul_i32 s45, s27, 6
    s_mul_i32 s46, s49, 3
    s_add_u32 s45, s45, s46
    s_lshl_b32 s45, s45, 10
    s_add_u32 s44, s44, s45
    s_add_u32 s44, s44, {WS_AP}
    v_lshlrev_b32 v2, 4, v1
    v_add_u32 v2, s44, v2
    """)
    for st in range(4):
        if st: p(f"v_add_u32 v2, {AP_ST}, v2")
        for pp in range(3):
            a0, a1 = acc(2*pp, st), acc(2*pp+1, st)
            d = 16 + 4 * ((st * 3 + pp) % 4)
            p(f"v_cvt_pk_bf16_f32 v{d}, v{a0}, v{a0+1}")
            p(f"v_cvt_pk_bf16_f32 v{d+1}, v{a0+2}, v{a0+3}")
            p(f"v_cvt_pk_bf16_f32 v{d+2}, v{a1}, v{a1+1}")
            p(f"v_cvt_pk_bf16_f32 v{d+3}, v{a1+2}, v{a1+3}")
            for i in range(4):
                p(f"v_pk_max_i16 v{d+i}, v{d+i}, 0")
            p(f"buffer_store_dwordx4 v[{d}:{d+3}], v2, s[40:43], 0 offen offset:{pp*1024}")

def phi(p, r, tmp):
    p(f"v_mul_f32 v{tmp}, s53, v{r}")
    p(f"v_exp_f32 v{tmp}, v{tmp} clamp")
    p(f"v_max_f32 v{r}, 0, v{r}")
    p(f"v_add_f32 v{r}, s54, v{r}")
    p(f"v_add_f32 v{r}, v{r}, v{tmp}")

def epilogue_q(p, cfg, acc):
    K0, K1, V0, V1, X, Q0, Q1, QX = range(8)
    p(f"s_mov_b32 s53, {LOG2E}")
    p(f"s_mov_b32 s54, {EPS6}")
    p("v_lshrrev_b32 v2, 4, v1")
    p("v_and_b32 v3, 15, v1")
    p("v_lshrrev_b32 v4, 3, v3")
    p("v_cmp_eq_u32 s[56:57], s49, v4")
    def phi_tile(t, st, masked=False):
        a = acc(t, st)
        tm = 16
        for i in range(4): p(f"v_mul_f32 v{tm+i}, s53, v{a+i}")
        for i in range(4): p(f"v_exp_f32 v{tm+i}, v{tm+i} clamp")
        if not masked:
            for i in range(4): p(f"v_max_f32 v{a+i}, 0, v{a+i}")
            for i in range(4): p(f"v_add_f32 v{a+i}, s54, v{a+i}")
            for i in range(4): p(f"v_add_f32 v{a+i}, v{a+i}, v{tm+i}")
        else:
            for i in range(4): p(f"v_max_f32 v{tm+4+i}, 0, v{a+i}")
            for i in range(4): p(f"v_add_f32 v{tm+4+i}, s54, v{tm+4+i}")
            for i in range(4): p(f"v_add_f32 v{tm+4+i}, v{tm+4+i}, v{tm+i}")
            for i in range(4): p(f"v_cndmask_b32 v{a+i}, v{a+i}, v{tm+4+i}, s[56:57]")
    p(f"""
    s_lshl_b32 s44, s26, 3
    s_lshl_b32 s45, s48, 2
    s_add_u32 s44, s44, s45
    s_mul_i32 s44, s44, {PQ_ST}
    s_mul_i32 s45, s27, 2560
    s_add_u32 s44, s44, s45
    s_add_u32 s44, s44, {WS_PQ}
    s_lshl_b32 s45, s49, 10
    s_add_u32 s45, s45, s44
    v_lshlrev_b32 v5, 4, v1
    v_add_u32 v5, s45, v5
    v_lshlrev_b32 v6, 3, v1
    v_add_u32 v6, s44, v6
    v_add_u32 v6, 2048, v6
    v_lshrrev_b32 v7, 1, v2
    v_cmp_eq_u32 s[58:59], s49, v7
    v_mov_b32 v7, {OOB}
    v_cndmask_b32 v6, v7, v6, s[58:59]
    """)
    for st in range(4):
        for t in (Q0, Q1, QX): phi_tile(t, st)
        a0, a1, ax = acc(Q0, st), acc(Q1, st), acc(QX, st)
        p(f"v_cvt_pk_bf16_f32 v{a0}, v{a0}, v{a0+1}")
        p(f"v_cvt_pk_bf16_f32 v{a0+1}, v{a0+2}, v{a0+3}")
        p(f"v_cvt_pk_bf16_f32 v{a0+2}, v{a1}, v{a1+1}")
        p(f"v_cvt_pk_bf16_f32 v{a0+3}, v{a1+2}, v{a1+3}")
        p(f"v_cvt_pk_bf16_f32 v{ax}, v{ax}, v{ax+1}")
        p(f"v_cvt_pk_bf16_f32 v{ax+1}, v{ax+2}, v{ax+3}")
        p(f"buffer_store_dwordx4 v[{a0}:{a0+3}], v5, s[40:43], 0 offen")
        p(f"buffer_store_dwordx2 v[{ax}:{ax+1}], v6, s[40:43], 0 offen")
        if st < 3:
            p(f"v_add_u32 v5, {PQ_ST}, v5")
            p(f"v_add_u32 v6, {PQ_ST}, v6")
    for st in range(4):
        phi_tile(K0, st); phi_tile(K1, st); phi_tile(X, st, masked=True)
    for t in (K0, K1, V0, V1, X):
        for kk in range(2):
            a, b = acc(t, 2*kk), acc(t, 2*kk+1)
            p(f"v_cvt_pk_bf16_f32 v{a}, v{a}, v{a+1}")
            p(f"v_cvt_pk_bf16_f32 v{a+1}, v{a+2}, v{a+3}")
            p(f"v_cvt_pk_bf16_f32 v{a+2}, v{b}, v{b+1}")
            p(f"v_cvt_pk_bf16_f32 v{a+3}, v{b+2}, v{b+3}")
    fr = lambda t, kk: vr(acc(t, 2*kk), 4)
    free = [acc(t, s) for t in (K0, K1, V0, V1, X) for s in (1, 3)]
    KV0, KV1, KX0, KX1, XV0, XV1, XX, Z0, Z1, ZX = free
    ONES = 16
    for i in range(4): p(f"v_mov_b32 v{ONES+i}, 0x3f803f80")
    for r in free:
        for i in range(4): p(f"v_mov_b32 v{r+i}, 0")
    ones = vr(ONES, 4)
    for kk in range(2):
        for (d, A, B) in ((KV0, fr(K0,kk), fr(V0,kk)), (KV1, fr(K1,kk), fr(V1,kk)), (KX0, fr(K0,kk), fr(X,kk)),
                          (KX1, fr(K1,kk), fr(X,kk)), (XV0, fr(X,kk), fr(V0,kk)), (XV1, fr(X,kk), fr(V1,kk)),
                          (XX, fr(X,kk), fr(X,kk)), (Z0, fr(K0,kk), ones), (Z1, fr(K1,kk), ones), (ZX, fr(X,kk), ones)):
            p(f"v_mfma_f32_16x16x32_bf16 {vr(d,4)}, {A}, {B}, {vr(d,4)}")
    p("v_bfe_u32 v4, v3, 2, 1")
    p("v_cmp_eq_u32 s[60:61], 1, v4")
    p("v_and_b32 v4, 1, v2")
    p("v_cmp_eq_u32 s[62:63], 1, v4")
    p("v_and_b32 v4, 1, v3")
    p("v_cmp_eq_u32 s[64:65], 1, v4")
    for i in range(4): p(f"v_cndmask_b32 v{KX0+i}, v{KX0+i}, v{KX1+i}, s[60:61]")
    for i in range(4): p(f"v_cndmask_b32 v{XV0+i}, v{XV0+i}, v{XV1+i}, s[62:63]")
    for i in range(4): p(f"v_cndmask_b32 v{Z0+i}, v{Z0+i}, v{Z1+i}, s[64:65]")
    tiles = [KV0, KV1, KX0, XV0, XX, Z0, ZX]
    RB = SQ
    p(f"s_mul_i32 s44, s49, 7168")
    p(f"s_add_u32 s44, s44, {RB}")
    p("v_lshlrev_b32 v4, 4, v1")
    p("v_add_u32 v4, s44, v4")
    p("s_cmp_eq_u32 s48, 0")
    p("s_cbranch_scc1 L_q_red0")
    for j, t in enumerate(tiles):
        p(f"ds_write_b128 v4, {vr(t,4)} offset:{j*1024}")
    p("s_waitcnt lgkmcnt(0)")
    p("s_barrier")
    p("s_branch L_q_done")
    p.label("L_q_red0")
    p("s_barrier")
    TM = acc(Q0, 0)
    p("s_waitcnt vmcnt(0)")
    for j in range(7):
        p(f"ds_read_b128 {vr(TM+4*j,4)}, v4 offset:{j*1024}")
    p("s_waitcnt lgkmcnt(0)")
    for j, t in enumerate(tiles):
        for i in range(4): p(f"v_add_f32 v{t+i}, v{t+i}, v{TM+4*j+i}")
    p(f"""
    s_lshl_b32 s44, s26, 3
    s_add_u32 s44, s44, s27
    s_lshl_b32 s44, s44, 13
    s_add_u32 s44, s44, {WS_KVP}
    v_lshlrev_b32 v4, 4, v1
    v_add_u32 v4, s44, v4
    s_lshl_b32 s45, s49, 11
    v_add_u32 v5, s45, v4
    v_mov_b32 v7, {OOB}
    """)
    p(f"buffer_store_dwordx4 {vr(KV0,4)}, v5, s[40:43], 0 offen")
    p(f"buffer_store_dwordx4 {vr(KV1,4)}, v5, s[40:43], 0 offen offset:1024")
    p("v_add_u32 v6, 4096, v4")
    p("v_cndmask_b32 v6, v6, v7, s[56:57]")
    p(f"buffer_store_dwordx4 {vr(KX0,4)}, v6, s[40:43], 0 offen")
    p("v_add_u32 v8, 5120, v4")
    p("v_cndmask_b32 v8, v7, v8, s[58:59]")
    p(f"buffer_store_dwordx4 {vr(XV0,4)}, v8, s[40:43], 0 offen")
    p("v_add_u32 v9, 2, v2")
    p("v_and_b32 v9, 3, v9")
    p("v_lshrrev_b32 v10, 2, v3")
    p("v_cmp_eq_u32 s[60:61], v9, v10")
    p("s_and_b64 s[60:61], s[60:61], s[58:59]")
    p("v_add_u32 v9, 6144, v4")
    p("v_cndmask_b32 v9, v7, v9, s[60:61]")
    p(f"buffer_store_dwordx4 {vr(XX,4)}, v9, s[40:43], 0 offen")
    p("v_lshlrev_b32 v10, 6, v3")
    p("v_lshl_add_u32 v10, v2, 4, v10")
    p("v_add_u32 v11, s44, v10")
    p("v_add_u32 v11, 7168, v11")
    p("v_lshrrev_b32 v10, 1, v3")
    p("v_cmp_eq_u32 s[60:61], s49, v10")
    p("v_cndmask_b32 v11, v7, v11, s[60:61]")
    p(f"buffer_store_dwordx4 {vr(Z0,4)}, v11, s[40:43], 0 offen")
    p("v_lshlrev_b32 v10, 4, v2")
    p("v_add_u32 v12, s44, v10")
    p("v_add_u32 v12, 7424, v12")
    p("v_cmp_eq_u32 s[60:61], 0, v3")
    p("s_and_b64 s[60:61], s[60:61], s[58:59]")
    p("v_cndmask_b32 v12, v7, v12, s[60:61]")
    p(f"buffer_store_dwordx4 {vr(ZX,4)}, v12, s[40:43], 0 offen")
    p.label("L_q_done")


def emit_k2(p, cfg):
    prologue_common(p)
    p(f"""
    s_and_b32 s26, s45, 7
    s_lshl_b32 s46, s46, 3
    s_add_u32 s26, s26, s46
    s_lshr_b32 s27, s45, 3
    s_lshl_b32 s47, s47, 2
    s_add_u32 s27, s27, s47
    s_waitcnt lgkmcnt(0)
    s_mov_b32 s40, s22
    s_mov_b32 s41, s23
    s_mov_b32 s42, {WS_SIZE}
    s_mov_b32 s43, 0x20000
    s_mov_b32 s32, s18
    s_mov_b32 s33, s19
    s_mov_b32 s34, 2621440
    s_mov_b32 s35, 0x20000
    s_mov_b32 s36, s20
    s_mov_b32 s37, s21
    s_mov_b32 s38, 256
    s_mov_b32 s39, 0x20000
    v_lshrrev_b32 v2, 4, v1
    v_and_b32 v3, 15, v1
    """)
    stamp(p, 0, cfg)
    VT = 8
    p(f"v_mov_b32 v7, {OOB}")
    p("v_add_u32 v4, 2, v2"); p("v_and_b32 v4, 3, v4"); p("v_lshrrev_b32 v5, 2, v3")
    p("v_cmp_eq_u32 s[56:57], v4, v5")
    for i in range(3):
        p(f"""
        s_mul_i32 s44, s25, 3
        s_add_u32 s44, s44, {i}
        s_lshl_b32 s45, s44, 10
        v_lshlrev_b32 v4, 4, v1
        v_add_u32 v4, s45, v4
        s_sub_u32 s46, s44, 7
        s_lshl_b32 s46, s46, 6
        s_add_u32 s46, s46, 7168
        v_lshlrev_b32 v5, 4, v2
        v_add_u32 v5, s46, v5
        s_cmp_le_u32 s44, 6
        s_cselect_b64 s[58:59], -1, 0
        v_cndmask_b32 v{VT+i}, v5, v4, s[58:59]
        s_cmp_eq_u32 s44, 6
        s_cselect_b64 s[58:59], -1, 0
        s_andn2_b64 s[58:59], s[58:59], s[56:57]
        v_cndmask_b32 v{VT+i}, v{VT+i}, v7, s[58:59]
        """)
    p(f"s_lshl_b32 s48, s27, 13")
    p(f"s_add_u32 s48, s48, {WS_KVP}")
    BQ = 16
    p(f"""
    s_lshl_b32 s49, s26, 2
    s_add_u32 s50, s49, s25
    s_mul_i32 s44, s50, {PQ_ST}
    s_mul_i32 s45, s27, 2560
    s_add_u32 s44, s44, s45
    s_add_u32 s44, s44, {WS_PQ}
    v_lshlrev_b32 v4, 4, v1
    v_add_u32 v4, s44, v4
    v_lshlrev_b32 v5, 3, v1
    v_add_u32 v5, s44, v5
    """)
    for h in range(4):
        p(f"buffer_load_dwordx2 v[{BQ+4*h}:{BQ+4*h+1}], v4, s[40:43], 0 offen offset:{(h>>1)*1024 + (h&1)*8}")
        p(f"buffer_load_dwordx2 v[{BQ+4*h+2}:{BQ+4*h+3}], v5, s[40:43], 0 offen offset:2048")
    for sg in range(4):
        p(f"""
        s_add_u32 s44, s25, {sg}
        s_and_b32 s44, s44, 3
        s_add_u32 s44, s44, s49
        s_lshl_b32 s44, s44, 6
        s_add_u32 s44, s44, {WS_G}
        v_lshlrev_b32 v4, 2, v3
        v_add_u32 v4, s44, v4
        buffer_load_dword v{12+sg}, v4, s[40:43], 0 offen
        """)
    LD = 32
    SUM = 128
    for i in range(12): p(f"v_mov_b32 v{SUM+i}, 0")
    for b in range(2):
        for rb in range(8):
            p(f"s_add_u32 s44, s48, {(8*b+rb)*65536}")
            for i in range(3):
                r = LD + (rb*3+i)*4
                p(f"buffer_load_dwordx4 v[{r}:{r+3}], v{VT+i}, s[40:43], s44 offen")
        for rb in range(8):
            p(f"s_waitcnt vmcnt({(7-rb)*3})")
            for i in range(3):
                r = LD + (rb*3+i)*4
                p(f"v_pk_add_f32 v[{SUM+4*i}:{SUM+4*i+1}], v[{SUM+4*i}:{SUM+4*i+1}], v[{r}:{r+1}]")
                p(f"v_pk_add_f32 v[{SUM+4*i+2}:{SUM+4*i+3}], v[{SUM+4*i+2}:{SUM+4*i+3}], v[{r+2}:{r+3}]")
    KVL = 61440
    p("s_mul_i32 s44, s25, 1536")
    p(f"s_add_u32 s44, s44, {KVL}")
    p("v_lshlrev_b32 v4, 3, v1")
    p("v_add_u32 v5, s44, v4")
    for i in range(3):
        p(f"v_cvt_pk_bf16_f32 v{SUM+4*i}, v{SUM+4*i}, v{SUM+4*i+1}")
        p(f"v_cvt_pk_bf16_f32 v{SUM+4*i+1}, v{SUM+4*i+2}, v{SUM+4*i+3}")
        p(f"ds_write_b64 v5, v[{SUM+4*i}:{SUM+4*i+1}] offset:{i*512}")
    p("s_waitcnt lgkmcnt(0)")
    p("s_barrier")
    stamp(p, 1, cfg)
    TT = 32
    p(f"v_add_u32 v4, {KVL}, v4")
    for tau in range(12):
        p(f"ds_read_b64 v[{TT+2*tau}:{TT+2*tau+1}], v4 offset:{tau*512}")
    p("v_lshrrev_b32 v5, 2, v3")
    for h in range(4):
        p(f"v_cmp_eq_u32 s[{60+2*h}:{61+2*h}], {h}, v2")
        p(f"v_cmp_eq_u32 s[{68+2*h}:{69+2*h}], {(h+2)&3}, v5")
    p("s_waitcnt lgkmcnt(0)")
    KVt = lambda h: TT + 2*h
    EXL, E0H, XXt = TT + 8, TT + 10, TT + 12
    ZL = lambda h: TT + 14 + 2*h
    ZH = TT + 22
    FR = 64
    for h in range(4):
        e0, ex, dn = FR + 12*h, FR + 12*h + 4, FR + 12*h + 8
        mg, mr = f"s[{60+2*h}:{61+2*h}]", f"s[{68+2*h}:{69+2*h}]"
        p(f"v_mov_b32 v{e0}, v{KVt(h)}"); p(f"v_mov_b32 v{e0+1}, v{KVt(h)+1}")
        p(f"v_cndmask_b32 v{e0+2}, 0, v{E0H}, {mg}"); p(f"v_cndmask_b32 v{e0+3}, 0, v{E0H+1}, {mg}")
        p(f"v_cndmask_b32 v{ex}, 0, v{EXL}, {mr}"); p(f"v_cndmask_b32 v{ex+1}, 0, v{EXL+1}, {mr}")
        p(f"v_cndmask_b32 v{ex+2}, 0, v{XXt}, {mr}"); p(f"v_cndmask_b32 v{ex+3}, 0, v{XXt+1}, {mr}")
        p(f"v_mov_b32 v{dn}, v{ZL(h)}"); p(f"v_mov_b32 v{dn+1}, v{ZL(h)+1}")
        p(f"v_cndmask_b32 v{dn+2}, 0, v{ZH}, {mg}"); p(f"v_cndmask_b32 v{dn+3}, 0, v{ZH+1}, {mg}")
    NUM = 112
    DN = 128; EXO = 144
    bq = lambda h: vr(BQ + 4*h, 4)
    for h in range(4):
        p(f"v_mfma_f32_16x16x32_bf16 {vr(NUM+4*h,4)}, {vr(FR+12*h,4)}, {bq(h)}, 0")
        p(f"v_mfma_f32_16x16x32_bf16 {vr(DN+4*h,4)}, {vr(FR+12*h+8,4)}, {bq(h)}, 0")
        c = "0" if h == 0 else vr(EXO, 4)
        p(f"v_mfma_f32_16x16x32_bf16 {vr(EXO,4)}, {vr(FR+12*h+4,4)}, {bq(h)}, {c}")
    p(f"s_mov_b32 s54, {EPS6}")
    for h in range(4): p(f"v_add_f32 v{148+h}, s54, v{DN+4*h}")
    for h in range(4): p(f"v_rcp_f32 v{148+h}, v{148+h}")
    for h in range(4): p(f"v_mul_f32 v{148+h}, v12, v{148+h}")
    p("v_cndmask_b32 v152, v148, v150, s[60:61]")
    p("v_cndmask_b32 v152, v152, v151, s[62:63]")
    p("v_cndmask_b32 v152, v152, v149, s[66:67]")
    for h in range(4):
        for i in range(4): p(f"v_mul_f32 v{NUM+4*h+i}, v{NUM+4*h+i}, v{148+h}")
    for i in range(4): p(f"v_mul_f32 v{EXO+i}, v{EXO+i}, v152")
    for h in range(4):
        p(f"v_cvt_pk_bf16_f32 v{64+2*h}, v{NUM+4*h}, v{NUM+4*h+1}")
        p(f"v_cvt_pk_bf16_f32 v{64+2*h+1}, v{NUM+4*h+2}, v{NUM+4*h+3}")
    p(f"v_cvt_pk_bf16_f32 v72, v{EXO}, v{EXO+1}")
    p(f"v_cvt_pk_bf16_f32 v73, v{EXO+2}, v{EXO+3}")
    p(f"""
    s_mul_i32 s44, s50, {AP_ST}
    s_add_u32 s44, s44, {WS_AP}
    s_lshl_b32 s45, s27, 11
    s_add_u32 s45, s45, s44
    s_add_u32 s45, s45, {48*1024}
    v_lshlrev_b32 v4, 4, v1
    v_add_u32 v5, s45, v4
    s_lshr_b32 s45, s27, 1
    s_lshl_b32 s45, s45, 10
    s_and_b32 s46, s27, 1
    s_lshl_b32 s46, s46, 3
    s_add_u32 s45, s45, s46
    s_add_u32 s45, s45, s44
    s_add_u32 s45, s45, {64*1024}
    v_add_u32 v6, s45, v4
    """)
    p("buffer_store_dwordx4 v[64:67], v5, s[40:43], 0 offen sc1")
    p("buffer_store_dwordx4 v[68:71], v5, s[40:43], 0 offen offset:1024 sc1")
    p("buffer_store_dwordx2 v[72:73], v6, s[40:43], 0 offen sc1")
    stamp(p, 2, cfg)
    ACC = 32
    acc = lambda sg, t: ACC + (sg*5 + t)*4
    def frag(setn, f):
        idx = setn*9 + f
        return ar(idx*4, 4) if idx < 24 else vr(112 + (idx-24)*4, 4)
    VB = 8
    VA, VA2 = 6, 7
    for sg in range(4):
        p(f"""
        s_add_u32 s44, s25, {sg}
        s_and_b32 s44, s44, 3
        s_add_u32 s44, s44, s49
        s_mul_i32 s44, s44, {AP_ST}
        s_add_u32 s44, s44, {WS_AP}
        v_add_u32 v{VB+sg}, s44, v4
        """)
    p(f"""
    s_mul_i32 s44, s27, {WP_CG}
    s_add_u32 s44, s44, {WS_WP}
    v_add_u32 v{VA}, s44, v4
    v_add_u32 v{VA2}, 4096, v{VA}
    s_mul_i32 s52, s25, 12
    s_mul_i32 s53, s25, 5
    s_add_u32 s53, s53, 48
    """)
    p("s_waitcnt vmcnt(0)")
    p("s_barrier")
    p("s_cmp_eq_u32 s25, 0")
    p("s_cbranch_scc0 L_k2_nopub")
    p("s_lshl_b32 s44, s26, 2")
    p("v_mov_b32 v2, s44")
    p("v_mov_b32 v3, 1")
    p("s_mov_b64 exec, 1")
    p("buffer_atomic_add v3, v2, s[36:39], 0 offen sc1")
    p("s_mov_b64 exec, -1")
    p.label("L_k2_nopub")
    for i in range(80): p(f"v_mov_b32 v{ACC+i}, 0")
    def ksreg(j):
        if j < 12: p(f"s_add_u32 s54, s52, {j}")
        else: p(f"s_add_u32 s54, s53, {j-12}")
        p("s_mul_i32 s55, s54, 5120")
        p("s_lshl_b32 s54, s54, 10")
    def loadB(j, sg):
        fl = " sc1" if j >= 12 else ""
        p(f"buffer_load_dwordx4 {frag(j%4, sg)}, v{VB+sg}, s[40:43], s54 offen{fl}")
    def loadA(j, t):
        if t < 4: p(f"buffer_load_dwordx4 {frag(j%4, 4+t)}, v{VA}, s[40:43], s55 offen offset:{t*1024}")
        else: p(f"buffer_load_dwordx4 {frag(j%4, 8)}, v{VA2}, s[40:43], s55 offen")
    for j in range(4):
        ksreg(j)
        for sg in range(3): loadB(j, sg)
        for t in range(5): loadA(j, t)
        loadB(j, 3)
    stamp(p, 3, cfg)
    NS = 17
    for j in range(NS):
        nxt = j + 4
        rem = min(NS - 1, j + 3) - j
        if j == 8:
            p("s_lshl_b32 s44, s26, 2")
            p("v_mov_b32 v2, s44")
            p.label("L_k2_poll")
            p("buffer_load_dword v3, v2, s[36:39], 0 offen sc1")
            p("s_waitcnt vmcnt(0)")
            p("v_readfirstlane_b32 s44, v3")
            p("s_cmp_ge_u32 s44, 8")
            p("s_cbranch_scc1 L_k2_polled")
            p("s_sleep 2")
            p("s_branch L_k2_poll")
            p.label("L_k2_polled")
        else:
            p(f"s_waitcnt vmcnt({rem*9})")
        if j == 12:
            for sg in range(4): p(f"v_sub_f32 v{12+sg}, 1.0, v{12+sg}")
            for sg in range(4):
                for t in range(5):
                    for i in range(4): p(f"v_mul_f32 v{acc(sg,t)+i}, v{acc(sg,t)+i}, v{12+sg}")
        if nxt < NS: ksreg(nxt)
        for sg in range(4):
            for t in range(5):
                c = vr(acc(sg, t), 4)
                p(f"v_mfma_f32_16x16x32_bf16 {c}, {frag(j%4, 4+t)}, {frag(j%4, sg)}, {c}")
                if sg == 3 and nxt < NS: loadA(nxt, t)
            if nxt < NS: loadB(nxt, sg)
    stamp(p, 4, cfg)
    for sg in range(1, 4):
        p(f"""
        s_add_u32 s44, s25, {sg}
        s_and_b32 s44, s44, 3
        s_mul_i32 s44, s44, 3
        s_add_u32 s44, s44, {sg-1}
        s_mul_i32 s44, s44, 5120
        v_add_u32 v5, s44, v4
        """)
        for t in range(5):
            p(f"ds_write_b128 v5, {vr(acc(sg,t),4)} offset:{t*1024}")
    p("s_waitcnt lgkmcnt(0)")
    p("s_barrier")
    p("s_mul_i32 s44, s25, 15360")
    p("v_add_u32 v5, s44, v4")
    for k in range(3):
        for t in range(5):
            p(f"ds_read_b128 {vr(acc(1+k,t),4)}, v5 offset:{k*5120+t*1024}")
    p("s_waitcnt lgkmcnt(0)")
    for k in range(3):
        for t in range(5):
            a, b = acc(0, t), acc(1+k, t)
            p(f"v_pk_add_f32 v[{a}:{a+1}], v[{a}:{a+1}], v[{b}:{b+1}]")
            p(f"v_pk_add_f32 v[{a+2}:{a+3}], v[{a+2}:{a+3}], v[{b+2}:{b+3}]")
    O = 112
    for t in range(5):
        a = acc(0, t)
        p(f"v_cvt_pk_bf16_f32 v{O+2*t}, v{a}, v{a+1}")
        p(f"v_cvt_pk_bf16_f32 v{O+2*t+1}, v{a+2}, v{a+3}")
    p("""
    v_lshrrev_b32 v2, 4, v1
    v_and_b32 v3, 15, v1
    s_lshl_b32 s44, s50, 4
    v_add_u32 v3, s44, v3
    v_mul_u32_u24 v3, 1280, v3
    v_mul_u32_u24 v2, 40, v2
    s_mul_i32 s44, s27, 160
    v_add3_u32 v3, v3, v2, s44
    """)
    p(f"buffer_store_dwordx4 v[{O}:{O+3}], v3, s[32:35], 0 offen")
    p(f"buffer_store_dwordx4 v[{O+4}:{O+7}], v3, s[32:35], 0 offen offset:16")
    p(f"buffer_store_dwordx2 v[{O+8}:{O+9}], v3, s[32:35], 0 offen offset:32")
    stamp(p, 5, cfg)
    if cfg.stamps:
        p("s_waitcnt vmcnt(0)")
        p("s_lshl_b32 s89, s2, 3"); p("s_add_u32 s89, s89, s24")
        p(f"s_add_u32 s89, s89, {(1<<19)//64}")
        stamp_flush(p, 6, cfg, "s89")

def kd(name, vgpr, accum, sgpr=102):
    return f""".amdhsa_kernel {name}
  .amdhsa_next_free_vgpr {vgpr}
  .amdhsa_next_free_sgpr {sgpr}
  .amdhsa_accum_offset {accum}
  .amdhsa_group_segment_fixed_size 0
  .amdhsa_kernarg_size 80
  .amdhsa_user_sgpr_count 2
  .amdhsa_user_sgpr_kernarg_segment_ptr 1
  .amdhsa_system_sgpr_workgroup_id_x 1
.end_amdhsa_kernel
"""

def build_k1_only(cfg):
    p = Prog()
    emit_k1(p, cfg)
    p.label("L_end")
    p("s_endpgm")
    body = p.text(verbose=True)
    hdr = f"""; @launch kernel=k1_kernel grid=(256,1,1) block=(512,1,1) lds=147600
.amdgcn_target "amdgcn-amd-amdhsa--gfx950"
.text
.globl k1_kernel
.p2align 8
.type k1_kernel,@function
k1_kernel:
"""
    return hdr + body + '.section .rodata,"a"\n.p2align 6\n' + kd("k1_kernel", 256, 160)

HEAD_COMMENT = open("cdna_kernels/" + NAME + ".s.ref").read().split("; Override launch")[0] if __import__("os").path.exists("cdna_kernels/" + NAME + ".s.ref") else ""

def build_two(cfg):
    p1 = Prog(); emit_k1(p1, cfg); p1.label("L_end"); p1("s_endpgm")
    p2 = Prog(); emit_k2(p2, cfg); p2.label("L_end"); p2("s_endpgm")
    b1 = p1.text(verbose=True)
    b2 = p2.text(verbose=True).replace("L_end", "L_end2")
    hdr = HEAD_COMMENT + f"""; @launch kernel=gm_k1_kernel grid=(256,1,1) block=(512,1,1) lds=147600
; @launch kernel=gm_k2_kernel grid=(256,1,1) block=(256,1,1) lds=67584
.amdgcn_target "amdgcn-amd-amdhsa--gfx950"
.text
.globl gm_k1_kernel
.p2align 8
.type gm_k1_kernel,@function
gm_k1_kernel:
"""
    mid = """.globl gm_k2_kernel
.p2align 8
.type gm_k2_kernel,@function
gm_k2_kernel:
"""
    return hdr + b1 + mid + b2 + '.section .rodata,"a"\n.p2align 6\n' + kd("gm_k1_kernel", 256, 160) + ".p2align 6\n" + kd("gm_k2_kernel", 256, 160)

if __name__ == "__main__":
    cfg = Cfg()
    cfg.stamps = "stamps" in sys.argv
    if "k1" in sys.argv:
        open("k1.s", "w").write(build_k1_only(cfg))
    else:
        open("two.s", "w").write(build_two(cfg))
```

```python
import sys, os
from asmlib import *

NAME = "gated_mix__linear_attn_block__dense_activation_relu__prompt"
KNAME = NAME + "_kernel"

AP_ST = 68 * 1024
WS_AP = 0
WS_KVP = 13 << 20
WS_KVS = 14 << 20
WS_F = 15 << 20
F_H = WS_F
F_KV = WS_F + 16384
F_O = WS_F + 32768
F_X = WS_F + 65536
F_KS = WS_F + 73728
WS_TS = 16 << 20
WS_SIZE = 17 << 20
OOB = 0x80000000

STG = 51200
SEG = 10256
QOFF = 40960
WBASE = [51200, 71680, 102400, 122880, 0, 20480]
KVRED = 92160
BQL = 143360
KVT = 153600
GW = 159744
GL = 161024
SY = 161280
LDS_BYTES = 161536
W_TAG, W_KVR, W_HR, W_OR, W_PUB1, W_BQ, W_PUB2, W_KVF, W_LOC, W_P01, W_P23, W_P45 = [4*i for i in range(12)]
W_CB = 64
LOG2E = 0x3fb8aa3b
EPS6 = 0x358637bd
POLL_MAX = 1 << 13
PD = 6

class Cfg:
    stamps = False
    dbg2 = False
    rot = True
    local = True
    t12only = False
    map81 = False
    spoll = True

class Gen:
    def __init__(self, cfg):
        self.p = Prog(); self.cfg = cfg; self.ncb = 0
    def stamp(self, idx):
        if self.cfg.stamps and (idx == 0 or not self.cfg.dbg2): self.p(f"s_memtime s[{80+2*idx}:{81+2*idx}]")
    def stamp2(self, idx):
        if self.cfg.stamps and self.cfg.dbg2: self.p(f"s_memtime s[{80+2*idx}:{81+2*idx}]")
    def stamp_flush(self, n):
        if not self.cfg.stamps: return
        p = self.p
        p("s_waitcnt lgkmcnt(0)")
        p("s_memrealtime s[78:79]")
        p("s_lshl_b32 s100, s2, 3"); p("s_add_u32 s100, s100, s24")
        p("s_lshl_b32 s100, s100, 7")
        p(f"s_add_u32 s100, s100, {WS_TS}")
        p("v_mov_b32 v4, s100")
        p("s_waitcnt lgkmcnt(0)")
        p("s_mov_b64 exec, 1")
        regs = [80 + 2*i for i in range(n)]
        for i, r in enumerate(regs + [76, 78]):
            off = 8*i if i < n else (112 + 8*(i-n))
            p(f"v_mov_b32 v2, s{r}"); p(f"v_mov_b32 v3, s{r+1}")
            p(f"buffer_store_dwordx2 v[2:3], v4, s[40:43], 0 offen offset:{off}")
            p("s_nop 1")
        p("s_mov_b64 exec, -1")
    def lds_signal(self, word, vtmp=(2, 3)):
        p = self.p; a, b = vtmp
        p(f"v_mov_b32 v{a}, {SY}"); p(f"v_mov_b32 v{b}, 1")
        p("s_mov_b64 exec, 1")
        p(f"ds_add_u32 v{a}, v{b} offset:{word}")
        p("s_mov_b64 exec, -1")
    def lds_wait(self, word, target, vtmp=(2, 3), sleep=False):
        p = self.p; a, b = vtmp
        L = p.newlabel("L_lw"); D = p.newlabel("L_lwd")
        p(f"v_mov_b32 v{a}, {SY}")
        p(f"s_mov_b32 s47, {POLL_MAX*32}")
        p.label(L)
        p(f"ds_read_b32 v{b}, v{a} offset:{word}")
        p("s_waitcnt lgkmcnt(0)")
        p(f"v_readfirstlane_b32 s46, v{b}")
        p(f"s_cmp_ge_u32 s46, {target}")
        p(f"s_cbranch_scc1 {D}")
        if sleep: p("s_sleep 1")
        p("s_sub_u32 s47, s47, 1")
        p("s_cmp_lg_u32 s47, 0")
        p(f"s_cbranch_scc1 {L}")
        p.label(D)
    def cbar(self, vtmp=(2, 3)):
        w = W_CB + 4 * self.ncb; self.ncb += 1
        assert w < 256
        self.p("s_waitcnt lgkmcnt(0)")
        self.lds_signal(w, vtmp)
        self.lds_wait(w, 4, vtmp)
    def poll_flags(self, addr_s, nwords, vt=(2, 3)):
        p = self.p; a, b = vt
        L = p.newlabel("L_pf"); D = p.newlabel("L_pfd")
        if self.cfg.spoll:
            p(f"s_add_u32 s4, s22, {addr_s}"); p("s_addc_u32 s5, s23, 0")
            p(f"s_mov_b32 s47, {POLL_MAX}")
            p.label(L)
            p("s_mov_b32 s46, 0")
            for base in range(0, nwords, 8):
                for i in range(8): p(f"s_load_dword s{8+i}, s[4:5], {(base+i)*128} glc")
                p("s_waitcnt lgkmcnt(0)")
                for i in range(8):
                    p(f"s_xor_b32 s{8+i}, s{8+i}, s30"); p(f"s_or_b32 s46, s46, s{8+i}")
            p("s_cmp_eq_u32 s46, 0")
            p(f"s_cbranch_scc1 {D}")
            p("s_sleep 1")
            p("s_sub_u32 s47, s47, 1")
            p("s_cmp_lg_u32 s47, 0")
            p(f"s_cbranch_scc1 {L}")
            p.label(D)
            return
        p(f"v_min_u32 v{a}, {nwords-1}, v1")
        p(f"v_lshlrev_b32 v{a}, 7, v{a}")
        p(f"v_add_u32 v{a}, {addr_s}, v{a}")
        p(f"s_mov_b32 s47, {POLL_MAX}")
        p.label(L)
        p(f"buffer_load_dword v{b}, v{a}, s[40:43], 0 offen sc1")
        p("s_waitcnt vmcnt(0)")
        p(f"v_cmp_eq_u32 vcc, s30, v{b}")
        p("s_nop 1")
        p("s_cmp_eq_u64 vcc, -1")
        p(f"s_cbranch_scc1 {D}")
        p("s_sleep 2")
        p("s_sub_u32 s47, s47, 1")
        p("s_cmp_lg_u32 s47, 0")
        p(f"s_cbranch_scc1 {L}")
        p.label(D)
    def dual(self, emit):
        p = self.p
        if not self.cfg.local:
            emit(" sc1"); return
        A, B = p.newlabel("L_du"), p.newlabel("L_du")
        p("s_cmp_eq_u32 s72, 1"); p(f"s_cbranch_scc1 {A}")
        emit(" sc1")
        p(f"s_branch {B}")
        p.label(A)
        emit("")
        p.label(B)
    def flag_store(self, addr_s, vt=(2, 3), dual=False):
        p = self.p; a, b = vt
        p(f"v_mov_b32 v{a}, {addr_s}"); p(f"v_mov_b32 v{b}, s30")
        p("s_mov_b64 exec, 1")
        if dual: self.dual(lambda sc: p(f"buffer_store_dword v{b}, v{a}, s[40:43], 0 offen{sc}"))
        else: p(f"buffer_store_dword v{b}, v{a}, s[40:43], 0 offen sc1")
        p("s_mov_b64 exec, -1")
    def publish_last(self, word, target, addr_s, vt=(2, 3), dual=False):
        p = self.p; a, b = vt
        p(f"v_mov_b32 v{a}, {SY}"); p(f"v_mov_b32 v{b}, 1")
        p("s_mov_b64 exec, 1")
        p(f"ds_add_rtn_u32 v{b}, v{a}, v{b} offset:{word}")
        p("s_mov_b64 exec, -1")
        p("s_waitcnt lgkmcnt(0)")
        p(f"v_readfirstlane_b32 s46, v{b}")
        p(f"s_cmp_eq_u32 s46, {target-1}")
        p(f"s_cselect_b32 s47, {addr_s}, {OOB}")
        self.flag_store("s47", vt, dual)
    def read_loc(self, vt=(2, 3)):
        p = self.p; a, b = vt
        p(f"v_mov_b32 v{a}, {SY}"); p(f"ds_read_b32 v{b}, v{a} offset:{W_LOC}"); p("s_waitcnt lgkmcnt(0)")
        p(f"v_readfirstlane_b32 s72, v{b}")
    def rot10(self, dst):
        p = self.p
        if not self.cfg.rot:
            p(f"s_mov_b32 {dst}, 0"); return
        if self.cfg.map81:
            p(f"""
            s_and_b32 s45, s26, 1
            s_mul_i32 s45, s45, 5
            s_add_u32 {dst}, s27, s45
            s_add_u32 {dst}, {dst}, s73
            s_cmp_ge_u32 {dst}, 10
            s_cselect_b32 s45, 10, 0
            s_sub_u32 {dst}, {dst}, s45
            s_cmp_ge_u32 {dst}, 10
            s_cselect_b32 s45, 10, 0
            s_sub_u32 {dst}, {dst}, s45
            """)
        else:
            p(f"""
            s_and_b32 s45, s27, 3
            s_lshl_b32 s45, s45, 1
            s_add_u32 {dst}, s45, s28
            s_and_b32 s45, s26, 3
            s_mul_i32 s45, s45, 3
            s_add_u32 {dst}, {dst}, s45
            s_cmp_ge_u32 {dst}, 10
            s_cselect_b32 s45, 10, 0
            s_sub_u32 {dst}, {dst}, s45
            """)
    def wpattern(self, dst, kind, stride, tmp=(2, 3, 4, 5, 6), out=None):
        L = []
        e = L.append
        a, b, c, d, f = tmp
        for u in range(5):
            e(f"v_add_u32 v{a}, {64*u}, v1")
            e(f"v_mul_u32_u24 v{b}, 6554, v{a}")
            e(f"v_lshrrev_b32 v{b}, 16, v{b}")
            e(f"v_mul_u32_u24 v{c}, 10, v{b}")
            e(f"v_sub_u32 v{c}, v{a}, v{c}")
            if kind == 'B':
                e(f"v_lshrrev_b32 v{d}, 4, v{b}"); e(f"v_mul_u32_u24 v{d}, 20, v{d}")
                e(f"v_and_b32 v{b}, 15, v{b}"); e(f"v_add_u32 v{b}, v{b}, v{d}")
            elif kind == 'C':
                e(f"v_lshrrev_b32 v{d}, 4, v{b}"); e(f"v_lshlrev_b32 v{d}, 2, v{d}")
                e(f"v_bfe_u32 v{f}, v{b}, 2, 2"); e(f"v_add_u32 v{f}, 2, v{f}"); e(f"v_and_b32 v{f}, 3, v{f}")
                e(f"v_add_u32 v{d}, v{d}, v{f}"); e(f"v_mul_u32_u24 v{d}, 20, v{d}")
                e(f"v_and_b32 v{b}, 3, v{b}"); e(f"v_add3_u32 v{b}, v{b}, v{d}, 16")
            e(f"v_mul_u32_u24 v{b}, {stride}, v{b}")
            e(f"v_lshl_add_u32 v{b}, v{c}, 4, v{b}")
            if 0 < u < 4: e(f"v_subrev_u32 v{dst+u}, {1024*u}, v{b}")
            else: e(f"v_mov_b32 v{dst+u}, v{b}")
        if out is not None: out += L
        else:
            for x in L: self.p(x)
    def wdma(self, pat, srd, soff, m0_s):
        p = self.p
        p(f"s_mov_b32 m0, {m0_s}")
        for u in range(4):
            p(f"buffer_load_dwordx4 v{pat+u}, {srd}, {soff} offen offset:{1024*u} lds")
        p(f"s_add_u32 m0, {m0_s}, 4096")
        p(f"buffer_load_dwordx4 v{pat+4}, {srd}, {soff} offen lds")
    def t4_rot(self, rb="s56", ro="s57"):
        p = self.p
        if self.cfg.rot and not self.cfg.map81:
            p("s_and_b32 s44, s29, 7"); p("s_and_b32 s45, s27, 3")
            p("s_mul_i32 s46, s45, 3"); p(f"s_add_u32 {rb}, s44, s46")
            p(f"s_cmp_ge_u32 {rb}, 12"); p("s_cselect_b32 s46, 12, 0"); p(f"s_sub_u32 {rb}, {rb}, s46")
            p(f"s_add_u32 {ro}, s44, s45")
            p(f"s_cmp_ge_u32 {ro}, 10"); p("s_cselect_b32 s46, 10, 0"); p(f"s_sub_u32 {ro}, {ro}, s46")
            p(f"s_cmp_ge_u32 {ro}, 5"); p("s_cselect_b32 s46, 5, 0"); p(f"s_sub_u32 {ro}, {ro}, s46")
        elif self.cfg.rot:
            p("s_and_b32 s44, s29, 3"); p("s_mul_i32 s45, s44, 3"); p(f"s_add_u32 {rb}, s45, s73")
            p(f"s_cmp_ge_u32 {rb}, 12"); p("s_cselect_b32 s46, 12, 0"); p(f"s_sub_u32 {rb}, {rb}, s46")
            p(f"s_add_u32 {ro}, s44, s73")
            p(f"s_cmp_ge_u32 {ro}, 10"); p("s_cselect_b32 s46, 10, 0"); p(f"s_sub_u32 {ro}, {ro}, s46")
            p(f"s_cmp_ge_u32 {ro}, 5"); p("s_cselect_b32 s46, 5, 0"); p(f"s_sub_u32 {ro}, {ro}, s46")
        else:
            p(f"s_mov_b32 {rb}, 0"); p(f"s_mov_b32 {ro}, 0")

    def emit(self):
        p = self.p; cfg = self.cfg
        if cfg.stamps: p("s_memrealtime s[76:77]")
        if cfg.map81:
            MAP = """s_and_b32 s73, s2, 7
        s_lshr_b32 s31, s2, 3
        s_and_b32 s44, s31, 1
        s_lshl_b32 s26, s73, 1
        s_add_u32 s26, s26, s44
        s_bfe_u32 s28, s31, 0x10001
        s_lshr_b32 s27, s31, 2
        s_lshl_b32 s29, s26, 1
        s_add_u32 s29, s29, s28"""
        else:
            MAP = """s_and_b32 s44, s2, 7
        s_lshr_b32 s31, s2, 3
        s_lshr_b32 s73, s44, 1
        s_and_b32 s3, s44, 1
        s_and_b32 s28, s31, 1
        s_lshr_b32 s45, s31, 1
        s_and_b32 s26, s45, 3
        s_lshl_b32 s46, s73, 2
        s_add_u32 s26, s26, s46
        s_lshr_b32 s27, s45, 2
        s_lshl_b32 s46, s3, 2
        s_add_u32 s27, s27, s46
        s_lshl_b32 s29, s26, 1
        s_add_u32 s29, s29, s28"""
        p(f"""
        s_cmp_ge_u32 s2, 256
        s_cbranch_scc1 L_end
        s_load_dwordx16 s[4:19], s[0:1], 0
        s_load_dwordx4 s[20:23], s[0:1], 64
        s_getpc_b64 s[74:75]
        v_and_b32 v1, 63, v0
        v_lshrrev_b32 v2, 6, v0
        v_readfirstlane_b32 s24, v2
        {MAP}
        s_and_b32 s25, s24, 3
        s_mov_b32 s72, 0
        s_waitcnt lgkmcnt(0)
        """)
        self.stamp(0)
        p(f"""
        s_mov_b32 s40, s22
        s_mov_b32 s41, s23
        s_mov_b32 s42, {WS_SIZE}
        s_mov_b32 s43, 0x20000
        s_cmp_ge_u32 s24, 4
        s_cbranch_scc0 L_compute
        s_cmp_eq_u32 s28, 0
        s_cbranch_scc0 L_helper_h
        """)
        self.helper_t12('kv')
        p("s_branch L_hp_post")
        p.label("L_helper_h")
        self.helper_t12('h')
        p.label("L_hp_post")
        self.helper_post()
        p.label("L_compute")
        self.compute_path()
        p.label("L_end")
        p("s_endpgm")

    def helper_t12(self, kind):
        p = self.p; cfg = self.cfg
        VO = 8; SD = 48
        NW = 5 if kind == 'kv' else 6
        n = 4 + NW + 3
        wstep = 245760 if kind == 'kv' else 196608
        p(f"""
        s_mul_i32 s44, s26, 163840
        s_add_u32 s32, s4, s44
        s_addc_u32 s33, s5, 0
        s_sub_u32 s34, 2621440, s44
        s_mov_b32 s35, 0x20000
        v_lshrrev_b32 v2, 3, v1
        v_and_b32 v3, 7, v1
        v_xor_b32 v4, v3, v2
        v_lshlrev_b32 v4, 4, v4
        s_lshl_b32 s44, s25, 5
        v_add_u32 v5, s44, v2
        v_mul_u32_u24 v5, 1280, v5
        v_add_u32 v8, v5, v4
        v_add_u32 v9, 10240, v8
        v_add_u32 v10, 20480, v8
        v_add_u32 v11, 30720, v8
        s_lshl_b32 s48, s25, 12
        s_add_u32 s49, s48, 1024
        s_add_u32 s50, s48, 2048
        s_add_u32 s51, s48, 3072
        s_mov_b32 s60, 0
        """)
        self.rot10("s59")
        p("s_lshl_b32 s61, s59, 7")
        p(f"s_mul_i32 s62, s59, {wstep}")
        p("s_mul_i32 s66, s59, 245760")
        for b in range(4):
            p(f"s_mov_b32 m0, s{SD+b}")
            p(f"buffer_load_dwordx4 v{VO+b}, s[32:35], s61 offen lds")
        if kind == 'kv':
            p("s_mul_i32 s44, s27, 160"); p("s_add_u32 s44, s44, 1280")
            p("s_add_u32 s36, s6, s44"); p("s_addc_u32 s37, s7, 0"); p("s_sub_u32 s38, 2457600, s44")
        else:
            p("s_mul_i32 s44, s27, 384")
            p("s_add_u32 s36, s12, s44"); p("s_addc_u32 s37, s13, 0"); p("s_sub_u32 s38, 1966080, s44")
        p("s_mov_b32 s39, 0x20000")
        def seg_pattern(dst):
            p(f"""
            v_mul_u32_u24 v3, 6554, v2
            v_lshrrev_b32 v3, 16, v3
            v_mul_u32_u24 v4, 10, v3
            v_sub_u32 v4, v2, v4
            v_and_b32 v5, 0x33, v3
            v_and_b32 v6, 4, v3
            v_lshl_or_b32 v5, v6, 1, v5
            v_and_b32 v6, 8, v3
            v_lshrrev_b32 v6, 1, v6
            v_or_b32 v5, v5, v6
            v_mul_u32_u24 v5, 3840, v5
            v_lshl_add_u32 v{dst}, v4, 4, v5
            """)
        if kind == 'kv':
            for a in range(5):
                p(f"""
                s_add_u32 s44, s25, {4*a}
                s_cmp_ge_u32 s44, 10
                s_cselect_b32 s45, 1, 0
                s_mul_i32 s46, s45, 10
                s_sub_u32 s46, s44, s46
                s_lshl_b32 s47, s46, 6
                v_add_u32 v2, s47, v1
                """)
                seg_pattern(VO+4+a)
                p(f"""
                s_mul_i32 s47, s45, 1280
                v_add_u32 v{VO+4+a}, s47, v{VO+4+a}
                s_mul_i32 s47, s45, {SEG}
                s_lshl_b32 s46, s46, 10
                s_add_u32 s47, s47, s46
                s_add_u32 s{SD+4+a}, s47, 16384
                s_mov_b32 m0, s{SD+4+a}
                buffer_load_dwordx4 v{VO+4+a}, s[36:39], s62 offen lds
                """)
        else:
            for a in range(6):
                pat = a % 3
                p(f"""
                v_add_u32 v2, {64*pat}, v1
                v_mul_u32_u24 v3, 2731, v2
                v_lshrrev_b32 v3, 16, v3
                v_mul_u32_u24 v4, 24, v3
                v_sub_u32 v4, v2, v4
                v_and_b32 v5, 6, v3
                v_xor_b32 v4, v4, v5
                v_lshrrev_b32 v5, 2, v3
                v_lshlrev_b32 v5, 3, v5
                v_and_b32 v6, 3, v3
                v_add_u32 v5, v5, v6
                s_lshl_b32 s44, s25, 4
                s_add_u32 s44, s44, {4*(a//3)}
                v_add_u32 v5, s44, v5
                v_mul_u32_u24 v5, 3072, v5
                v_lshl_add_u32 v{VO+4+a}, v4, 4, v5
                s_mul_i32 s44, s25, 6144
                s_add_u32 s{SD+4+a}, s44, {16384 + a*1024}
                s_mov_b32 m0, s{SD+4+a}
                buffer_load_dwordx4 v{VO+4+a}, s[36:39], s62 offen lds
                """)
        p("s_mul_i32 s44, s27, 160")
        p("s_add_u32 s68, s6, s44"); p("s_addc_u32 s69, s7, 0"); p("s_sub_u32 s70, 2457600, s44"); p("s_mov_b32 s71, 0x20000")
        p("s_mul_i32 s44, s25, 160"); p("s_mul_i32 s67, s25, 2560"); p(f"s_add_u32 s67, s67, {QOFF}")
        for a in range(3):
            p(f"v_add_u32 v2, s44, v1")
            if a: p(f"v_add_u32 v2, {64*a}, v2")
            p("v_min_u32 v2, 639, v2")
            seg_pattern(20 + a)
        def issue_q(buf):
            for a in range(3):
                p(f"s_add_u32 m0, {buf}, s67") if a == 0 else p(f"s_add_u32 m0, m0, 1024")
                if a == 2: p("s_mov_b32 exec_hi, 0")
                p(f"buffer_load_dwordx4 v{20+a}, s[68:71], s66 offen lds")
                if a == 2: p("s_mov_b64 exec, -1")
        issue_q("s60")
        def advance():
            p(f"s_add_u32 s60, s60, {STG}")
            p(f"s_cmp_eq_u32 s60, {3*STG}")
            p("s_cselect_b32 s60, 0, s60")
            p("s_add_u32 s61, s61, 128")
            p(f"s_add_u32 s62, s62, {wstep}")
            p("s_add_u32 s66, s66, 245760")
            p("s_add_u32 s59, s59, 1")
            p("s_cmp_eq_u32 s59, 10")
            p("s_cselect_b32 s59, 0, s59")
            p("s_cselect_b32 s61, 0, s61")
            p("s_cselect_b32 s62, 0, s62")
            p("s_cselect_b32 s66, 0, s66")
        def issue():
            for i in range(4 + NW):
                p(f"s_add_u32 m0, s60, s{SD+i}")
                srd, so = ("s[32:35]", "s61") if i < 4 else ("s[36:39]", "s62")
                p(f"buffer_load_dwordx4 v{VO+i}, {srd}, {so} offen lds")
            issue_q("s60")
            advance()
        p("s_mov_b32 s96, s16"); p("s_mov_b32 s97, s17"); p("s_movk_i32 s98, 1280"); p("s_mov_b32 s99, 0x20000")
        p("v_lshlrev_b32 v2, 4, v1")
        p(f"s_mov_b32 m0, {GW}")
        p("buffer_load_dwordx4 v2, s[96:99], 0 offen lds")
        p("s_mov_b32 exec_lo, 0xffff"); p("s_mov_b32 exec_hi, 0")
        p("buffer_load_dwordx4 v2, s[96:99], 0 offen offset:1024 lds")
        p("s_mov_b64 exec, -1")
        advance()
        issue()
        self.stamp(1)
        q = [("s0", n), ("gw", 2), ("s1", n)]
        def push(tag, k): q.append((tag, k))
        def wait_for(tag):
            tags = [t for t, _ in q]
            if tag not in tags: return
            idx = tags.index(tag)
            p(f"s_waitcnt vmcnt({sum(k for _, k in q[idx+1:])})")
            del q[:idx+1]
        wait_for("gw")
        self.stamp(2)
        p("s_barrier")
        p(f"v_mov_b32 v2, {SY}")
        p(f"ds_read_b32 v3, v2 offset:{W_TAG}")
        p("s_waitcnt lgkmcnt(0)")
        p("v_readfirstlane_b32 s30, v3")
        issue(); push("s2", n)
        for i in range(10):
            if i <= 8: wait_for(f"s{i+1}")
            p("s_barrier")
            if i == 0: self.stamp(3)
            if i <= 6: issue(); push(f"s{i+3}", n)
            if i == 2:
                self.wpattern(26, 'lin', 1280)
                p("s_mul_i32 s44, s27, 160")
                p("s_add_u32 s96, s14, s44"); p("s_addc_u32 s97, s15, 0"); p("s_sub_u32 s98, 1966080, s44"); p("s_mov_b32 s99, 0x20000")
                self.t4_rot("s0", "s1")
                p("s_mul_i32 s64, s25, 12")
            if i == 5:
                p("v_min_u32 v2, 15, v1"); p("v_lshlrev_b32 v2, 2, v2")
                p("s_lshl_b32 s44, s26, 7"); p(f"s_add_u32 s44, s44, {F_X}")
                p("buffer_load_dword v31, v2, s[40:43], s44 offen sc1")
                push("xc", 1)
            if i == 7:
                wait_for("xc")
                p("s_getreg_b32 s45, hwreg(HW_REG_XCC_ID)"); p("s_and_b32 s45, s45, 7")
                p("s_and_b32 s44, s30, 0xfffffff0"); p("s_or_b32 s44, s44, 8"); p("s_or_b32 s44, s44, s45")
                p("v_cmp_eq_u32 vcc, s44, v31")
                p("s_nop 1")
                p("s_cmp_eq_u64 vcc, -1")
                p("s_cselect_b32 s72, 1, 2")
                p(f"v_mov_b32 v2, {SY}"); p("v_mov_b32 v3, s72")
                p(f"ds_write_b32 v2, v3 offset:{W_LOC}")
                p("s_waitcnt lgkmcnt(0)")
            if i in (7, 8) and not cfg.t12only:
                for j in (2*(i-7), 2*(i-7)+1):
                    self.h_wstep(j); push(f"w{j}", 5)
        if not cfg.t12only:
            for j in (4, 5):
                self.h_wstep(j); push(f"w{j}", 5)
            wait_for("w1"); self.lds_signal(W_P01)
            wait_for("w3"); self.lds_signal(W_P23)
            wait_for("w5"); self.lds_signal(W_P45)

    def h_wstep(self, j):
        p = self.p
        p("s_add_u32 s44, s64, s0")
        p("s_add_u32 s0, s0, 1"); p("s_cmp_eq_u32 s0, 12"); p("s_cselect_b32 s0, 0, s0")
        p("s_mul_i32 s44, s44, 40960")
        p("s_mul_i32 s65, s25, 5120"); p(f"s_add_u32 s65, s65, {WBASE[j]}")
        self.wdma(26, "s[96:99]", "s44", "s65")

    def helper_post(self):
        p = self.p
        if self.cfg.t12only:
            p("s_waitcnt vmcnt(0)"); self.stamp_flush(8); p("s_branch L_end"); return
        self.stamp(4)
        p("s_lshl_b32 s50, s26, 3"); p("s_lshr_b32 s44, s25, 1"); p("s_lshl_b32 s44, s44, 2"); p("s_add_u32 s50, s50, s44")
        p("s_lshl_b32 s44, s28, 1"); p("s_add_u32 s50, s50, s44"); p("s_and_b32 s44, s25, 1"); p("s_add_u32 s50, s50, s44")
        N0, N1x = p.newlabel("L_n0"), p.newlabel("L_n1x")
        p("s_cmp_eq_u32 s25, 0"); p(f"s_cbranch_scc0 {N0}")
        p(f"s_lshl_b32 s58, s26, 10"); p(f"s_add_u32 s58, s58, {F_H}")
        self.poll_flags("s58", 8)
        self.lds_signal(W_HR)
        self.stamp(5)
        p.label(N0)
        p("s_cmp_eq_u32 s25, 1"); p(f"s_cbranch_scc0 {N1x}")
        p(f"s_lshl_b32 s58, s27, 11"); p(f"s_add_u32 s58, s58, {F_KV}")
        self.poll_flags("s58", 16)
        p("v_lshrrev_b32 v2, 4, v1"); p("v_lshlrev_b32 v2, 16, v2")
        p("v_and_b32 v3, 15, v1"); p("v_lshl_add_u32 v2, v3, 4, v2")
        p("s_lshl_b32 s44, s27, 13"); p("s_lshl_b32 s45, s29, 8"); p("s_add_u32 s44, s44, s45"); p(f"s_add_u32 s48, s44, {WS_KVP}")
        for m in range(4):
            p(f"s_add_u32 s45, s48, {m*262144}")
            p(f"buffer_load_dwordx4 v[{32+4*m}:{35+4*m}], v2, s[40:43], s45 offen sc1")
        p("s_waitcnt vmcnt(0)")
        for m in range(1, 4):
            p(f"v_pk_add_f32 v[32:33], v[32:33], v[{32+4*m}:{33+4*m}]")
            p(f"v_pk_add_f32 v[34:35], v[34:35], v[{34+4*m}:{35+4*m}]")
        for sw in ("v_permlane32_swap_b32", "v_permlane16_swap_b32"):
            for e in range(4): p(f"v_mov_b32 v{36+e}, v{32+e}")
            for e in range(4): p(f"{sw} v{32+e}, v{36+e}")
            for e in range(4): p(f"v_add_f32 v{32+e}, v{32+e}, v{36+e}")
        p(f"s_add_u32 s44, s44, {WS_KVS}")
        p("v_lshlrev_b32 v3, 4, v3"); p("v_add_u32 v3, s44, v3")
        p("s_mov_b32 exec_lo, 0xffff"); p("s_mov_b32 exec_hi, 0")
        p("buffer_store_dwordx4 v[32:35], v3, s[40:43], 0 offen sc1")
        p("s_mov_b64 exec, -1")
        p("s_waitcnt vmcnt(0)")
        p("s_lshl_b32 s44, s27, 12"); p("s_lshl_b32 s45, s29, 7"); p("s_add_u32 s44, s44, s45"); p(f"s_add_u32 s58, s44, {F_KS}")
        self.flag_store("s58")
        p("s_lshl_b32 s58, s27, 12"); p(f"s_add_u32 s58, s58, {F_KS}")
        self.poll_flags("s58", 32)
        self.lds_signal(W_KVF)
        p.label(N1x)
        self.lds_wait(W_KVF, 1, sleep=True)
        p("v_lshrrev_b32 v2, 4, v1"); p("v_and_b32 v3, 15, v1")
        p(f"v_mov_b32 v7, {OOB}")
        p("v_add_u32 v4, 2, v2"); p("v_and_b32 v4, 3, v4"); p("v_lshrrev_b32 v5, 2, v3")
        p("v_cmp_eq_u32 s[56:57], v4, v5")
        VT = 8
        LA, LB, LE = [p.newlabel("L_kt") for _ in range(3)]
        p("v_lshlrev_b32 v4, 4, v1"); p("v_lshrrev_b32 v5, 1, v2"); p("v_lshlrev_b32 v6, 8, v2")
        p("s_cmp_ge_u32 s25, 2"); p(f"s_cbranch_scc1 {LA}")
        p("s_mul_i32 s44, s25, 3072")
        for i in range(3):
            p(f"v_add_u32 v{VT+i}, s44, v4")
            if i: p(f"v_add_u32 v{VT+i}, {1024*i}, v{VT+i}")
        p(f"s_branch {LE}")
        p.label(LA)
        p("s_cmp_eq_u32 s25, 2"); p(f"s_cbranch_scc0 {LB}")
        p("v_lshlrev_b32 v11, 10, v5"); p("v_add3_u32 v11, v11, v4, 0"); p("v_add_u32 v11, 6144, v11")
        p(f"v_cndmask_b32 v{VT}, v7, v11, s[56:57]")
        p(f"v_add_u32 v{VT+1}, {6144}, v6")
        p(f"v_add_u32 v{VT+2}, {6144+16}, v6")
        p(f"s_branch {LE}")
        p.label(LB)
        p(f"v_add_u32 v{VT}, {6144+1024+128}, v6")
        p(f"v_add_u32 v{VT+1}, {6144+1024+128+16}, v6")
        p(f"v_mul_u32_u24 v11, {1024+128}, v5")
        p(f"v_add3_u32 v{VT+2}, v11, v6, 0"); p(f"v_add_u32 v{VT+2}, {6144+64}, v{VT+2}")
        p.label(LE)
        p(f"s_lshl_b32 s48, s27, 13"); p(f"s_add_u32 s48, s48, {WS_KVS}")
        SUM = 16
        for i in range(3):
            p(f"buffer_load_dwordx4 v[{SUM+4*i}:{SUM+4*i+3}], v{VT+i}, s[40:43], s48 offen sc1")
        p("s_waitcnt vmcnt(0)")
        p("s_mul_i32 s44, s25, 1536"); p(f"s_add_u32 s44, s44, {KVT}")
        p("v_lshlrev_b32 v4, 3, v1"); p("v_add_u32 v5, s44, v4")
        for i in range(3):
            p(f"v_cvt_pk_bf16_f32 v{SUM+4*i}, v{SUM+4*i}, v{SUM+4*i+1}")
            p(f"v_cvt_pk_bf16_f32 v{SUM+4*i+1}, v{SUM+4*i+2}, v{SUM+4*i+3}")
            p(f"ds_write_b64 v5, v[{SUM+4*i}:{SUM+4*i+1}] offset:{i*512}")
        p("s_waitcnt lgkmcnt(0)")
        self.lds_signal(W_KVR)
        self.lds_wait(W_KVR, 4, sleep=True)
        self.stamp(6)
        TT = 68
        p("v_lshlrev_b32 v5, 3, v1"); p(f"v_add_u32 v5, {KVT}, v5")
        for tau in range(12): p(f"ds_read_b64 v[{TT+2*tau}:{TT+2*tau+1}], v5 offset:{tau*512}")
        p("v_lshrrev_b32 v2, 4, v1"); p("v_and_b32 v3, 15, v1"); p("v_lshrrev_b32 v5, 2, v3")
        for h in range(4):
            p(f"v_cmp_eq_u32 s[{56+2*h}:{57+2*h}], {h}, v2")
            p(f"v_cmp_eq_u32 s[{64+2*h}:{65+2*h}], {(h+2)&3}, v5")
        p("s_waitcnt lgkmcnt(0)")
        KVt = lambda h: TT + 2*h
        EXL, E0H, XXt = TT + 8, TT + 10, TT + 12
        ZL = lambda h: TT + 14 + 2*h
        ZH = TT + 22
        FR = 96
        for h in range(4):
            e0 = FR + 12*h; ex = e0 + 4; dn = e0 + 8
            mg, mr = f"s[{56+2*h}:{57+2*h}]", f"s[{64+2*h}:{65+2*h}]"
            p(f"v_mov_b32 v{e0}, v{KVt(h)}"); p(f"v_mov_b32 v{e0+1}, v{KVt(h)+1}")
            p(f"v_cndmask_b32 v{e0+2}, 0, v{E0H}, {mg}"); p(f"v_cndmask_b32 v{e0+3}, 0, v{E0H+1}, {mg}")
            p(f"v_cndmask_b32 v{ex}, 0, v{EXL}, {mr}"); p(f"v_cndmask_b32 v{ex+1}, 0, v{EXL+1}, {mr}")
            p(f"v_cndmask_b32 v{ex+2}, 0, v{XXt}, {mr}"); p(f"v_cndmask_b32 v{ex+3}, 0, v{XXt+1}, {mr}")
            p(f"v_mov_b32 v{dn}, v{ZL(h)}"); p(f"v_mov_b32 v{dn+1}, v{ZL(h)+1}")
            p(f"v_cndmask_b32 v{dn+2}, 0, v{ZH}, {mg}"); p(f"v_cndmask_b32 v{dn+3}, 0, v{ZH+1}, {mg}")
        self.lds_wait(W_BQ, 4, vtmp=(6, 7), sleep=True)
        BQ = 16
        p("s_mul_i32 s44, s25, 2560"); p(f"s_add_u32 s44, s44, {BQL}")
        p("v_lshlrev_b32 v4, 3, v1"); p("v_add_u32 v5, s44, v4")
        for h in range(4):
            p(f"ds_read_b64 v[{BQ+4*h}:{BQ+4*h+1}], v5 offset:{h*512}")
            p(f"ds_read_b64 v[{BQ+4*h+2}:{BQ+4*h+3}], v5 offset:2048")
        p("s_lshl_b32 s44, s25, 6"); p(f"s_add_u32 s44, s44, {GL}")
        p("v_lshlrev_b32 v6, 2, v3"); p("v_add_u32 v6, s44, v6")
        p("ds_read_b32 v12, v6")
        p("v_lshlrev_b32 v4, 4, v1")
        p("s_waitcnt lgkmcnt(0)")
        NUM = 32; DN = 48; EXO = 64
        bq = lambda h: vr(BQ + 4*h, 4)
        for h in range(4):
            e0 = FR + 12*h
            p(f"v_mfma_f32_16x16x32_bf16 {vr(NUM+4*h,4)}, {vr(e0,4)}, {bq(h)}, 0")
            p(f"v_mfma_f32_16x16x32_bf16 {vr(DN+4*h,4)}, {vr(e0+8,4)}, {bq(h)}, 0")
            c = "0" if h == 0 else vr(EXO, 4)
            p(f"v_mfma_f32_16x16x32_bf16 {vr(EXO,4)}, {vr(e0+4,4)}, {bq(h)}, {c}")
        p(f"s_mov_b32 s44, {EPS6}")
        RR = 144
        for h in range(4): p(f"v_add_f32 v{RR+h}, s44, v{DN+4*h}")
        for h in range(4): p(f"v_rcp_f32 v{RR+h}, v{RR+h}")
        for h in range(4): p(f"v_mul_f32 v{RR+h}, v12, v{RR+h}")
        p(f"v_cndmask_b32 v{RR+4}, v{RR}, v{RR+2}, s[56:57]")
        p(f"v_cndmask_b32 v{RR+4}, v{RR+4}, v{RR+3}, s[58:59]")
        p(f"v_cndmask_b32 v{RR+4}, v{RR+4}, v{RR+1}, s[62:63]")
        for h in range(4):
            for i in range(4): p(f"v_mul_f32 v{NUM+4*h+i}, v{NUM+4*h+i}, v{RR+h}")
        for i in range(4): p(f"v_mul_f32 v{EXO+i}, v{EXO+i}, v{RR+4}")
        OO = 68
        for h in range(4):
            p(f"v_cvt_pk_bf16_f32 v{OO+2*h}, v{NUM+4*h}, v{NUM+4*h+1}")
            p(f"v_cvt_pk_bf16_f32 v{OO+2*h+1}, v{NUM+4*h+2}, v{NUM+4*h+3}")
        p(f"v_cvt_pk_bf16_f32 v{OO+8}, v{EXO}, v{EXO+1}")
        p(f"v_cvt_pk_bf16_f32 v{OO+9}, v{EXO+2}, v{EXO+3}")
        p(f"""
        s_mul_i32 s44, s50, {AP_ST}
        s_add_u32 s44, s44, {WS_AP}
        s_lshl_b32 s45, s27, 11
        s_add_u32 s45, s45, s44
        s_add_u32 s45, s45, {48*1024}
        v_add_u32 v5, s45, v4
        s_lshr_b32 s45, s27, 1
        s_lshl_b32 s45, s45, 10
        s_and_b32 s46, s27, 1
        s_lshl_b32 s46, s46, 3
        s_add_u32 s45, s45, s46
        s_add_u32 s45, s45, s44
        s_add_u32 s45, s45, {64*1024}
        v_add_u32 v6, s45, v4
        """)
        def ost(sc):
            p(f"buffer_store_dwordx4 v[{OO}:{OO+3}], v5, s[40:43], 0 offen{sc}")
            p(f"buffer_store_dwordx4 v[{OO+4}:{OO+7}], v5, s[40:43], 0 offen offset:1024{sc}")
            p(f"buffer_store_dwordx2 v[{OO+8}:{OO+9}], v6, s[40:43], 0 offen{sc}")
        self.dual(ost)
        p("s_waitcnt vmcnt(0)")
        p("s_lshl_b32 s44, s29, 10"); p("s_lshl_b32 s45, s27, 7"); p("s_add_u32 s44, s44, s45"); p(f"s_add_u32 s58, s44, {F_O}")
        self.publish_last(W_PUB2, 4, "s58", dual=True)
        N1 = p.newlabel("L_n1")
        p("s_cmp_eq_u32 s25, 0"); p(f"s_cbranch_scc0 {N1}")
        p(f"s_lshl_b32 s58, s29, 10"); p(f"s_add_u32 s58, s58, {F_O}")
        self.poll_flags("s58", 8)
        self.lds_signal(W_OR)
        self.stamp(7)
        p.label(N1)
        p("s_waitcnt lgkmcnt(0)")
        self.stamp_flush(8)
        p("s_branch L_end")

    def compute_path(self):
        p = self.p; cfg = self.cfg
        p("s_cmp_eq_u32 s25, 0"); p("s_cbranch_scc0 L_c_n0")
        p("v_lshlrev_b32 v3, 2, v1"); p(f"v_add_u32 v3, {SY}, v3"); p("v_mov_b32 v4, 0")
        p("s_mov_b64 exec, -2")
        p("ds_write_b32 v3, v4")
        p("s_mov_b64 exec, -1")
        p("s_cmp_eq_u32 s2, 0"); p("s_cbranch_scc0 L_c_n0")
        p("s_memrealtime s[44:45]")
        p("s_mov_b32 s96, s20"); p("s_mov_b32 s97, s21"); p("s_movk_i32 s98, 256"); p("s_mov_b32 s99, 0x20000")
        p("s_waitcnt lgkmcnt(0)")
        p("s_or_b32 s44, s44, 1")
        p("v_mov_b32 v3, s44"); p("v_mov_b32 v4, 0")
        p("s_mov_b64 exec, 1")
        p("buffer_store_dword v3, v4, s[96:99], 0 offen sc1")
        p("s_mov_b64 exec, -1")
        p.label("L_c_n0")
        p("s_cmp_eq_u32 s25, 3"); p("s_cbranch_scc0 L_c_n3")
        p("s_mov_b64 exec, 0xff")
        p("s_lshl_b32 s44, s31, 10")
        p("v_lshlrev_b32 v3, 7, v1"); p("v_add_u32 v3, s44, v3")
        p(f"v_min_u32 v3, CODE_BYTES_M, v3")
        p(f"global_load_dword v31, v3, s[74:75]")
        p("s_mov_b64 exec, -1")
        p("s_mov_b32 s96, s20"); p("s_mov_b32 s97, s21"); p("s_movk_i32 s98, 256"); p("s_mov_b32 s99, 0x20000")
        p("v_mov_b32 v4, 0")
        p(f"s_mov_b32 s47, {POLL_MAX*4}")
        p.label("L_c_tag")
        p("buffer_load_dword v3, v4, s[96:99], 0 offen sc1")
        p("s_waitcnt vmcnt(0)")
        p("v_readfirstlane_b32 s44, v3")
        p("s_cmp_lg_u32 s44, 0"); p("s_cbranch_scc1 L_c_tagd")
        p("s_sub_u32 s47, s47, 1"); p("s_cmp_lg_u32 s47, 0"); p("s_cbranch_scc1 L_c_tag")
        p.label("L_c_tagd")
        p(f"v_mov_b32 v2, {SY}")
        p(f"ds_write_b32 v2, v3 offset:{W_TAG}")
        p("s_getreg_b32 s45, hwreg(HW_REG_XCC_ID)")
        p("s_and_b32 s45, s45, 7")
        p("s_and_b32 s44, s44, 0xfffffff0"); p("s_or_b32 s44, s44, 8"); p("s_or_b32 s44, s44, s45")
        p("s_lshl_b32 s45, s26, 7"); p("s_lshl_b32 s46, s28, 5"); p("s_add_u32 s45, s45, s46")
        p("s_lshl_b32 s46, s27, 2"); p("s_add_u32 s45, s45, s46"); p(f"s_add_u32 s45, s45, {F_X}")
        p("v_mov_b32 v4, s45"); p("v_mov_b32 v5, s44")
        p("s_mov_b64 exec, 1")
        p("buffer_store_dword v5, v4, s[40:43], 0 offen sc1")
        p("s_mov_b64 exec, -1")
        p.label("L_c_n3")
        p("s_cmp_eq_u32 s28, 0")
        p("s_cbranch_scc0 L_c_h")
        self.t12_compute('kv')
        p("s_branch L_c_t4")
        p.label("L_c_h")
        self.t12_compute('h')
        p.label("L_c_t4")
        self.t4()
        p("s_branch L_end")

    def t12_compute(self, kind):
        p = self.p
        typ = 0 if kind == 'kv' else 1
        NT = 5 if kind == 'kv' else 6
        SETSZ = 16 + 4 * NT
        ACC = 32
        QACC = ACC + NT*16
        GACC = QACC + 20
        def xf(s, st): return SETSZ * s + 4 * st
        def wf(s, t): return SETSZ * s + 16 + 4 * t
        def acc(t, st): return ACC + (t * 4 + st) * 4
        def qf(t):
            r = 2*SETSZ + 4*t
            return ("a", r) if r + 4 <= 96 else ("v", 152 + (r - 96))
        qreg = lambda t, n=4, o=0: (ar(qf(t)[1]+o, n) if qf(t)[0] == "a" else vr(qf(t)[1]+o, n))
        p("""
        s_lshr_b32 s48, s25, 1
        s_and_b32 s49, s25, 1
        v_lshrrev_b32 v2, 4, v1
        v_bfe_u32 v3, v1, 2, 2
        v_and_b32 v4, 3, v1
        v_bfe_u32 v5, v1, 3, 1
        s_lshl_b32 s44, s48, 3
        v_add_u32 v5, s44, v5
        v_lshlrev_b32 v5, 10, v5
        v_and_b32 v6, 7, v1
        v_lshl_add_u32 v5, v6, 7, v5
        v_xor_b32 v7, v2, v6
        v_lshl_add_u32 v8, v7, 4, v5
        v_xor_b32 v7, 4, v7
        v_lshl_add_u32 v9, v7, 4, v5
        v_lshrrev_b32 v5, 1, v2
        v_lshlrev_b32 v5, 4, v5
        v_and_b32 v6, 1, v2
        v_lshl_add_u32 v5, v6, 2, v5
        v_add_u32 v5, v5, v3
        """)
        p(f"""
        v_mul_u32_u24 v6, 160, v5
        v_add_u32 v7, {QOFF}, v6
        v_lshl_add_u32 v16, v4, 3, v7
        v_mul_u32_u24 v17, 40, v4
        v_add3_u32 v17, v17, v7, 32
        """)
        self.rot10("s53")
        p("s_lshl_b32 s44, s53, 7"); p(f"s_add_u32 s44, s44, {GW}")
        p("v_lshlrev_b32 v19, 4, v2"); p("v_add_u32 v19, s44, v19")
        if kind == 'kv':
            p(f"""
            v_add_u32 v6, 16384, v6
            s_mul_i32 s44, s49, 80
            v_lshlrev_b32 v7, 3, v4
            v_add3_u32 v10, v6, v7, s44
            v_lshrrev_b32 v7, 1, v4
            v_xor_b32 v7, s49, v7
            v_mul_u32_u24 v7, {SEG}, v7
            v_and_b32 v13, 1, v4
            v_mul_u32_u24 v13, 40, v13
            v_add3_u32 v13, v13, v6, s44
            v_add3_u32 v11, v13, v7, 32
            """)
            def wread(t, s, b2):
                ro = (32 * s + 8 * b2) * 160
                if t in (0, 1): return ("v10", 40 * t + ro)
                if t in (2, 3): return ("v10", SEG + 40 * (t - 2) + ro)
                return ("v11", ro)
            addr_regs = [8, 9, 10, 11, 16, 17]
            transposed = lambda t: False
        else:
            p(f"""
            v_mul_u32_u24 v6, 384, v5
            v_add_u32 v6, 16384, v6
            v_and_b32 v7, 1, v4
            v_lshl_add_u32 v6, v7, 3, v6
            v_and_b32 v7, 6, v5
            v_lshrrev_b32 v20, 1, v4
            s_mul_i32 s44, s49, 12
            v_add_u32 v20, s44, v20
            """)
            for t in range(6):
                p(f"""
                v_add_u32 v21, {2*t}, v20
                v_xor_b32 v21, v21, v7
                v_lshl_add_u32 v{10+t}, v21, 4, v6
                """)
            def wread(t, s, b2): return (f"v{10+t}", (32 * s + 8 * b2) * 384)
            addr_regs = [8, 9, 10, 11, 12, 13, 14, 15, 16, 17]
            transposed = lambda t: True
        def base_reads(s_dst, s_k):
            vx = "v8" if s_k == 0 else "v9"
            xs = [f"ds_read_b128 {ar(xf(s_dst, st), 4)}, {vx} offset:{st*2048}" for st in range(4)]
            ws = []
            for t in range(NT):
                for b2 in range(2):
                    a, off = wread(t, s_k, b2)
                    ws.append(f"ds_read_b64_tr_b16 {ar(wf(s_dst, t) + 2*b2, 2)}, {a} offset:{off}")
            return [xs[0]] + ws[:4] + [xs[1]] + ws[4:8] + [xs[2]] + ws[8:10] + [xs[3]] + ws[10:]
        def q_reads(s_k):
            L = []
            for t in range(5):
                for b2 in range(2):
                    ro = (32 * s_k + 8 * b2) * 160
                    if t < 4: L.append(f"ds_read_b64_tr_b16 {qreg(t, 2, 2*b2)}, v16 offset:{ro + 40*t}")
                    else: L.append(f"ds_read_b64_tr_b16 {qreg(t, 2, 2*b2)}, v17 offset:{ro}")
            L.append(f"ds_read_b128 {qreg(5)}, v19 offset:{64*s_k}")
            return L
        def base_mfmas(s):
            L = []
            for st in range(4):
                for t in range(NT):
                    A, B = (ar(wf(s, t), 4), ar(xf(s, st), 4)) if transposed(t) else (ar(xf(s, st), 4), ar(wf(s, t), 4))
                    c = vr(acc(t, st), 4)
                    L.append(f"v_mfma_f32_16x16x32_bf16 {c}, {A}, {B}, {c}")
            return L
        def q_mfmas(s):
            LA, LB = p.newlabel("L_qm"), p.newlabel("L_qm")
            p("s_cmp_eq_u32 s49, 0"); p(f"s_cbranch_scc0 {LA}")
            for ch in range(2):
                if ch == 1: p.label(LA)
                B = ar(xf(s, 2*typ + ch), 4)
                for t in range(5):
                    c = vr(QACC + 4*t, 4)
                    p(f"v_mfma_f32_16x16x32_bf16 {c}, {qreg(t)}, {B}, {c}")
                c = vr(GACC, 4)
                p(f"v_mfma_f32_16x16x32_bf16 {c}, {qreg(5)}, {B}, {c}")
                if ch == 0: p(f"s_branch {LB}")
            p.label(LB)
        def phase(s, rd, extra=()):
            q_mfmas(s)
            M = base_mfmas(s); other = list(rd) + list(extra)
            k = 0
            per = -(-len(rd) // len(M))
            for i, m in enumerate(M):
                p(m)
                for _ in range(2 if k < len(other) else 0):
                    if k < len(other): p(other[k]); k += 1
            while k < len(other): p(other[k]); k += 1
        for i in range(NT * 16 + 24): p(f"v_mov_b32 v{ACC+i}, 0")
        p("s_mov_b32 s50, 0"); p("s_mov_b32 s51, 10"); p(f"s_mov_b32 s55, {STG}"); p("s_movk_i32 s54, 128")
        self.wpattern(20, 'lin', 1280)
        p("s_waitcnt lgkmcnt(0)")
        self.stamp(1)
        p("s_barrier")
        p(f"v_mov_b32 v2, {SY}")
        p(f"ds_read_b32 v3, v2 offset:{W_TAG}")
        for r in base_reads(0, 0) + q_reads(0): p(r)
        p("s_waitcnt lgkmcnt(0)")
        p("v_readfirstlane_b32 s30, v3")
        self.stamp(2)
        L = f"L_t12_loop_{kind}"
        p.label(L)
        upd = ["s_add_u32 s50, s50, 1", "s_cmp_eq_u32 s50, 3",
               f"s_cselect_b32 s52, {(-2*STG) & 0xffffffff}, s55", "s_cselect_b32 s50, 0, s50"] + \
              [f"v_add_u32 v{r}, s52, v{r}" for r in addr_regs] + \
              ["s_add_u32 s53, s53, 1", "s_cmp_eq_u32 s53, 10", f"s_cselect_b32 s52, {(-1152) & 0xffffffff}, s54", "s_cselect_b32 s53, 0, s53",
               "v_add_u32 v19, s52, v19"]
        phase(0, q_reads(1) + base_reads(1, 1), upd)
        p("s_waitcnt lgkmcnt(0)")
        p("s_barrier")
        phase(1, q_reads(0) + base_reads(0, 0))
        p("s_waitcnt lgkmcnt(0)")
        p("s_sub_u32 s51, s51, 1"); p("s_cmp_lg_u32 s51, 0"); p(f"s_cbranch_scc1 {L}")
        self.stamp(3)
        if self.cfg.t12only:
            for k in range(4, 10): self.stamp(k)
            self.stamp_flush(10)
            p("s_branch L_end")
        p("s_waitcnt vmcnt(0)")
        p("v_lshlrev_b32 v18, 4, v1")
        if kind == 'h': self.epilogue_h(acc, last=True)
        else: self.epilogue_kv(acc)
        self.epilogue_q(QACC, GACC)
        p("s_waitcnt vmcnt(0)")
        if kind == 'h':
            p("s_lshl_b32 s44, s26, 10"); p("s_lshl_b32 s45, s27, 7"); p("s_add_u32 s44, s44, s45"); p(f"s_add_u32 s44, s44, {F_H}")
        else:
            p("s_lshl_b32 s44, s27, 11"); p("s_lshl_b32 s45, s26, 7"); p("s_add_u32 s44, s44, s45"); p(f"s_add_u32 s44, s44, {F_KV}")
        self.publish_last(W_PUB1, 4, "s44", dual=(kind == 'h'))
        self.stamp(4)

    def epilogue_q(self, QACC, GACC):
        p = self.p
        TM = 32
        TM = 128 if QACC == 112 else 32
        if QACC == 112: tmp = list(range(136, 156))
        else: tmp = [32 + (t*4 + st)*4 + i for t in (1, 3) for st in range(4) for i in range(4)][:20]
        p(f"s_mov_b32 s58, {LOG2E}"); p(f"s_mov_b32 s59, {EPS6}")
        for i in range(20): p(f"v_mul_f32 v{tmp[i]}, s58, v{QACC+i}")
        for i in range(20): p(f"v_exp_f32 v{tmp[i]}, v{tmp[i]} clamp")
        for i in range(20): p(f"v_max_f32 v{QACC+i}, 0, v{QACC+i}")
        for i in range(20): p(f"v_add_f32 v{QACC+i}, s59, v{QACC+i}")
        for i in range(20): p(f"v_add_f32 v{QACC+i}, v{QACC+i}, v{tmp[i]}")
        for h in range(5):
            p(f"v_cvt_pk_bf16_f32 v{QACC+2*h}, v{QACC+4*h}, v{QACC+4*h+1}")
            p(f"v_cvt_pk_bf16_f32 v{QACC+2*h+1}, v{QACC+4*h+2}, v{QACC+4*h+3}")
        p("s_mul_i32 s44, s25, 2560"); p(f"s_add_u32 s44, s44, {BQL}")
        p("v_lshlrev_b32 v5, 3, v1"); p("v_add_u32 v5, s44, v5")
        for h in range(5): p(f"ds_write_b64 v5, v[{QACC+2*h}:{QACC+2*h+1}] offset:{h*512}")
        p(f"v_mul_f32 v6, s58, v{GACC}")
        p("v_sub_f32 v6, 0, v6"); p("v_exp_f32 v6, v6"); p("v_add_f32 v6, 1.0, v6"); p("v_rcp_f32 v6, v6")
        p("s_lshl_b32 s44, s25, 6"); p(f"s_add_u32 s44, s44, {GL}")
        p("v_and_b32 v7, 15, v1"); p("v_lshlrev_b32 v7, 2, v7"); p("v_add_u32 v7, s44, v7")
        p("ds_write_b32 v7, v6")
        p("s_waitcnt lgkmcnt(0)")
        self.lds_signal(W_BQ)

    def epilogue_h(self, acc, last):
        p = self.p
        p(f"""
        s_lshl_b32 s44, s26, 3
        s_lshl_b32 s45, s48, 2
        s_add_u32 s44, s44, s45
        s_mul_i32 s44, s44, {AP_ST}
        s_mul_i32 s45, s27, 6
        s_mul_i32 s46, s49, 3
        s_add_u32 s45, s45, s46
        s_lshl_b32 s45, s45, 10
        s_add_u32 s44, s44, s45
        s_add_u32 s44, s44, {WS_AP}
        v_add_u32 v5, s44, v18
        """)
        self.read_loc()
        for st in range(4):
            for pp in range(3):
                a0, a1 = acc(2*pp, st), acc(2*pp+1, st)
                p(f"v_cvt_pk_bf16_f32 v{a0}, v{a0}, v{a0+1}")
                p(f"v_cvt_pk_bf16_f32 v{a0+1}, v{a0+2}, v{a0+3}")
                p(f"v_cvt_pk_bf16_f32 v{a0+2}, v{a1}, v{a1+1}")
                p(f"v_cvt_pk_bf16_f32 v{a0+3}, v{a1+2}, v{a1+3}")
                for i in range(4): p(f"v_pk_max_i16 v{a0+i}, v{a0+i}, 0")
        for st in range(1, 4): p(f"v_add_u32 v{7+st}, {AP_ST*st}, v5")
        p("v_mov_b32 v7, v5")
        def stores(sc):
            for st in range(4):
                for pp in range(3):
                    a0 = acc(2*pp, st)
                    p(f"buffer_store_dwordx4 v[{a0}:{a0+3}], v{7+st}, s[40:43], 0 offen offset:{pp*1024}{sc}")
        self.dual(stores)

    def epilogue_kv(self, acc):
        p = self.p
        K0, K1, V0, V1, X = range(5)
        p(f"s_mov_b32 s53, {LOG2E}"); p(f"s_mov_b32 s54, {EPS6}")
        p("v_lshrrev_b32 v2, 4, v1"); p("v_and_b32 v3, 15, v1")
        p("v_lshrrev_b32 v4, 3, v3"); p("v_cmp_eq_u32 s[56:57], s49, v4")
        p("v_lshrrev_b32 v7, 1, v2"); p("v_cmp_eq_u32 s[58:59], s49, v7")
        T0 = 136
        def phi_group(regs, tm):
            for i, a in enumerate(regs): p(f"v_mul_f32 v{tm+i}, s53, v{a}")
            for i, a in enumerate(regs): p(f"v_exp_f32 v{tm+i}, v{tm+i} clamp")
            for i, a in enumerate(regs): p(f"v_max_f32 v{a}, 0, v{a}")
            for i, a in enumerate(regs): p(f"v_add_f32 v{a}, s54, v{a}")
            for i, a in enumerate(regs): p(f"v_add_f32 v{a}, v{a}, v{tm+i}")
        for st in range(4):
            phi_group([acc(K0, st)+i for i in range(4)] + [acc(K1, st)+i for i in range(4)], T0)
            a = acc(X, st); tm = T0 + 8
            for i in range(4): p(f"v_mul_f32 v{tm+i}, s53, v{a+i}")
            for i in range(4): p(f"v_exp_f32 v{tm+i}, v{tm+i} clamp")
            for i in range(4): p(f"v_max_f32 v{tm+4+i}, 0, v{a+i}")
            for i in range(4): p(f"v_add_f32 v{tm+4+i}, s54, v{tm+4+i}")
            for i in range(4): p(f"v_add_f32 v{tm+4+i}, v{tm+4+i}, v{tm+i}")
            for i in range(4): p(f"v_cndmask_b32 v{a+i}, v{a+i}, v{tm+4+i}, s[56:57]")
        for t in (K0, K1, V0, V1, X):
            for kk in range(2):
                a, b = acc(t, 2*kk), acc(t, 2*kk+1)
                p(f"v_cvt_pk_bf16_f32 v{a}, v{a}, v{a+1}")
                p(f"v_cvt_pk_bf16_f32 v{a+1}, v{a+2}, v{a+3}")
                p(f"v_cvt_pk_bf16_f32 v{a+2}, v{b}, v{b+1}")
                p(f"v_cvt_pk_bf16_f32 v{a+3}, v{b+2}, v{b+3}")
        fr = lambda t, kk: vr(acc(t, 2*kk), 4)
        free = [acc(t, s) for t in (K0, K1, V0, V1, X) for s in (1, 3)]
        KV0, KV1, KX0, KX1, XV0, XV1, XX, Z0, Z1, ZX = free
        ONES = T0
        for i in range(4): p(f"v_mov_b32 v{ONES+i}, 0x3f803f80")
        ones = vr(ONES, 4)
        for kk in range(2):
            for (d, A, B) in ((KV0, fr(K0,kk), fr(V0,kk)), (KV1, fr(K1,kk), fr(V1,kk)), (KX0, fr(K0,kk), fr(X,kk)),
                              (KX1, fr(K1,kk), fr(X,kk)), (XV0, fr(X,kk), fr(V0,kk)), (XV1, fr(X,kk), fr(V1,kk)),
                              (XX, fr(X,kk), fr(X,kk)), (Z0, fr(K0,kk), ones), (Z1, fr(K1,kk), ones), (ZX, fr(X,kk), ones)):
                c = "0" if kk == 0 else vr(d, 4)
                p(f"v_mfma_f32_16x16x32_bf16 {vr(d,4)}, {A}, {B}, {c}")
        p("v_bfe_u32 v4, v3, 2, 1"); p("v_cmp_eq_u32 s[60:61], 1, v4")
        p("v_and_b32 v4, 1, v2"); p("v_cmp_eq_u32 s[62:63], 1, v4")
        p("v_and_b32 v4, 1, v3"); p("v_cmp_eq_u32 s[64:65], 1, v4")
        for i in range(4): p(f"v_cndmask_b32 v{KX0+i}, v{KX0+i}, v{KX1+i}, s[60:61]")
        for i in range(4): p(f"v_cndmask_b32 v{XV0+i}, v{XV0+i}, v{XV1+i}, s[62:63]")
        for i in range(4): p(f"v_cndmask_b32 v{Z0+i}, v{Z0+i}, v{Z1+i}, s[64:65]")
        p("s_lshl_b32 s44, s49, 2"); p("v_lshrrev_b32 v4, 1, v3"); p("v_cmp_eq_u32 s[60:61], s44, v4")
        p("s_lshl_b32 s44, s49, 3"); p("s_add_u32 s44, s44, 4"); p("v_cmp_eq_u32 s[62:63], s44, v3")
        for i in range(4): p(f"v_cndmask_b32 v{XX+i}, v{XX+i}, v{Z0+i}, s[60:61]")
        for i in range(4): p(f"v_cndmask_b32 v{XX+i}, v{XX+i}, v{ZX+i}, s[62:63]")
        tiles = [KV0, KV1, KX0, XV0, XX]
        p("s_mul_i32 s44, s49, 5120"); p(f"s_add_u32 s44, s44, {KVRED}")
        p("v_add_u32 v4, s44, v18")
        R0 = p.newlabel("L_kr")
        p("s_cmp_eq_u32 s48, 0"); p(f"s_cbranch_scc1 {R0}")
        for j, t in enumerate(tiles): p(f"ds_write_b128 v4, {vr(t,4)} offset:{j*1024}")
        p.label(R0)
        self.cbar(vtmp=(5, 6))
        TM = T0
        for j in range(5): p(f"ds_read_b128 {vr(TM+4*j,4)}, v4 offset:{j*1024}")
        p("s_waitcnt lgkmcnt(0)")
        for j, t in enumerate(tiles):
            p(f"v_pk_add_f32 v[{t}:{t+1}], v[{t}:{t+1}], v[{TM+4*j}:{TM+4*j+1}]")
            p(f"v_pk_add_f32 v[{t+2}:{t+3}], v[{t+2}:{t+3}], v[{TM+4*j+2}:{TM+4*j+3}]")
        p(f"""
        s_lshl_b32 s44, s26, 3
        s_add_u32 s44, s44, s27
        s_lshl_b32 s44, s44, 13
        s_add_u32 s44, s44, {WS_KVP}
        s_cmp_eq_u32 s48, 0
        s_cselect_b32 s44, s44, {OOB}
        v_add_u32 v4, s44, v18
        s_lshl_b32 s45, s49, 11
        v_add_u32 v5, s45, v4
        v_mov_b32 v7, {OOB}
        """)
        p(f"buffer_store_dwordx4 {vr(KV0,4)}, v5, s[40:43], 0 offen sc1")
        p(f"buffer_store_dwordx4 {vr(KV1,4)}, v5, s[40:43], 0 offen offset:1024 sc1")
        p("v_add_u32 v6, 4096, v4"); p("v_cndmask_b32 v6, v6, v7, s[56:57]")
        p(f"buffer_store_dwordx4 {vr(KX0,4)}, v6, s[40:43], 0 offen sc1")
        p("v_add_u32 v8, 5120, v4"); p("v_cndmask_b32 v8, v7, v8, s[58:59]")
        p(f"buffer_store_dwordx4 {vr(XV0,4)}, v8, s[40:43], 0 offen sc1")
        p("s_lshl_b32 s45, s49, 10"); p("v_add_u32 v9, s45, v4"); p("v_add_u32 v9, 6144, v9")
        p(f"buffer_store_dwordx4 {vr(XX,4)}, v9, s[40:43], 0 offen sc1")

    def t4(self):
        p = self.p
        ACC = 32
        acc = lambda sg, t: ACC + (sg*5 + t)*4
        def BF(j, sg):
            k = (j % PD)*4 + sg
            return ar(40 + 4*k, 4) if k < 14 else vr(112 + 4*(k-14), 4)
        AF = lambda j, t: ar(20*(j & 1) + 4*t, 4)
        VB = 8
        PL, PB, PC = 20, 25, 152
        def stile(sg, out):
            p(f"s_add_u32 s44, s25, {sg}"); p("s_and_b32 s44, s44, 3")
            p("s_lshr_b32 s45, s44, 1"); p("s_lshl_b32 s45, s45, 2"); p("s_and_b32 s46, s44, 1"); p("s_add_u32 s45, s45, s46")
            p("s_lshl_b32 s46, s28, 1"); p("s_add_u32 s45, s45, s46"); p("s_lshl_b32 s46, s26, 3"); p(f"s_add_u32 {out}, s45, s46")
        for sg in range(4):
            stile(sg, "s47")
            if sg == 0: p("s_mov_b32 s71, s47")
            p(f"s_mul_i32 s47, s47, {AP_ST}"); p(f"s_add_u32 s47, s47, {WS_AP}")
            p(f"v_add_u32 v{VB+sg}, s47, v18")
        p("s_mul_i32 s44, s27, 160")
        p("s_add_u32 s32, s14, s44"); p("s_addc_u32 s33, s15, 0"); p("s_sub_u32 s34, 1966080, s44"); p("s_mov_b32 s35, 0x20000")
        p("s_add_u32 s36, s8, s44"); p("s_addc_u32 s37, s9, 0"); p("s_sub_u32 s38, 819200, s44"); p("s_mov_b32 s39, 0x20000")
        p("s_mul_i32 s52, s25, 12"); p("s_mul_i32 s53, s25, 5")
        p("s_mul_i32 s60, s25, 5120")
        self.t4_rot()
        def ks_next(j):
            if j < 12:
                p("s_add_u32 s54, s52, s56")
                p("s_add_u32 s56, s56, 1"); p("s_cmp_eq_u32 s56, 12"); p("s_cselect_b32 s56, 0, s56")
            else:
                p("s_add_u32 s54, s53, s57")
                p("s_add_u32 s57, s57, 1"); p("s_cmp_eq_u32 s57, 5"); p("s_cselect_b32 s57, 0, s57")
        def loadW(j):
            p(f"s_add_u32 s61, s60, {WBASE[j % PD]}")
            if j < 12:
                p("s_mul_i32 s55, s54, 40960")
                self.wdma(PL, "s[32:35]", "s55", "s61")
            else:
                LC, LD_ = p.newlabel("L_oc"), p.newlabel("L_od")
                p("s_cmp_lt_u32 s54, 16"); p(f"s_cbranch_scc0 {LC}")
                p("s_mul_i32 s55, s54, 51200")
                self.wdma(PB, "s[36:39]", "s55", "s61")
                p(f"s_branch {LD_}")
                p.label(LC)
                p("s_sub_u32 s55, s54, 16"); p("s_mul_i32 s55, s55, 204800")
                self.wdma(PC, "s[36:39]", "s55", "s61")
                p.label(LD_)
        def loadB(j):
            if j < 12: p("s_lshl_b32 s54, s54, 10")
            else: p("s_add_u32 s54, s54, 48"); p("s_lshl_b32 s54, s54, 10")
            for sg in range(4):
                p(f"buffer_load_dwordx4 {BF(j, sg)}, v{VB+sg}, s[40:43], s54 offen sc1")
        self.lds_wait(W_HR, 1)
        for j in range(PD):
            ks_next(j); loadB(j)
        self.stamp(5)
        self.wpattern(PB, 'B', 1280); self.wpattern(PC, 'C', 1280)
        self.lds_wait(W_BQ, 4)
        p("v_and_b32 v5, 15, v1"); p("v_lshlrev_b32 v5, 2, v5")
        for sg in range(4):
            p(f"s_add_u32 s44, s25, {sg}"); p("s_and_b32 s44, s44, 3"); p("s_lshl_b32 s44, s44, 6"); p(f"s_add_u32 s44, s44, {GL}")
            p("v_add_u32 v6, s44, v5")
            p(f"ds_read_b32 v{12+sg}, v6")
        p("""
        v_lshrrev_b32 v2, 4, v1
        v_bfe_u32 v3, v1, 2, 2
        v_and_b32 v4, 3, v1
        v_lshl_add_u32 v6, v2, 2, v3
        v_mul_u32_u24 v6, 160, v6
        v_mul_u32_u24 v4, 40, v4
        v_add3_u32 v6, v6, v4, s60
        """)
        p("v_add_u32 v7, 65536, v6")
        NS = 17
        def treads(j):
            L = []
            base = WBASE[j % PD]
            for t in range(5):
                for b2 in range(2):
                    off = base + 16*b2*160 + 8*t
                    a = "v6"
                    if off >= 65536: a = "v7"; off -= 65536
                    L.append(f"ds_read_b64_tr_b16 {ar(20*(j&1) + 4*t + 2*b2, 2)}, {a} offset:{off}")
            return L
        q = [(f"B{j}", 4) for j in range(PD)]
        def wait_for(tag):
            tags = [t for t, _ in q]
            if tag not in tags: return
            idx = tags.index(tag)
            p(f"s_waitcnt vmcnt({sum(k for _, k in q[idx+1:])})")
            del q[:idx+1]
        self.lds_wait(W_P01, 4)
        for r in treads(0): p(r)
        self.stamp(6)
        for j in range(NS):
            nxt = j + PD
            if j + 1 == 2: self.lds_wait(W_P23, 4, vtmp=(2, 3))
            if j + 1 == 4: self.lds_wait(W_P45, 4, vtmp=(2, 3))
            if j + 1 < NS: wait_for(f"W{j+1}")
            wait_for(f"B{j}")
            p("s_waitcnt lgkmcnt(0)")
            if j == 1: self.stamp(7)
            if j == 12:
                self.stamp(8)
                for sg in range(4): p(f"v_sub_f32 v{12+sg}, 1.0, v{12+sg}")
                for sg in range(4):
                    for t in range(5):
                        for i in range(4): p(f"v_mul_f32 v{acc(sg,t)+i}, v{acc(sg,t)+i}, v{12+sg}")
            tr = treads(j+1) if j + 1 < NS else []
            k = 0
            for sg in range(4):
                for t in range(5):
                    c = vr(acc(sg, t), 4)
                    p(f"v_mfma_f32_16x16x32_bf16 {c}, {AF(j,t)}, {BF(j,sg)}, {'0' if j == 0 else c}")
                    if k < len(tr): p(tr[k]); k += 1
            if nxt < NS:
                if nxt == 12: self.lds_wait(W_OR, 1)
                ks_next(nxt); loadW(nxt); loadB(nxt)
                q += [(f"W{nxt}", 5), (f"B{nxt}", 4)]
        self.cbar()
        for sg in range(1, 4):
            p(f"s_add_u32 s44, s25, {sg}"); p("s_and_b32 s44, s44, 3"); p("s_mul_i32 s44, s44, 3"); p(f"s_add_u32 s44, s44, {sg-1}")
            p("s_mul_i32 s45, s44, 5120")
            p("v_add_u32 v5, s45, v18")
            for t in range(5): p(f"ds_write_b128 v5, {vr(acc(sg,t),4)} offset:{t*1024}")
        self.cbar()
        p("s_mul_i32 s45, s25, 15360")
        p("v_add_u32 v5, s45, v18")
        for k in range(3):
            for t in range(5): p(f"ds_read_b128 {vr(acc(1+k,t),4)}, v5 offset:{k*5120+t*1024}")
        p("s_waitcnt lgkmcnt(0)")
        for k in range(3):
            for t in range(5):
                a, b = acc(0, t), acc(1+k, t)
                p(f"v_pk_add_f32 v[{a}:{a+1}], v[{a}:{a+1}], v[{b}:{b+1}]")
                p(f"v_pk_add_f32 v[{a+2}:{a+3}], v[{a+2}:{a+3}], v[{b+2}:{b+3}]")
        O = 112
        for t in range(5):
            a = acc(0, t)
            p(f"v_cvt_pk_bf16_f32 v{O+2*t}, v{a}, v{a+1}")
            p(f"v_cvt_pk_bf16_f32 v{O+2*t+1}, v{a+2}, v{a+3}")
        p("""
        s_mov_b32 s32, s18
        s_mov_b32 s33, s19
        s_mov_b32 s34, 2621440
        s_mov_b32 s35, 0x20000
        v_lshrrev_b32 v2, 4, v1
        v_and_b32 v3, 15, v1
        s_lshl_b32 s44, s71, 4
        v_add_u32 v3, s44, v3
        v_mul_u32_u24 v3, 1280, v3
        v_mul_u32_u24 v2, 40, v2
        s_mul_i32 s44, s27, 160
        v_add3_u32 v3, v3, v2, s44
        """)
        p(f"buffer_store_dwordx4 v[{O}:{O+3}], v3, s[32:35], 0 offen")
        p(f"buffer_store_dwordx4 v[{O+4}:{O+7}], v3, s[32:35], 0 offen offset:16")
        p(f"buffer_store_dwordx2 v[{O+8}:{O+9}], v3, s[32:35], 0 offen offset:32")
        self.stamp(9)
        self.stamp_flush(10)

def kd(name, vgpr, accum, sgpr=102):
    return f""".amdhsa_kernel {name}
  .amdhsa_next_free_vgpr {vgpr}
  .amdhsa_next_free_sgpr {sgpr}
  .amdhsa_accum_offset {accum}
  .amdhsa_group_segment_fixed_size 0
  .amdhsa_kernarg_size 80
  .amdhsa_user_sgpr_count 2
  .amdhsa_user_sgpr_kernarg_segment_ptr 1
  .amdhsa_system_sgpr_workgroup_id_x 1
.end_amdhsa_kernel
"""

def head_comment():
    f = "cdna_kernels/" + NAME + ".s.ref"
    return open(f).read().split("; Override launch")[0] if os.path.exists(f) else ""

def build(cfg):
    g = Gen(cfg); g.emit()
    body = g.p.text(verbose=True)
    hdr = head_comment() + f"""; @launch grid=(256,1,1) block=(512,1,1) lds={LDS_BYTES}
.amdgcn_target "amdgcn-amd-amdhsa--gfx950"
.text
.globl {KNAME}
.p2align 8
.type {KNAME},@function
{KNAME}:
"""
    body = body.replace("CODE_BYTES_M", f".Lcode_end-{KNAME}-512")
    tail = ".Lcode_end:\n"
    return hdr + body + tail + '.section .rodata,"a"\n.p2align 6\n' + kd(KNAME, 256, 160)

if __name__ == "__main__":
    cfg = Cfg()
    cfg.stamps = "stamps" in sys.argv
    cfg.dbg2 = "dbg2" in sys.argv
    cfg.rot = "norot" not in sys.argv
    cfg.local = "nolocal" not in sys.argv
    cfg.t12only = "t12only" in sys.argv
    cfg.map81 = "map81" in sys.argv
    cfg.spoll = "vpoll" not in sys.argv
    if not cfg.map81: cfg.local = False
    out = [a for a in sys.argv[1:] if a.endswith(".s")]
    open(out[0] if out else "x.s", "w").write(build(cfg))
```

```python
import sys, os
from asmlib import *

NAME = "gated_mix__linear_attn_block__dense_activation_relu__prompt"
KNAME = NAME + "_kernel"

AP_ST = 68 * 1024
WS_AP = 0
WS_KVP = 13 << 20
WS_KVS = 14 << 20
WS_F = 15 << 20
F_H = WS_F
F_KV = WS_F + 16384
F_O = WS_F + 32768
F_X = WS_F + 65536
F_KS = WS_F + 73728
WS_TS = 16 << 20
WS_SIZE = 17 << 20
OOB = 0x80000000

STG = 51200
SEG = 10256
QOFF = 40960
WBASE = [51200, 71680, 102400, 122880, 0, 20480]
KVRED = 92160
BQL0, BQL1 = 40960, 143360
KVT = 153600
GW = 159744
GL = 161024
GR = 161280
SY = 161536
LDS_BYTES = 161792
W_TAG, W_KVR, W_HR, W_OR, W_PUB1, W_BQ, W_PUB2, W_KVF, W_LOC, W_P01, W_P23, W_GT, W_KF1, W_ZOK = [4*i for i in range(14)]
W_CB = 64
LOG2E = 0x3fb8aa3b
EPS6 = 0x358637bd
POLL_MAX = 1 << 13
PD = 6

class Cfg:
    stamps = False
    dbg2 = False
    rot = True
    local = True
    t12only = False
    map81 = False
    spoll = True
    kv1 = False
    noqdma = False
    noqread = False
    nomfma = False
    stouch = False
    wpre = (7, 8)
    w45late = True
    orstep = 11
    early_s1 = False

class Gen:
    def __init__(self, cfg):
        self.p = Prog(); self.cfg = cfg; self.ncb = 0
    def stamp(self, idx):
        if self.cfg.stamps and (idx == 0 or not self.cfg.dbg2): self.p(f"s_memtime s[{80+2*idx}:{81+2*idx}]")
    def stamp2(self, idx):
        if self.cfg.stamps and self.cfg.dbg2: self.p(f"s_memtime s[{80+2*idx}:{81+2*idx}]")
    def stamp_flush(self, n):
        if not self.cfg.stamps: return
        p = self.p
        p("s_waitcnt lgkmcnt(0)")
        p("s_memrealtime s[78:79]")
        p("s_lshl_b32 s100, s2, 3"); p("s_add_u32 s100, s100, s24")
        p("s_lshl_b32 s100, s100, 7")
        p(f"s_add_u32 s100, s100, {WS_TS}")
        p("v_mov_b32 v4, s100")
        p("s_waitcnt lgkmcnt(0)")
        p("s_mov_b64 exec, 1")
        regs = [80 + 2*i for i in range(n)]
        for i, r in enumerate(regs + [76, 78]):
            off = 8*i if i < n else (112 + 8*(i-n))
            p(f"v_mov_b32 v2, s{r}"); p(f"v_mov_b32 v3, s{r+1}")
            p(f"buffer_store_dwordx2 v[2:3], v4, s[40:43], 0 offen offset:{off}")
            p("s_nop 1")
        p("s_mov_b64 exec, -1")
    def lds_signal(self, word, vtmp=(2, 3)):
        p = self.p; a, b = vtmp
        p(f"v_mov_b32 v{a}, {SY}"); p(f"v_mov_b32 v{b}, 1")
        p("s_mov_b64 exec, 1")
        p(f"ds_add_u32 v{a}, v{b} offset:{word}")
        p("s_mov_b64 exec, -1")
    def lds_wait(self, word, target, vtmp=(2, 3), sleep=False):
        p = self.p; a, b = vtmp
        L = p.newlabel("L_lw"); D = p.newlabel("L_lwd")
        p(f"v_mov_b32 v{a}, {SY}")
        p(f"s_mov_b32 s47, {POLL_MAX*32}")
        p.label(L)
        p(f"ds_read_b32 v{b}, v{a} offset:{word}")
        p("s_waitcnt lgkmcnt(0)")
        p(f"v_readfirstlane_b32 s46, v{b}")
        p(f"s_cmp_ge_u32 s46, {target}")
        p(f"s_cbranch_scc1 {D}")
        if sleep: p("s_sleep 1")
        p("s_sub_u32 s47, s47, 1")
        p("s_cmp_lg_u32 s47, 0")
        p(f"s_cbranch_scc1 {L}")
        p.label(D)
    def cbar(self, vtmp=(2, 3)):
        w = W_CB + 4 * self.ncb; self.ncb += 1
        assert w < 256
        self.p("s_waitcnt lgkmcnt(0)")
        self.lds_signal(w, vtmp)
        self.lds_wait(w, 4, vtmp)
    def poll_flags(self, addr_s, nwords, vt=(2, 3)):
        p = self.p; a, b = vt
        L = p.newlabel("L_pf"); D = p.newlabel("L_pfd")
        if self.cfg.spoll:
            p(f"s_add_u32 s4, s22, {addr_s}"); p("s_addc_u32 s5, s23, 0")
            p(f"s_mov_b32 s47, {POLL_MAX}")
            p.label(L)
            p("s_mov_b32 s46, 0")
            for base in range(0, nwords, 8):
                for i in range(8): p(f"s_load_dword s{8+i}, s[4:5], {(base+i)*128} glc")
                p("s_waitcnt lgkmcnt(0)")
                for i in range(8):
                    p(f"s_xor_b32 s{8+i}, s{8+i}, s30"); p(f"s_or_b32 s46, s46, s{8+i}")
            p("s_cmp_eq_u32 s46, 0")
            p(f"s_cbranch_scc1 {D}")
            p("s_sleep 1")
            p("s_sub_u32 s47, s47, 1")
            p("s_cmp_lg_u32 s47, 0")
            p(f"s_cbranch_scc1 {L}")
            p.label(D)
            return
        p(f"v_min_u32 v{a}, {nwords-1}, v1")
        p(f"v_lshlrev_b32 v{a}, 7, v{a}")
        p(f"v_add_u32 v{a}, {addr_s}, v{a}")
        p(f"s_mov_b32 s47, {POLL_MAX}")
        p.label(L)
        p(f"buffer_load_dword v{b}, v{a}, s[40:43], 0 offen sc1")
        p("s_waitcnt vmcnt(0)")
        p(f"v_cmp_eq_u32 vcc, s30, v{b}")
        p("s_nop 1")
        p("s_cmp_eq_u64 vcc, -1")
        p(f"s_cbranch_scc1 {D}")
        p("s_sleep 2")
        p("s_sub_u32 s47, s47, 1")
        p("s_cmp_lg_u32 s47, 0")
        p(f"s_cbranch_scc1 {L}")
        p.label(D)
    def poll_flags_safe(self, addr_s, nwords):
        p = self.p
        L = p.newlabel("L_pf"); D = p.newlabel("L_pfd")
        p(f"s_add_u32 s100, s22, {addr_s}"); p("s_addc_u32 s101, s23, 0")
        p(f"s_mov_b32 s47, {POLL_MAX}")
        p.label(L)
        p("s_mov_b32 s46, 0")
        for half in range(2):
            for i in range(4): p(f"s_load_dword s{76+i}, s[100:101], {(4*half+i)*128} glc")
            p("s_waitcnt lgkmcnt(0)")
            for i in range(4):
                p(f"s_xor_b32 s{76+i}, s{76+i}, s30"); p(f"s_or_b32 s46, s46, s{76+i}")
        p("s_cmp_eq_u32 s46, 0")
        p(f"s_cbranch_scc1 {D}")
        p("s_sleep 1")
        p("s_sub_u32 s47, s47, 1")
        p("s_cmp_lg_u32 s47, 0")
        p(f"s_cbranch_scc1 {L}")
        p.label(D)
    def dual(self, emit):
        p = self.p
        if not self.cfg.local:
            emit(" sc1"); return
        A, B = p.newlabel("L_du"), p.newlabel("L_du")
        p("s_cmp_eq_u32 s72, 1"); p(f"s_cbranch_scc1 {A}")
        emit(" sc1")
        p(f"s_branch {B}")
        p.label(A)
        emit("")
        p.label(B)
    def flag_store(self, addr_s, vt=(2, 3), dual=False):
        p = self.p; a, b = vt
        p(f"v_mov_b32 v{a}, {addr_s}"); p(f"v_mov_b32 v{b}, s30")
        p("s_mov_b64 exec, 1")
        if dual: self.dual(lambda sc: p(f"buffer_store_dword v{b}, v{a}, s[40:43], 0 offen{sc}"))
        else: p(f"buffer_store_dword v{b}, v{a}, s[40:43], 0 offen sc1")
        p("s_mov_b64 exec, -1")
    def publish_last(self, word, target, addr_s, vt=(2, 3), dual=False):
        p = self.p; a, b = vt
        p(f"v_mov_b32 v{a}, {SY}"); p(f"v_mov_b32 v{b}, 1")
        p("s_mov_b64 exec, 1")
        p(f"ds_add_rtn_u32 v{b}, v{a}, v{b} offset:{word}")
        p("s_mov_b64 exec, -1")
        p("s_waitcnt lgkmcnt(0)")
        p(f"v_readfirstlane_b32 s46, v{b}")
        p(f"s_cmp_eq_u32 s46, {target-1}")
        p(f"s_cselect_b32 s47, {addr_s}, {OOB}")
        self.flag_store("s47", vt, dual)
    def read_loc(self, vt=(2, 3)):
        p = self.p; a, b = vt
        p(f"v_mov_b32 v{a}, {SY}"); p(f"ds_read_b32 v{b}, v{a} offset:{W_LOC}"); p("s_waitcnt lgkmcnt(0)")
        p(f"v_readfirstlane_b32 s72, v{b}")
    def rot10(self, dst):
        p = self.p
        if not self.cfg.rot:
            p(f"s_mov_b32 {dst}, 0"); return
        if self.cfg.map81:
            p(f"""
            s_and_b32 s45, s26, 1
            s_mul_i32 s45, s45, 5
            s_add_u32 {dst}, s27, s45
            s_add_u32 {dst}, {dst}, s73
            s_cmp_ge_u32 {dst}, 10
            s_cselect_b32 s45, 10, 0
            s_sub_u32 {dst}, {dst}, s45
            s_cmp_ge_u32 {dst}, 10
            s_cselect_b32 s45, 10, 0
            s_sub_u32 {dst}, {dst}, s45
            """)
        else:
            p(f"""
            s_and_b32 s45, s27, 3
            s_lshl_b32 s45, s45, 1
            s_add_u32 {dst}, s45, s28
            s_and_b32 s45, s26, 3
            s_mul_i32 s45, s45, 3
            s_add_u32 {dst}, {dst}, s45
            s_cmp_ge_u32 {dst}, 10
            s_cselect_b32 s45, 10, 0
            s_sub_u32 {dst}, {dst}, s45
            """)
    def wpattern(self, dst, kind, stride, tmp=(2, 3, 4, 5, 6), out=None):
        L = []
        e = L.append
        a, b, c, d, f = tmp
        for u in range(5):
            e(f"v_add_u32 v{a}, {64*u}, v1")
            e(f"v_mul_u32_u24 v{b}, 6554, v{a}")
            e(f"v_lshrrev_b32 v{b}, 16, v{b}")
            e(f"v_mul_u32_u24 v{c}, 10, v{b}")
            e(f"v_sub_u32 v{c}, v{a}, v{c}")
            if kind == 'B':
                e(f"v_lshrrev_b32 v{d}, 4, v{b}"); e(f"v_mul_u32_u24 v{d}, 20, v{d}")
                e(f"v_and_b32 v{b}, 15, v{b}"); e(f"v_add_u32 v{b}, v{b}, v{d}")
            elif kind == 'C':
                e(f"v_lshrrev_b32 v{d}, 4, v{b}"); e(f"v_lshlrev_b32 v{d}, 2, v{d}")
                e(f"v_bfe_u32 v{f}, v{b}, 2, 2"); e(f"v_add_u32 v{f}, 2, v{f}"); e(f"v_and_b32 v{f}, 3, v{f}")
                e(f"v_add_u32 v{d}, v{d}, v{f}"); e(f"v_mul_u32_u24 v{d}, 20, v{d}")
                e(f"v_and_b32 v{b}, 3, v{b}"); e(f"v_add3_u32 v{b}, v{b}, v{d}, 16")
            e(f"v_mul_u32_u24 v{b}, {stride}, v{b}")
            e(f"v_lshl_add_u32 v{b}, v{c}, 4, v{b}")
            if 0 < u < 4: e(f"v_subrev_u32 v{dst+u}, {1024*u}, v{b}")
            else: e(f"v_mov_b32 v{dst+u}, v{b}")
        if out is not None: out += L
        else:
            for x in L: self.p(x)
    def wdma(self, pat, srd, soff, m0_s):
        p = self.p
        p(f"s_mov_b32 m0, {m0_s}")
        for u in range(4):
            p(f"buffer_load_dwordx4 v{pat+u}, {srd}, {soff} offen offset:{1024*u} lds")
        p(f"s_add_u32 m0, {m0_s}, 4096")
        p(f"buffer_load_dwordx4 v{pat+4}, {srd}, {soff} offen lds")
    def t4_rot(self, rb="s56", ro="s57"):
        p = self.p
        if self.cfg.rot and not self.cfg.map81:
            p("s_and_b32 s44, s29, 7"); p("s_and_b32 s45, s27, 3")
            p("s_mul_i32 s46, s45, 3"); p(f"s_add_u32 {rb}, s44, s46")
            p(f"s_cmp_ge_u32 {rb}, 12"); p("s_cselect_b32 s46, 12, 0"); p(f"s_sub_u32 {rb}, {rb}, s46")
            p(f"s_add_u32 {ro}, s44, s45")
            p(f"s_cmp_ge_u32 {ro}, 10"); p("s_cselect_b32 s46, 10, 0"); p(f"s_sub_u32 {ro}, {ro}, s46")
            p(f"s_cmp_ge_u32 {ro}, 5"); p("s_cselect_b32 s46, 5, 0"); p(f"s_sub_u32 {ro}, {ro}, s46")
        elif self.cfg.rot:
            p("s_and_b32 s44, s29, 3"); p("s_mul_i32 s45, s44, 3"); p(f"s_add_u32 {rb}, s45, s73")
            p(f"s_cmp_ge_u32 {rb}, 12"); p("s_cselect_b32 s46, 12, 0"); p(f"s_sub_u32 {rb}, {rb}, s46")
            p(f"s_add_u32 {ro}, s44, s73")
            p(f"s_cmp_ge_u32 {ro}, 10"); p("s_cselect_b32 s46, 10, 0"); p(f"s_sub_u32 {ro}, {ro}, s46")
            p(f"s_cmp_ge_u32 {ro}, 5"); p("s_cselect_b32 s46, 5, 0"); p(f"s_sub_u32 {ro}, {ro}, s46")
        else:
            p(f"s_mov_b32 {rb}, 0"); p(f"s_mov_b32 {ro}, 0")

    def emit(self):
        p = self.p; cfg = self.cfg
        if cfg.stamps: p("s_memrealtime s[76:77]")
        if cfg.map81:
            MAP = """s_and_b32 s73, s2, 7
        s_lshr_b32 s31, s2, 3
        s_and_b32 s44, s31, 1
        s_lshl_b32 s26, s73, 1
        s_add_u32 s26, s26, s44
        s_bfe_u32 s28, s31, 0x10001
        s_lshr_b32 s27, s31, 2
        s_lshl_b32 s29, s26, 1
        s_add_u32 s29, s29, s28"""
        else:
            MAP = """s_and_b32 s44, s2, 7
        s_lshr_b32 s31, s2, 3
        s_lshr_b32 s73, s44, 1
        s_and_b32 s3, s44, 1
        s_and_b32 s28, s31, 1
        s_lshr_b32 s45, s31, 1
        s_and_b32 s26, s45, 3
        s_lshl_b32 s46, s73, 2
        s_add_u32 s26, s26, s46
        s_lshr_b32 s27, s45, 2
        s_lshl_b32 s46, s3, 2
        s_add_u32 s27, s27, s46
        s_lshl_b32 s29, s26, 1
        s_add_u32 s29, s29, s28"""
        p(f"""
        s_cmp_ge_u32 s2, 256
        s_cbranch_scc1 L_end
        s_load_dwordx16 s[4:19], s[0:1], 0
        s_load_dwordx4 s[20:23], s[0:1], 64
        s_getpc_b64 s[74:75]
        v_and_b32 v1, 63, v0
        v_lshrrev_b32 v2, 6, v0
        v_readfirstlane_b32 s24, v2
        {MAP}
        s_and_b32 s25, s24, 3
        s_mov_b32 s72, 0
        s_waitcnt lgkmcnt(0)
        """)
        self.stamp(0)
        p(f"""
        s_mov_b32 s40, s22
        s_mov_b32 s41, s23
        s_mov_b32 s42, {WS_SIZE}
        s_mov_b32 s43, 0x20000
        s_cmp_ge_u32 s24, 4
        s_cbranch_scc0 L_compute
        s_cmp_eq_u32 s28, 0
        s_cbranch_scc0 L_helper_h
        """)
        self.helper_t12('kv')
        p("s_branch L_hp_post")
        p.label("L_helper_h")
        self.helper_t12('h')
        p.label("L_hp_post")
        self.helper_post()
        p.label("L_compute")
        self.compute_path()
        p.label("L_end")
        p("s_endpgm")

    def helper_t12(self, kind):
        p = self.p; cfg = self.cfg
        VO = 8; SD = 48
        NW = 5 if kind == 'kv' else 6
        n = 4 + NW + (3 if kind == 'kv' and not cfg.noqdma else 0)
        wstep = 245760 if kind == 'kv' else 196608
        p(f"""
        s_mul_i32 s44, s26, 163840
        s_add_u32 s32, s4, s44
        s_addc_u32 s33, s5, 0
        s_sub_u32 s34, 2621440, s44
        s_mov_b32 s35, 0x20000
        v_lshrrev_b32 v2, 3, v1
        v_and_b32 v3, 7, v1
        v_xor_b32 v4, v3, v2
        v_lshlrev_b32 v4, 4, v4
        s_lshl_b32 s44, s25, 5
        v_add_u32 v5, s44, v2
        v_mul_u32_u24 v5, 1280, v5
        v_add_u32 v8, v5, v4
        v_add_u32 v9, 10240, v8
        v_add_u32 v10, 20480, v8
        v_add_u32 v11, 30720, v8
        s_lshl_b32 s48, s25, 12
        s_add_u32 s49, s48, 1024
        s_add_u32 s50, s48, 2048
        s_add_u32 s51, s48, 3072
        s_mov_b32 s60, 0
        """)
        self.rot10("s59")
        p("s_lshl_b32 s61, s59, 7")
        p(f"s_mul_i32 s62, s59, {wstep}")
        p("s_mul_i32 s66, s59, 245760")
        for b in range(4):
            p(f"s_mov_b32 m0, s{SD+b}")
            p(f"buffer_load_dwordx4 v{VO+b}, s[32:35], s61 offen lds")
        if kind == 'kv':
            p("s_mul_i32 s44, s27, 160"); p("s_add_u32 s44, s44, 1280")
            p("s_add_u32 s36, s6, s44"); p("s_addc_u32 s37, s7, 0"); p("s_sub_u32 s38, 2457600, s44")
        else:
            p("s_mul_i32 s44, s27, 384")
            p("s_add_u32 s36, s12, s44"); p("s_addc_u32 s37, s13, 0"); p("s_sub_u32 s38, 1966080, s44")
        p("s_mov_b32 s39, 0x20000")
        def seg_pattern(dst):
            p(f"""
            v_mul_u32_u24 v3, 6554, v2
            v_lshrrev_b32 v3, 16, v3
            v_mul_u32_u24 v4, 10, v3
            v_sub_u32 v4, v2, v4
            v_and_b32 v5, 0x33, v3
            v_and_b32 v6, 4, v3
            v_lshl_or_b32 v5, v6, 1, v5
            v_and_b32 v6, 8, v3
            v_lshrrev_b32 v6, 1, v6
            v_or_b32 v5, v5, v6
            v_mul_u32_u24 v5, 3840, v5
            v_lshl_add_u32 v{dst}, v4, 4, v5
            """)
        if kind == 'kv':
            for a in range(5):
                p(f"""
                s_add_u32 s44, s25, {4*a}
                s_cmp_ge_u32 s44, 10
                s_cselect_b32 s45, 1, 0
                s_mul_i32 s46, s45, 10
                s_sub_u32 s46, s44, s46
                s_lshl_b32 s47, s46, 6
                v_add_u32 v2, s47, v1
                """)
                seg_pattern(VO+4+a)
                p(f"""
                s_mul_i32 s47, s45, 1280
                v_add_u32 v{VO+4+a}, s47, v{VO+4+a}
                s_mul_i32 s47, s45, {SEG}
                s_lshl_b32 s46, s46, 10
                s_add_u32 s47, s47, s46
                s_add_u32 s{SD+4+a}, s47, 16384
                s_mov_b32 m0, s{SD+4+a}
                buffer_load_dwordx4 v{VO+4+a}, s[36:39], s62 offen lds
                """)
        else:
            for a in range(6):
                pat = a % 3
                p(f"""
                v_add_u32 v2, {64*pat}, v1
                v_mul_u32_u24 v3, 2731, v2
                v_lshrrev_b32 v3, 16, v3
                v_mul_u32_u24 v4, 24, v3
                v_sub_u32 v4, v2, v4
                v_and_b32 v5, 6, v3
                v_xor_b32 v4, v4, v5
                v_lshrrev_b32 v5, 2, v3
                v_lshlrev_b32 v5, 3, v5
                v_and_b32 v6, 3, v3
                v_add_u32 v5, v5, v6
                s_lshl_b32 s44, s25, 4
                s_add_u32 s44, s44, {4*(a//3)}
                v_add_u32 v5, s44, v5
                v_mul_u32_u24 v5, 3072, v5
                v_lshl_add_u32 v{VO+4+a}, v4, 4, v5
                s_mul_i32 s44, s25, 6144
                s_add_u32 s{SD+4+a}, s44, {16384 + a*1024}
                s_mov_b32 m0, s{SD+4+a}
                buffer_load_dwordx4 v{VO+4+a}, s[36:39], s62 offen lds
                """)
        if kind == 'kv':
            p("s_mul_i32 s44, s27, 160")
            p("s_add_u32 s68, s6, s44"); p("s_addc_u32 s69, s7, 0"); p("s_sub_u32 s70, 2457600, s44"); p("s_mov_b32 s71, 0x20000")
            p("s_mul_i32 s44, s25, 160"); p("s_mul_i32 s67, s25, 2560"); p(f"s_add_u32 s67, s67, {QOFF}")
            for a in range(3):
                p(f"v_add_u32 v2, s44, v1")
                if a: p(f"v_add_u32 v2, {64*a}, v2")
                p("v_min_u32 v2, 639, v2")
                seg_pattern(20 + a)
        def issue_q(buf):
            if kind != 'kv' or cfg.noqdma: return
            for a in range(3):
                p(f"s_add_u32 m0, {buf}, s67") if a == 0 else p(f"s_add_u32 m0, m0, 1024")
                if a == 2: p("s_mov_b32 exec_hi, 0")
                p(f"buffer_load_dwordx4 v{20+a}, s[68:71], s66 offen lds")
                if a == 2: p("s_mov_b64 exec, -1")
        issue_q("s60")
        def advance():
            p(f"s_add_u32 s60, s60, {STG}")
            p(f"s_cmp_eq_u32 s60, {3*STG}")
            p("s_cselect_b32 s60, 0, s60")
            p("s_add_u32 s61, s61, 128")
            p(f"s_add_u32 s62, s62, {wstep}")
            p("s_add_u32 s66, s66, 245760")
            p("s_add_u32 s59, s59, 1")
            p("s_cmp_eq_u32 s59, 10")
            p("s_cselect_b32 s59, 0, s59")
            p("s_cselect_b32 s61, 0, s61")
            p("s_cselect_b32 s62, 0, s62")
            p("s_cselect_b32 s66, 0, s66")
        def issue():
            for i in range(4 + NW):
                p(f"s_add_u32 m0, s60, s{SD+i}")
                srd, so = ("s[32:35]", "s61") if i < 4 else ("s[36:39]", "s62")
                p(f"buffer_load_dwordx4 v{VO+i}, {srd}, {so} offen lds")
            issue_q("s60")
            advance()
        p("s_mov_b32 s96, s16"); p("s_mov_b32 s97, s17"); p("s_movk_i32 s98, 1280"); p("s_mov_b32 s99, 0x20000")
        p("v_lshlrev_b32 v2, 4, v1")
        p(f"s_mov_b32 m0, {GW}")
        p("buffer_load_dwordx4 v2, s[96:99], 0 offen lds")
        p("s_mov_b32 exec_lo, 0xffff"); p("s_mov_b32 exec_hi, 0")
        p("buffer_load_dwordx4 v2, s[96:99], 0 offen offset:1024 lds")
        p("s_mov_b64 exec, -1")
        advance()
        self.stamp(1)
        q = [("s0", n), ("gw", 2)]
        def push(tag, k): q.append((tag, k))
        def wait_for(tag):
            tags = [t for t, _ in q]
            if tag not in tags: return
            idx = tags.index(tag)
            p(f"s_waitcnt vmcnt({sum(k for _, k in q[idx+1:])})")
            del q[:idx+1]
        if cfg.early_s1:
            issue(); push("s1", n)
        wait_for("gw")
        self.stamp(2)
        p("s_barrier")
        if not cfg.early_s1:
            issue(); push("s1", n)
        issue(); push("s2", n)
        p(f"v_mov_b32 v2, {SY}")
        p(f"ds_read_b32 v3, v2 offset:{W_TAG}")
        p("s_waitcnt lgkmcnt(0)")
        p("v_readfirstlane_b32 s30, v3")
        for i in range(10):
            if i <= 8: wait_for(f"s{i+1}")
            p("s_barrier")
            if i == 0: self.stamp(3)
            if i <= 6: issue(); push(f"s{i+3}", n)
            if i == 0 and kind == 'h':
                p("s_lshl_b32 s44, s27, 13"); p("s_lshl_b32 s45, s26, 9"); p("s_add_u32 s44, s44, s45"); p(f"s_add_u32 s44, s44, {WS_KVS}")
                p("s_cmp_eq_u32 s25, 0"); p(f"s_cselect_b32 s44, s44, {OOB}")
                p("v_and_b32 v2, 31, v1"); p("v_lshlrev_b32 v2, 4, v2"); p("v_add_u32 v2, s44, v2")
                for e in range(4): p(f"v_mov_b32 v{32+e}, 0")
                p("s_mov_b32 exec_hi, 0")
                p("buffer_store_dwordx4 v[32:35], v2, s[40:43], 0 offen sc1")
                p("s_mov_b64 exec, -1")
                push("zs", 1)
            if i == 3 and kind == 'h':
                wait_for("zs")
                p("s_lshl_b32 s44, s27, 11"); p("s_lshl_b32 s45, s26, 7"); p("s_add_u32 s44, s44, s45"); p(f"s_add_u32 s58, s44, {F_KS}")
                p("s_cmp_eq_u32 s25, 0"); p(f"s_cselect_b32 s58, s58, {OOB}")
                self.flag_store("s58"); push("zf", 1)
            if i == 2:
                self.wpattern(26, 'lin', 1280)
                p("s_mul_i32 s44, s27, 160")
                p("s_add_u32 s96, s14, s44"); p("s_addc_u32 s97, s15, 0"); p("s_sub_u32 s98, 1966080, s44"); p("s_mov_b32 s99, 0x20000")
                self.t4_rot("s0", "s1")
                p("s_mul_i32 s64, s25, 12")
            if cfg.stouch and i in (2, 4, 6):
                if i == 2 or i == 4:
                    k0 = 0 if i == 2 else 8
                    p("s_mul_i32 s44, s2, 7680"); p("s_mul_i32 s45, s25, 1920"); p("s_add_u32 s44, s44, s45")
                    p("s_add_u32 s46, s14, s44"); p("s_addc_u32 s47, s15, 0")
                    for k in range(k0, min(15, k0 + 8)): p(f"s_load_dword s3, s[46:47], {128*k}")
                else:
                    p("s_mul_i32 s44, s2, 3200"); p("s_mul_i32 s45, s25, 800"); p("s_add_u32 s44, s44, s45")
                    p(f"s_min_u32 s44, s44, {819200 - 7*128}")
                    p("s_add_u32 s46, s8, s44"); p("s_addc_u32 s47, s9, 0")
                    for k in range(7): p(f"s_load_dword s3, s[46:47], {128*k}")
            if i == 5:
                p("v_min_u32 v2, 15, v1"); p("v_lshlrev_b32 v2, 2, v2")
                p("s_lshl_b32 s44, s26, 7"); p(f"s_add_u32 s44, s44, {F_X}")
                p("buffer_load_dword v31, v2, s[40:43], s44 offen sc1")
                push("xc", 1)
            if i == 6 and kind == 'kv':
                NZ = p.newlabel("L_nz")
                p("s_sub_u32 s3, s25, 1"); p("s_cmp_lt_u32 s3, 2"); p(f"s_cbranch_scc0 {NZ}")
                p("s_lshl_b32 s58, s27, 11"); p("s_lshl_b32 s44, s3, 10"); p("s_add_u32 s58, s58, s44"); p(f"s_add_u32 s58, s58, {F_KS}")
                self.poll_flags_safe("s58", 8)
                self.lds_signal(W_ZOK)
                p.label(NZ)
            if i == 7:
                wait_for("xc")
                p("s_getreg_b32 s45, hwreg(HW_REG_XCC_ID)"); p("s_and_b32 s45, s45, 7")
                p("s_and_b32 s44, s30, 0xfffffff0"); p("s_or_b32 s44, s44, 8"); p("s_or_b32 s44, s44, s45")
                p("v_cmp_eq_u32 vcc, s44, v31")
                p("s_nop 1")
                p("s_cmp_eq_u64 vcc, -1")
                p("s_cselect_b32 s72, 1, 2")
                p(f"v_mov_b32 v2, {SY}"); p("v_mov_b32 v3, s72")
                p(f"ds_write_b32 v2, v3 offset:{W_LOC}")
                p("s_waitcnt lgkmcnt(0)")
            if not cfg.t12only:
                if i == cfg.wpre[0]:
                    for j in (0, 1): self.h_wstep(j); push(f"w{j}", 5)
                if i == cfg.wpre[1]:
                    for j in (2, 3): self.h_wstep(j); push(f"w{j}", 5)
        if not cfg.t12only:
            wait_for("w1"); self.lds_signal(W_P01)
            wait_for("w3"); self.lds_signal(W_P23)

    def h_wstep(self, j):
        p = self.p
        p("s_add_u32 s44, s64, s0")
        p("s_add_u32 s0, s0, 1"); p("s_cmp_eq_u32 s0, 12"); p("s_cselect_b32 s0, 0, s0")
        p("s_mul_i32 s44, s44, 40960")
        p("s_mul_i32 s65, s25, 5120"); p(f"s_add_u32 s65, s65, {WBASE[j]}")
        self.wdma(26, "s[96:99]", "s44", "s65")

    def helper_post(self):
        p = self.p
        if self.cfg.t12only:
            p("s_waitcnt vmcnt(0)"); self.stamp_flush(8); p("s_branch L_end"); return
        self.stamp(4)
        N0 = p.newlabel("L_n0")
        p("s_cmp_eq_u32 s25, 0"); p(f"s_cbranch_scc0 {N0}")
        p(f"s_lshl_b32 s58, s26, 10"); p(f"s_add_u32 s58, s58, {F_H}")
        self.poll_flags("s58", 8)
        self.lds_signal(W_HR)
        self.stamp(5)
        p.label(N0)
        p("s_cmp_eq_u32 s28, 0"); p("s_cbranch_scc1 L_hp_kvcu")
        p("s_branch L_hp_or")
        p.label("L_hp_kvcu")
        N3x = p.newlabel("L_n3x")
        p("s_sub_u32 s59, s25, 1"); p("s_cmp_lt_u32 s59, 2"); p(f"s_cbranch_scc0 {N3x}")
        p("s_lshl_b32 s58, s27, 11"); p("s_lshl_b32 s44, s59, 10"); p("s_add_u32 s58, s58, s44"); p(f"s_add_u32 s58, s58, {F_KV}")
        self.poll_flags("s58", 8)
        self.lds_signal(W_KVF)
        p.label(N3x)
        self.lds_wait(W_KVF, 2)
        self.stamp2(4)
        p("v_lshrrev_b32 v2, 4, v1"); p("v_and_b32 v3, 15, v1")
        p(f"v_mov_b32 v7, {OOB}")
        p("v_add_u32 v4, 2, v2"); p("v_and_b32 v4, 3, v4"); p("v_lshrrev_b32 v5, 2, v3")
        p("v_cmp_eq_u32 s[56:57], v4, v5")
        VT = 8
        LA, LB, LE = [p.newlabel("L_kt") for _ in range(3)]
        p("v_lshlrev_b32 v4, 2, v1"); p("v_lshrrev_b32 v5, 1, v2"); p("v_lshlrev_b32 v6, 6, v2")
        p("s_cmp_ge_u32 s25, 2"); p(f"s_cbranch_scc1 {LA}")
        p("s_mul_i32 s44, s25, 3072")
        for i in range(3):
            p(f"v_add_u32 v{VT+i}, s44, v4")
            if i: p(f"v_add_u32 v{VT+i}, {1024*i}, v{VT+i}")
        p(f"s_branch {LE}")
        p.label(LA)
        p("s_cmp_eq_u32 s25, 2"); p(f"s_cbranch_scc0 {LB}")
        p("v_lshlrev_b32 v11, 10, v5"); p("v_add3_u32 v11, v11, v4, 0"); p("v_add_u32 v11, 6144, v11")
        p(f"v_cndmask_b32 v{VT}, v7, v11, s[56:57]")
        p(f"v_add_u32 v{VT+1}, {6144}, v6")
        p(f"v_add_u32 v{VT+2}, {6144+4}, v6")
        p(f"s_branch {LE}")
        p.label(LB)
        p(f"v_add_u32 v{VT}, {7168+32}, v6")
        p(f"v_add_u32 v{VT+1}, {7168+36}, v6")
        p(f"v_mul_u32_u24 v11, {1024+32}, v5")
        p(f"v_add3_u32 v{VT+2}, v11, v6, 0"); p(f"v_add_u32 v{VT+2}, {6144+16}, v{VT+2}")
        p.label(LE)
        SUM = 16
        p(f"s_lshl_b32 s48, s27, 13"); p(f"s_add_u32 s48, s48, {WS_KVS}")
        for i in range(3):
            for e in range(4):
                p(f"buffer_load_dword v{SUM+4*i+e}, v{VT+i}, s[40:43], s48 offen offset:{256*e} sc1")
        p("s_waitcnt vmcnt(0)")
        self.stamp2(5)
        p("s_mul_i32 s44, s25, 1536"); p(f"s_add_u32 s44, s44, {KVT}")
        p("v_lshlrev_b32 v4, 3, v1"); p("v_add_u32 v5, s44, v4")
        for i in range(3):
            p(f"v_cvt_pk_bf16_f32 v{SUM+4*i}, v{SUM+4*i}, v{SUM+4*i+1}")
            p(f"v_cvt_pk_bf16_f32 v{SUM+4*i+1}, v{SUM+4*i+2}, v{SUM+4*i+3}")
            p(f"ds_write_b64 v5, v[{SUM+4*i}:{SUM+4*i+1}] offset:{i*512}")
        p("s_waitcnt lgkmcnt(0)")
        self.lds_signal(W_KVR)
        self.lds_wait(W_KVR, 4)
        self.stamp(6)
        self.stamp2(6)
        TT = 68
        p("v_lshlrev_b32 v5, 3, v1"); p(f"v_add_u32 v5, {KVT}, v5")
        for tau in range(12): p(f"ds_read_b64 v[{TT+2*tau}:{TT+2*tau+1}], v5 offset:{tau*512}")
        p("v_lshrrev_b32 v2, 4, v1"); p("v_and_b32 v3, 15, v1"); p("v_lshrrev_b32 v5, 2, v3")
        for h in range(4):
            p(f"v_cmp_eq_u32 s[{56+2*h}:{57+2*h}], {h}, v2")
            p(f"v_cmp_eq_u32 s[{64+2*h}:{65+2*h}], {(h+2)&3}, v5")
        p("s_waitcnt lgkmcnt(0)")
        KVt = lambda h: TT + 2*h
        EXL, E0H, XXt = TT + 8, TT + 10, TT + 12
        ZL = lambda h: TT + 14 + 2*h
        ZH = TT + 22
        FR = 96
        for h in range(4):
            e0 = FR + 12*h; ex = e0 + 4; dn = e0 + 8
            mg, mr = f"s[{56+2*h}:{57+2*h}]", f"s[{64+2*h}:{65+2*h}]"
            p(f"v_mov_b32 v{e0}, v{KVt(h)}"); p(f"v_mov_b32 v{e0+1}, v{KVt(h)+1}")
            p(f"v_cndmask_b32 v{e0+2}, 0, v{E0H}, {mg}"); p(f"v_cndmask_b32 v{e0+3}, 0, v{E0H+1}, {mg}")
            p(f"v_cndmask_b32 v{ex}, 0, v{EXL}, {mr}"); p(f"v_cndmask_b32 v{ex+1}, 0, v{EXL+1}, {mr}")
            p(f"v_cndmask_b32 v{ex+2}, 0, v{XXt}, {mr}"); p(f"v_cndmask_b32 v{ex+3}, 0, v{XXt+1}, {mr}")
            p(f"v_mov_b32 v{dn}, v{ZL(h)}"); p(f"v_mov_b32 v{dn+1}, v{ZL(h)+1}")
            p(f"v_cndmask_b32 v{dn+2}, 0, v{ZH}, {mg}"); p(f"v_cndmask_b32 v{dn+3}, 0, v{ZH+1}, {mg}")
        self.lds_wait(W_BQ, 4, vtmp=(6, 7))
        for k in range(2):
            BQ = 16 if k == 0 else 32
            p(f"s_lshl_b32 s44, s25, 1"); p(f"s_add_u32 s44, s44, {k}")
            p("s_and_b32 s45, s44, 3"); p("s_mul_i32 s45, s45, 2560")
            p(f"s_mov_b32 s46, {BQL1}"); p("s_cmp_lt_u32 s44, 4"); p(f"s_cselect_b32 s46, {BQL0}, s46"); p("s_add_u32 s45, s45, s46")
            p("v_lshlrev_b32 v4, 3, v1"); p("v_add_u32 v5, s45, v4")
            for h in range(4):
                p(f"ds_read_b64 v[{BQ+4*h}:{BQ+4*h+1}], v5 offset:{h*512}")
                p(f"ds_read_b64 v[{BQ+4*h+2}:{BQ+4*h+3}], v5 offset:2048")
        p("v_lshlrev_b32 v4, 4, v1")
        p("s_waitcnt lgkmcnt(0)")
        NUM = 48; DN = 64; EXO = 80; RR = 144; OO = 84
        for k in range(2):
            BQ = 16 if k == 0 else 32
            bq = lambda h: vr(BQ + 4*h, 4)
            for h in range(4):
                e0 = FR + 12*h
                p(f"v_mfma_f32_16x16x32_bf16 {vr(NUM+4*h,4)}, {vr(e0,4)}, {bq(h)}, 0")
                p(f"v_mfma_f32_16x16x32_bf16 {vr(DN+4*h,4)}, {vr(e0+8,4)}, {bq(h)}, 0")
                c = "0" if h == 0 else vr(EXO, 4)
                p(f"v_mfma_f32_16x16x32_bf16 {vr(EXO,4)}, {vr(e0+4,4)}, {bq(h)}, {c}")
            p(f"s_mov_b32 s44, {EPS6}")
            for h in range(4): p(f"v_add_f32 v{RR+h}, s44, v{DN+4*h}")
            for h in range(4): p(f"v_rcp_f32 v{RR+h}, v{RR+h}")
            p(f"v_cndmask_b32 v{RR+4}, v{RR}, v{RR+2}, s[56:57]")
            p(f"v_cndmask_b32 v{RR+4}, v{RR+4}, v{RR+3}, s[58:59]")
            p(f"v_cndmask_b32 v{RR+4}, v{RR+4}, v{RR+1}, s[62:63]")
            for h in range(4):
                for i in range(4): p(f"v_mul_f32 v{NUM+4*h+i}, v{NUM+4*h+i}, v{RR+h}")
            for i in range(4): p(f"v_mul_f32 v{EXO+i}, v{EXO+i}, v{RR+4}")
            O_ = OO if k == 0 else 148
            for h in range(4):
                p(f"v_cvt_pk_bf16_f32 v{O_+2*h}, v{NUM+4*h}, v{NUM+4*h+1}")
                p(f"v_cvt_pk_bf16_f32 v{O_+2*h+1}, v{NUM+4*h+2}, v{NUM+4*h+3}")
            p(f"v_cvt_pk_bf16_f32 v{O_+8}, v{EXO}, v{EXO+1}")
            p(f"v_cvt_pk_bf16_f32 v{O_+9}, v{EXO+2}, v{EXO+3}")
            p("s_lshl_b32 s50, s26, 3"); p("s_lshl_b32 s44, s25, 1"); p("s_add_u32 s50, s50, s44"); p(f"s_add_u32 s50, s50, {k}")
            p(f"""
            s_mul_i32 s44, s50, {AP_ST}
            s_add_u32 s44, s44, {WS_AP}
            s_lshl_b32 s45, s27, 11
            s_add_u32 s45, s45, s44
            s_add_u32 s45, s45, {48*1024}
            v_add_u32 v5, s45, v4
            s_lshr_b32 s45, s27, 1
            s_lshl_b32 s45, s45, 10
            s_and_b32 s46, s27, 1
            s_lshl_b32 s46, s46, 3
            s_add_u32 s45, s45, s46
            s_add_u32 s45, s45, s44
            s_add_u32 s45, s45, {64*1024}
            v_add_u32 v6, s45, v4
            """)
            p(f"buffer_store_dwordx4 v[{O_}:{O_+3}], v5, s[40:43], 0 offen sc1")
            p(f"buffer_store_dwordx4 v[{O_+4}:{O_+7}], v5, s[40:43], 0 offen offset:1024 sc1")
            p(f"buffer_store_dwordx2 v[{O_+8}:{O_+9}], v6, s[40:43], 0 offen sc1")
        p("s_waitcnt vmcnt(0)")
        p("s_lshl_b32 s44, s26, 10"); p("s_lshl_b32 s45, s27, 7"); p("s_add_u32 s44, s44, s45"); p(f"s_add_u32 s58, s44, {F_O}")
        self.publish_last(W_PUB2, 4, "s58")
        self.stamp2(7)
        p.label("L_hp_or")
        N1 = p.newlabel("L_n1")
        p("s_cmp_eq_u32 s25, 0"); p(f"s_cbranch_scc0 {N1}")
        p(f"s_lshl_b32 s58, s26, 10"); p(f"s_add_u32 s58, s58, {F_O}")
        self.poll_flags("s58", 8)
        self.lds_signal(W_OR)
        self.stamp(7)
        p.label(N1)
        p("s_waitcnt lgkmcnt(0)")
        self.stamp_flush(8)
        p("s_branch L_end")

    def compute_path(self):
        p = self.p; cfg = self.cfg
        p("s_cmp_eq_u32 s25, 0"); p("s_cbranch_scc0 L_c_n0")
        p("v_lshlrev_b32 v3, 2, v1"); p(f"v_add_u32 v3, {SY}, v3"); p("v_mov_b32 v4, 0")
        p("s_mov_b64 exec, -2")
        p("ds_write_b32 v3, v4")
        p("s_mov_b64 exec, -1")
        p("s_cmp_eq_u32 s2, 0"); p("s_cbranch_scc0 L_c_n0")
        p("s_memrealtime s[44:45]")
        p("s_mov_b32 s96, s20"); p("s_mov_b32 s97, s21"); p("s_movk_i32 s98, 256"); p("s_mov_b32 s99, 0x20000")
        p("s_waitcnt lgkmcnt(0)")
        p("s_or_b32 s44, s44, 1")
        p("v_mov_b32 v3, s44"); p("v_mov_b32 v4, 0")
        p("s_mov_b64 exec, 1")
        p("buffer_store_dword v3, v4, s[96:99], 0 offen sc1")
        p("s_mov_b64 exec, -1")
        p.label("L_c_n0")
        p("s_cmp_eq_u32 s25, 3"); p("s_cbranch_scc0 L_c_n3")
        p("s_mov_b64 exec, 0xff")
        p("s_lshl_b32 s44, s31, 10")
        p("v_lshlrev_b32 v3, 7, v1"); p("v_add_u32 v3, s44, v3")
        p(f"v_min_u32 v3, CODE_BYTES_M, v3")
        p(f"global_load_dword v31, v3, s[74:75]")
        p("s_mov_b64 exec, -1")
        p("s_mov_b32 s96, s20"); p("s_mov_b32 s97, s21"); p("s_movk_i32 s98, 256"); p("s_mov_b32 s99, 0x20000")
        p("v_mov_b32 v4, 0")
        p(f"s_mov_b32 s47, {POLL_MAX*4}")
        p.label("L_c_tag")
        p("buffer_load_dword v3, v4, s[96:99], 0 offen sc1")
        p("s_waitcnt vmcnt(0)")
        p("v_readfirstlane_b32 s44, v3")
        p("s_cmp_lg_u32 s44, 0"); p("s_cbranch_scc1 L_c_tagd")
        p("s_sub_u32 s47, s47, 1"); p("s_cmp_lg_u32 s47, 0"); p("s_cbranch_scc1 L_c_tag")
        p.label("L_c_tagd")
        p(f"v_mov_b32 v2, {SY}")
        p(f"ds_write_b32 v2, v3 offset:{W_TAG}")
        p("s_getreg_b32 s45, hwreg(HW_REG_XCC_ID)")
        p("s_and_b32 s45, s45, 7")
        p("s_and_b32 s44, s44, 0xfffffff0"); p("s_or_b32 s44, s44, 8"); p("s_or_b32 s44, s44, s45")
        p("s_lshl_b32 s45, s26, 7"); p("s_lshl_b32 s46, s28, 5"); p("s_add_u32 s45, s45, s46")
        p("s_lshl_b32 s46, s27, 2"); p("s_add_u32 s45, s45, s46"); p(f"s_add_u32 s45, s45, {F_X}")
        p("v_mov_b32 v4, s45"); p("v_mov_b32 v5, s44")
        p("s_mov_b64 exec, 1")
        p("buffer_store_dword v5, v4, s[40:43], 0 offen sc1")
        p("s_mov_b64 exec, -1")
        p.label("L_c_n3")
        p("s_cmp_eq_u32 s28, 0")
        p("s_cbranch_scc0 L_c_h")
        self.t12_compute('kv')
        p("s_branch L_c_t4")
        p.label("L_c_h")
        self.t12_compute('h')
        p.label("L_c_t4")
        self.t4()
        p("s_branch L_end")

    def t12_compute(self, kind):
        p = self.p
        typ = 0 if kind == 'kv' else 1
        NT = 5 if kind == 'kv' else 6
        SETSZ = 16 + 4 * NT
        ACC = 32
        def xf(s, st): return SETSZ * s + 4 * st
        def wf(s, t): return SETSZ * s + 16 + 4 * t
        def acc(t, st): return ACC + (t * 4 + st) * 4
        if kind == 'kv':
            QACC = lambda i, st: 112 + (i*4 + st)*4
            QXACC = lambda k: 144 + 4*k
            GACC = 152
            QF = [72, 76, 80]; GF = 84
            NACC = 124
        else:
            GACC = 128; GF = 80; NACC = 100
        p("""
        s_lshr_b32 s48, s25, 1
        s_and_b32 s49, s25, 1
        v_lshrrev_b32 v2, 4, v1
        v_bfe_u32 v3, v1, 2, 2
        v_and_b32 v4, 3, v1
        v_bfe_u32 v5, v1, 3, 1
        s_lshl_b32 s44, s48, 3
        v_add_u32 v5, s44, v5
        v_lshlrev_b32 v5, 10, v5
        v_and_b32 v6, 7, v1
        v_lshl_add_u32 v5, v6, 7, v5
        v_xor_b32 v7, v2, v6
        v_lshl_add_u32 v8, v7, 4, v5
        v_xor_b32 v7, 4, v7
        v_lshl_add_u32 v9, v7, 4, v5
        v_lshrrev_b32 v5, 1, v2
        v_lshlrev_b32 v5, 4, v5
        v_and_b32 v6, 1, v2
        v_lshl_add_u32 v5, v6, 2, v5
        v_add_u32 v5, v5, v3
        """)
        self.rot10("s53")
        p("s_lshl_b32 s44, s53, 7"); p(f"s_add_u32 s44, s44, {GW}")
        p("v_lshlrev_b32 v19, 4, v2"); p("v_add_u32 v19, s44, v19")
        if kind == 'kv':
            p(f"""
            v_mul_u32_u24 v6, 160, v5
            v_add_u32 v7, {QOFF}, v6
            s_mul_i32 s44, s49, 80
            v_lshlrev_b32 v16, 3, v4
            v_add3_u32 v16, v16, v7, s44
            v_mul_u32_u24 v17, 40, v4
            v_add3_u32 v17, v17, v7, 32
            v_add_u32 v6, 16384, v6
            v_lshlrev_b32 v7, 3, v4
            v_add3_u32 v10, v6, v7, s44
            v_lshrrev_b32 v7, 1, v4
            v_xor_b32 v7, s49, v7
            v_mul_u32_u24 v7, {SEG}, v7
            v_and_b32 v13, 1, v4
            v_mul_u32_u24 v13, 40, v13
            v_add3_u32 v13, v13, v6, s44
            v_add3_u32 v11, v13, v7, 32
            """)
            def wread(t, s, b2):
                ro = (32 * s + 8 * b2) * 160
                if t in (0, 1): return ("v10", 40 * t + ro)
                if t in (2, 3): return ("v10", SEG + 40 * (t - 2) + ro)
                return ("v11", ro)
            addr_regs = [8, 9, 10, 11, 16, 17]
            transposed = lambda t: False
        else:
            p(f"""
            v_mul_u32_u24 v6, 384, v5
            v_add_u32 v6, 16384, v6
            v_and_b32 v7, 1, v4
            v_lshl_add_u32 v6, v7, 3, v6
            v_and_b32 v7, 6, v5
            v_lshrrev_b32 v20, 1, v4
            s_mul_i32 s44, s49, 12
            v_add_u32 v20, s44, v20
            """)
            for t in range(6):
                p(f"""
                v_add_u32 v21, {2*t}, v20
                v_xor_b32 v21, v21, v7
                v_lshl_add_u32 v{10+t}, v21, 4, v6
                """)
            def wread(t, s, b2): return (f"v{10+t}", (32 * s + 8 * b2) * 384)
            addr_regs = [8, 9, 10, 11, 12, 13, 14, 15]
            transposed = lambda t: True
        def base_reads(s_dst, s_k):
            vx = "v8" if s_k == 0 else "v9"
            xs = [f"ds_read_b128 {ar(xf(s_dst, st), 4)}, {vx} offset:{st*2048}" for st in range(4)]
            ws = []
            for t in range(NT):
                for b2 in range(2):
                    a, off = wread(t, s_k, b2)
                    ws.append(f"ds_read_b64_tr_b16 {ar(wf(s_dst, t) + 2*b2, 2)}, {a} offset:{off}")
            return [xs[0]] + ws[:4] + [xs[1]] + ws[4:8] + [xs[2]] + ws[8:10] + [xs[3]] + ws[10:]
        def q_reads(s_k):
            L = []
            if kind == 'kv' and not self.cfg.noqread:
                for b2 in range(2):
                    ro = (32 * s_k + 8 * b2) * 160
                    L.append(f"ds_read_b64_tr_b16 {ar(QF[0]+2*b2, 2)}, v16 offset:{ro}")
                    L.append(f"ds_read_b64_tr_b16 {ar(QF[1]+2*b2, 2)}, v16 offset:{ro + 40}")
                    L.append(f"ds_read_b64_tr_b16 {ar(QF[2]+2*b2, 2)}, v17 offset:{ro}")
            L.append(f"ds_read_b128 {ar(GF, 4)}, v19 offset:{64*s_k}")
            return L
        def base_mfmas(s):
            L = []
            for st in range(4):
                for t in range(NT):
                    A, B = (ar(wf(s, t), 4), ar(xf(s, st), 4)) if transposed(t) else (ar(xf(s, st), 4), ar(wf(s, t), 4))
                    c = vr(acc(t, st), 4)
                    L.append(f"v_mfma_f32_16x16x32_bf16 {c}, {A}, {B}, {c}")
            return L
        def q_mfmas(s):
            if self.cfg.noqread: return
            if kind == 'kv':
                for st in range(4):
                    for i in range(2):
                        c = vr(QACC(i, st), 4)
                        p(f"v_mfma_f32_16x16x32_bf16 {c}, {ar(QF[i],4)}, {ar(xf(s, st),4)}, {c}")
            LA, LB = p.newlabel("L_qm"), p.newlabel("L_qm")
            p("s_cmp_eq_u32 s49, 0"); p(f"s_cbranch_scc0 {LA}")
            for ch in range(2):
                if ch == 1: p.label(LA)
                if kind == 'kv':
                    for k in range(2):
                        c = vr(QXACC(k), 4)
                        p(f"v_mfma_f32_16x16x32_bf16 {c}, {ar(QF[2],4)}, {ar(xf(s, 2*ch + k),4)}, {c}")
                c = vr(GACC, 4)
                p(f"v_mfma_f32_16x16x32_bf16 {c}, {ar(GF,4)}, {ar(xf(s, 2*typ + ch),4)}, {c}")
                if ch == 0: p(f"s_branch {LB}")
            p.label(LB)
        def phase(s, rd, extra=()):
            q_mfmas(s)
            M = base_mfmas(s); other = list(rd) + list(extra)
            k = 0
            for i, m in enumerate(M):
                if not self.cfg.nomfma: p(m)
                for _ in range(2):
                    if k < len(other): p(other[k]); k += 1
            while k < len(other): p(other[k]); k += 1
        for i in range(NACC): p(f"v_mov_b32 v{ACC+i}, 0")
        p("s_mov_b32 s50, 0"); p("s_mov_b32 s51, 10"); p(f"s_mov_b32 s55, {STG}"); p("s_movk_i32 s54, 128")
        p("s_waitcnt lgkmcnt(0)")
        self.stamp(1)
        p("s_barrier")
        p(f"v_mov_b32 v2, {SY}")
        p(f"ds_read_b32 v3, v2 offset:{W_TAG}")
        for r in base_reads(0, 0) + q_reads(0): p(r)
        p("s_waitcnt lgkmcnt(0)")
        p("v_readfirstlane_b32 s30, v3")
        self.stamp(2)
        L = f"L_t12_loop_{kind}"
        p.label(L)
        upd = ["s_add_u32 s50, s50, 1", "s_cmp_eq_u32 s50, 3",
               f"s_cselect_b32 s52, {(-2*STG) & 0xffffffff}, s55", "s_cselect_b32 s50, 0, s50"] + \
              [f"v_add_u32 v{r}, s52, v{r}" for r in addr_regs] + \
              ["s_add_u32 s53, s53, 1", "s_cmp_eq_u32 s53, 10", f"s_cselect_b32 s52, {(-1152) & 0xffffffff}, s54", "s_cselect_b32 s53, 0, s53",
               "v_add_u32 v19, s52, v19"]
        phase(0, q_reads(1) + base_reads(1, 1), upd)
        p("s_waitcnt lgkmcnt(0)")
        p("s_barrier")
        phase(1, q_reads(0) + base_reads(0, 0))
        p("s_waitcnt lgkmcnt(0)")
        p("s_sub_u32 s51, s51, 1"); p("s_cmp_lg_u32 s51, 0"); p(f"s_cbranch_scc1 {L}")
        self.stamp(3)
        self.stamp2(1)
        if self.cfg.t12only:
            for k in range(4, 10): self.stamp(k)
            self.stamp_flush(10)
            p("s_branch L_end")
        p("s_waitcnt vmcnt(0)")
        p("v_lshlrev_b32 v18, 4, v1")
        if kind == 'h':
            self.epilogue_h(acc, last=True)
            self.epilogue_gate(GACC)
        else:
            self.epilogue_kv(acc)
            self.epilogue_gate(GACC)
            self.epilogue_q(QACC, QXACC)
        p("s_waitcnt vmcnt(0)")
        if kind == 'h':
            p("s_lshl_b32 s44, s26, 10"); p("s_lshl_b32 s45, s27, 7"); p("s_add_u32 s44, s44, s45"); p(f"s_add_u32 s44, s44, {F_H}")
        else:
            p("s_lshl_b32 s44, s27, 11"); p("s_lshl_b32 s45, s26, 7"); p("s_add_u32 s44, s44, s45"); p(f"s_add_u32 s44, s44, {F_KV}")
        self.publish_last(W_PUB1, 4, "s44")
        self.stamp(4)
        self.stamp2(2)

    def epilogue_gate(self, GACC):
        p = self.p
        p(f"s_mov_b32 s58, {LOG2E}")
        p(f"v_mul_f32 v6, s58, v{GACC}")
        p("v_sub_f32 v6, 0, v6")
        p("s_mov_b32 s59, 0x42700000")
        p("v_min_f32 v6, s59, v6")
        p("v_exp_f32 v6, v6")
        p("v_add_f32 v7, 1.0, v6"); p("v_rcp_f32 v7, v7")
        p("s_lshl_b32 s44, s25, 6")
        p("v_and_b32 v5, 15, v1"); p("v_lshlrev_b32 v5, 2, v5"); p("v_add_u32 v5, s44, v5")
        p(f"v_add_u32 v5, {GL}, v5")
        p("ds_write_b32 v5, v7")
        p(f"ds_write_b32 v5, v6 offset:{GR-GL}")
        p("s_waitcnt lgkmcnt(0)")
        self.lds_signal(W_GT)

    def epilogue_q(self, QACC, QXACC):
        p = self.p
        regs = [QACC(i, st) + e for i in range(2) for st in range(4) for e in range(4)] + [QXACC(k) + e for k in range(2) for e in range(4)]
        tmp = [32 + (t*4 + st)*4 + e for t in range(5) for st in (0, 2) for e in range(4)]
        p(f"s_mov_b32 s58, {LOG2E}"); p(f"s_mov_b32 s59, {EPS6}")
        for a, t in zip(regs, tmp): p(f"v_mul_f32 v{t}, s58, v{a}")
        for a, t in zip(regs, tmp): p(f"v_exp_f32 v{t}, v{t} clamp")
        for a in regs: p(f"v_max_f32 v{a}, 0, v{a}")
        for a in regs: p(f"v_add_f32 v{a}, s59, v{a}")
        for a, t in zip(regs, tmp): p(f"v_add_f32 v{a}, v{a}, v{t}")
        p(f"s_mov_b32 s44, {BQL1}"); p("s_cmp_eq_u32 s48, 0"); p(f"s_cselect_b32 s44, {BQL0}, s44")
        p("s_lshl_b32 s45, s49, 10"); p("s_add_u32 s45, s45, s44")
        p("v_lshlrev_b32 v5, 3, v1"); p("v_add_u32 v6, s45, v5")
        for i in range(2):
            for st in range(4):
                a = QACC(i, st)
                p(f"v_cvt_pk_bf16_f32 v{a}, v{a}, v{a+1}"); p(f"v_cvt_pk_bf16_f32 v{a+1}, v{a+2}, v{a+3}")
                p(f"ds_write_b64 v6, v[{a}:{a+1}] offset:{st*2560 + i*512}")
        p("s_mul_i32 s45, s49, 5120"); p("s_add_u32 s45, s45, s44"); p("v_add_u32 v6, s45, v5")
        for k in range(2):
            a = QXACC(k)
            p(f"v_cvt_pk_bf16_f32 v{a}, v{a}, v{a+1}"); p(f"v_cvt_pk_bf16_f32 v{a+1}, v{a+2}, v{a+3}")
            p(f"ds_write_b64 v6, v[{a}:{a+1}] offset:{k*2560 + 2048}")
        p("s_waitcnt lgkmcnt(0)")
        self.lds_signal(W_BQ)

    def epilogue_h(self, acc, last):
        p = self.p
        p(f"""
        s_lshl_b32 s44, s26, 3
        s_lshl_b32 s45, s48, 2
        s_add_u32 s44, s44, s45
        s_mul_i32 s44, s44, {AP_ST}
        s_mul_i32 s45, s27, 6
        s_mul_i32 s46, s49, 3
        s_add_u32 s45, s45, s46
        s_lshl_b32 s45, s45, 10
        s_add_u32 s44, s44, s45
        s_add_u32 s44, s44, {WS_AP}
        v_add_u32 v5, s44, v18
        """)
        self.read_loc()
        for st in range(4):
            for pp in range(3):
                a0, a1 = acc(2*pp, st), acc(2*pp+1, st)
                p(f"v_cvt_pk_bf16_f32 v{a0}, v{a0}, v{a0+1}")
                p(f"v_cvt_pk_bf16_f32 v{a0+1}, v{a0+2}, v{a0+3}")
                p(f"v_cvt_pk_bf16_f32 v{a0+2}, v{a1}, v{a1+1}")
                p(f"v_cvt_pk_bf16_f32 v{a0+3}, v{a1+2}, v{a1+3}")
                for i in range(4): p(f"v_pk_max_i16 v{a0+i}, v{a0+i}, 0")
        for st in range(1, 4): p(f"v_add_u32 v{7+st}, {AP_ST*st}, v5")
        p("v_mov_b32 v7, v5")
        def stores(sc):
            for st in range(4):
                for pp in range(3):
                    a0 = acc(2*pp, st)
                    p(f"buffer_store_dwordx4 v[{a0}:{a0+3}], v{7+st}, s[40:43], 0 offen offset:{pp*1024}{sc}")
        self.dual(stores)

    def epilogue_kv(self, acc):
        p = self.p
        K0, K1, V0, V1, X = range(5)
        p(f"s_mov_b32 s53, {LOG2E}"); p(f"s_mov_b32 s54, {EPS6}")
        p("v_lshrrev_b32 v2, 4, v1"); p("v_and_b32 v3, 15, v1")
        p("v_lshrrev_b32 v4, 3, v3"); p("v_cmp_eq_u32 s[56:57], s49, v4")
        p("v_lshrrev_b32 v7, 1, v2"); p("v_cmp_eq_u32 s[58:59], s49, v7")
        T0 = 20
        def phi_group(regs, tm):
            for i, a in enumerate(regs): p(f"v_mul_f32 v{tm+i}, s53, v{a}")
            for i, a in enumerate(regs): p(f"v_exp_f32 v{tm+i}, v{tm+i} clamp")
            for i, a in enumerate(regs): p(f"v_max_f32 v{a}, 0, v{a}")
            for i, a in enumerate(regs): p(f"v_add_f32 v{a}, s54, v{a}")
            for i, a in enumerate(regs): p(f"v_add_f32 v{a}, v{a}, v{tm+i}")
        for st in range(4):
            phi_group([acc(K0, st)+i for i in range(4)] + [acc(K1, st)+i for i in range(4)], T0)
            a = acc(X, st); tm = T0
            for i in range(4): p(f"v_mul_f32 v{tm+i}, s53, v{a+i}")
            for i in range(4): p(f"v_exp_f32 v{tm+i}, v{tm+i} clamp")
            for i in range(4): p(f"v_max_f32 v{tm+4+i}, 0, v{a+i}")
            for i in range(4): p(f"v_add_f32 v{tm+4+i}, s54, v{tm+4+i}")
            for i in range(4): p(f"v_add_f32 v{tm+4+i}, v{tm+4+i}, v{tm+i}")
            for i in range(4): p(f"v_cndmask_b32 v{a+i}, v{a+i}, v{tm+4+i}, s[56:57]")
        for t in (K0, K1, V0, V1, X):
            for kk in range(2):
                a, b = acc(t, 2*kk), acc(t, 2*kk+1)
                p(f"v_cvt_pk_bf16_f32 v{a}, v{a}, v{a+1}")
                p(f"v_cvt_pk_bf16_f32 v{a+1}, v{a+2}, v{a+3}")
                p(f"v_cvt_pk_bf16_f32 v{a+2}, v{b}, v{b+1}")
                p(f"v_cvt_pk_bf16_f32 v{a+3}, v{b+2}, v{b+3}")
        fr = lambda t, kk: vr(acc(t, 2*kk), 4)
        free = [acc(t, s) for t in (K0, K1, V0, V1, X) for s in (1, 3)]
        KV0, KV1, KX0, KX1, XV0, XV1, XX, Z0, Z1, ZX = free
        ONES = T0
        for i in range(4): p(f"v_mov_b32 v{ONES+i}, 0x3f803f80")
        ones = vr(ONES, 4)
        for kk in range(2):
            for (d, A, B) in ((KV0, fr(K0,kk), fr(V0,kk)), (KV1, fr(K1,kk), fr(V1,kk)), (KX0, fr(K0,kk), fr(X,kk)),
                              (KX1, fr(K1,kk), fr(X,kk)), (XV0, fr(X,kk), fr(V0,kk)), (XV1, fr(X,kk), fr(V1,kk)),
                              (XX, fr(X,kk), fr(X,kk)), (Z0, fr(K0,kk), ones), (Z1, fr(K1,kk), ones), (ZX, fr(X,kk), ones)):
                c = "0" if kk == 0 else vr(d, 4)
                p(f"v_mfma_f32_16x16x32_bf16 {vr(d,4)}, {A}, {B}, {c}")
        p("v_bfe_u32 v4, v3, 2, 1"); p("v_cmp_eq_u32 s[60:61], 1, v4")
        p("v_and_b32 v4, 1, v2"); p("v_cmp_eq_u32 s[62:63], 1, v4")
        p("v_and_b32 v4, 1, v3"); p("v_cmp_eq_u32 s[64:65], 1, v4")
        for i in range(4): p(f"v_cndmask_b32 v{KX0+i}, v{KX0+i}, v{KX1+i}, s[60:61]")
        for i in range(4): p(f"v_cndmask_b32 v{XV0+i}, v{XV0+i}, v{XV1+i}, s[62:63]")
        for i in range(4): p(f"v_cndmask_b32 v{Z0+i}, v{Z0+i}, v{Z1+i}, s[64:65]")
        p("s_lshl_b32 s44, s49, 2"); p("v_lshrrev_b32 v4, 1, v3"); p("v_cmp_eq_u32 s[60:61], s44, v4")
        p("s_lshl_b32 s44, s49, 3"); p("s_add_u32 s44, s44, 4"); p("v_cmp_eq_u32 s[62:63], s44, v3")
        for i in range(4): p(f"v_cndmask_b32 v{XX+i}, v{XX+i}, v{Z0+i}, s[60:61]")
        for i in range(4): p(f"v_cndmask_b32 v{XX+i}, v{XX+i}, v{ZX+i}, s[62:63]")
        tiles = [KV0, KV1, KX0, XV0, XX]
        p("s_mul_i32 s44, s49, 5120"); p(f"s_add_u32 s44, s44, {KVRED}")
        p("v_add_u32 v4, s44, v18")
        R0 = p.newlabel("L_kr")
        p("s_cmp_eq_u32 s48, 0"); p(f"s_cbranch_scc1 {R0}")
        for j, t in enumerate(tiles): p(f"ds_write_b128 v4, {vr(t,4)} offset:{j*1024}")
        p.label(R0)
        self.cbar(vtmp=(5, 6))
        TMs = [acc(t, 0) for t in range(5)]
        for j in range(5): p(f"ds_read_b128 {vr(TMs[j],4)}, v4 offset:{j*1024}")
        p("s_waitcnt lgkmcnt(0)")
        for j, t in enumerate(tiles):
            m = TMs[j]
            p(f"v_pk_add_f32 v[{t}:{t+1}], v[{t}:{t+1}], v[{m}:{m+1}]")
            p(f"v_pk_add_f32 v[{t+2}:{t+3}], v[{t+2}:{t+3}], v[{m+2}:{m+3}]")
        for i in range(4): p(f"v_cndmask_b32 v{KX0+i}, v{KX0+i}, 0, s[56:57]")
        for i in range(4): p(f"v_cndmask_b32 v{XV0+i}, 0, v{XV0+i}, s[58:59]")
        self.lds_wait(W_ZOK, 2, vtmp=(5, 6))
        p(f"""
        s_lshl_b32 s44, s27, 13
        s_add_u32 s44, s44, {WS_KVS}
        s_cmp_eq_u32 s48, 0
        s_cselect_b32 s44, s44, {OOB}
        v_lshlrev_b32 v4, 2, v1
        v_add_u32 v4, s44, v4
        s_lshl_b32 s45, s49, 11
        v_add_u32 v5, s45, v4
        v_add_u32 v6, 4096, v4
        s_lshl_b32 s45, s49, 10
        v_add_u32 v7, s45, v4
        v_add_u32 v7, 6144, v7
        """)
        for (t, a, off) in ((KV0, "v5", 0), (KV1, "v5", 1024), (KX0, "v6", 0), (XV0, "v6", 1024), (XX, "v7", 0)):
            for e in range(4):
                p(f"buffer_atomic_add_f32 v{t+e}, {a}, s[40:43], 0 offen offset:{off + 256*e}")

    def t4(self):
        p = self.p
        ACC = 32
        acc = lambda sg, t: ACC + (sg*5 + t)*4
        def BF(j, sg):
            k = (j % PD)*4 + sg
            return ar(40 + 4*k, 4) if k < 14 else vr(112 + 4*(k-14), 4)
        AF = lambda j, t: ar(20*(j & 1) + 4*t, 4)
        VB = 8
        PL, PB, PC = 20, 25, 152
        def stile(sg, out):
            p(f"s_add_u32 s44, s25, {sg}"); p("s_and_b32 s44, s44, 3")
            p("s_lshr_b32 s45, s44, 1"); p("s_lshl_b32 s45, s45, 2"); p("s_and_b32 s46, s44, 1"); p("s_add_u32 s45, s45, s46")
            p("s_lshl_b32 s46, s28, 1"); p("s_add_u32 s45, s45, s46"); p("s_lshl_b32 s46, s26, 3"); p(f"s_add_u32 {out}, s45, s46")
        for sg in range(4):
            stile(sg, "s47")
            if sg == 0: p("s_mov_b32 s71, s47")
            p(f"s_mul_i32 s47, s47, {AP_ST}"); p(f"s_add_u32 s47, s47, {WS_AP}")
            p(f"v_add_u32 v{VB+sg}, s47, v18")
        p("s_mul_i32 s44, s27, 160")
        p("s_add_u32 s32, s14, s44"); p("s_addc_u32 s33, s15, 0"); p("s_sub_u32 s34, 1966080, s44"); p("s_mov_b32 s35, 0x20000")
        p("s_add_u32 s36, s8, s44"); p("s_addc_u32 s37, s9, 0"); p("s_sub_u32 s38, 819200, s44"); p("s_mov_b32 s39, 0x20000")
        p("s_mul_i32 s52, s25, 12"); p("s_mul_i32 s53, s25, 5")
        p("s_mul_i32 s60, s25, 5120")
        self.t4_rot()
        def ks_next(j):
            if j < 12:
                p("s_add_u32 s54, s52, s56")
                p("s_add_u32 s56, s56, 1"); p("s_cmp_eq_u32 s56, 12"); p("s_cselect_b32 s56, 0, s56")
            else:
                p("s_add_u32 s54, s53, s57")
                p("s_add_u32 s57, s57, 1"); p("s_cmp_eq_u32 s57, 5"); p("s_cselect_b32 s57, 0, s57")
        def loadW(j):
            p(f"s_add_u32 s61, s60, {WBASE[j % PD]}")
            if j < 12:
                p("s_mul_i32 s55, s54, 40960")
                self.wdma(PL, "s[32:35]", "s55", "s61")
            else:
                LC, LD_ = p.newlabel("L_oc"), p.newlabel("L_od")
                p("s_cmp_lt_u32 s54, 16"); p(f"s_cbranch_scc0 {LC}")
                p("s_mul_i32 s55, s54, 51200")
                self.wdma(PB, "s[36:39]", "s55", "s61")
                p(f"s_branch {LD_}")
                p.label(LC)
                p("s_sub_u32 s55, s54, 16"); p("s_mul_i32 s55, s55, 204800")
                self.wdma(PC, "s[36:39]", "s55", "s61")
                p.label(LD_)
        def loadB(j):
            if j < 12: p("s_lshl_b32 s54, s54, 10")
            else: p("s_add_u32 s54, s54, 48"); p("s_lshl_b32 s54, s54, 10")
            for sg in range(4):
                p(f"buffer_load_dwordx4 {BF(j, sg)}, v{VB+sg}, s[40:43], s54 offen sc1")
        self.wpattern(PL, 'lin', 1280)
        for j in range(PD):
            ks_next(j)
            p(f"s_mov_b32 s{62 + j}, s54")
            if j >= 4: loadW(j)
        self.lds_wait(W_HR, 1)
        self.stamp2(3)
        for j in range(PD):
            p(f"s_mov_b32 s54, s{62 + j}"); loadB(j)
        self.stamp(5)
        self.stamp2(4)
        self.wpattern(PB, 'B', 1280); self.wpattern(PC, 'C', 1280)
        self.lds_wait(W_GT, 4)
        p("v_and_b32 v5, 15, v1"); p("v_lshlrev_b32 v5, 2, v5")
        for sg in range(4):
            p(f"s_add_u32 s44, s25, {sg}"); p("s_and_b32 s44, s44, 3"); p("s_lshl_b32 s44, s44, 6"); p(f"s_add_u32 s44, s44, {GL}")
            p("v_add_u32 v6, s44, v5")
            p(f"ds_read_b32 v{12+sg}, v6 offset:{GR-GL}")
            if sg == 0: p("ds_read_b32 v19, v6")
        p("""
        v_lshrrev_b32 v2, 4, v1
        v_bfe_u32 v3, v1, 2, 2
        v_and_b32 v4, 3, v1
        v_lshl_add_u32 v6, v2, 2, v3
        v_mul_u32_u24 v6, 160, v6
        v_mul_u32_u24 v4, 40, v4
        v_add3_u32 v6, v6, v4, s60
        """)
        p("v_add_u32 v7, 65536, v6")
        NS = 17
        def treads(j):
            L = []
            base = WBASE[j % PD]
            for t in range(5):
                for b2 in range(2):
                    off = base + 16*b2*160 + 8*t
                    a = "v6"
                    if off >= 65536: a = "v7"; off -= 65536
                    L.append(f"ds_read_b64_tr_b16 {ar(20*(j&1) + 4*t + 2*b2, 2)}, {a} offset:{off}")
            return L
        q = [("W4", 5), ("W5", 5)] + [(f"B{j}", 4) for j in range(PD)]
        def wait_for(tag):
            tags = [t for t, _ in q]
            if tag not in tags: return
            idx = tags.index(tag)
            p(f"s_waitcnt vmcnt({sum(k for _, k in q[idx+1:])})")
            del q[:idx+1]
        self.lds_wait(W_P01, 4)
        for r in treads(0): p(r)
        self.stamp(6)
        for j in range(NS):
            nxt = j + PD
            if j + 1 == 2: self.lds_wait(W_P23, 4, vtmp=(2, 3))
            if j + 1 < NS: wait_for(f"W{j+1}")
            wait_for(f"B{j}")
            p("s_waitcnt lgkmcnt(0)")
            if j == 1: self.stamp(7); self.stamp2(5)
            if j == 12:
                self.stamp(8)
                for sg in range(4):
                    for t in range(5):
                        for i in range(4): p(f"v_mul_f32 v{acc(sg,t)+i}, v{acc(sg,t)+i}, v{12+sg}")
            tr = treads(j+1) if j + 1 < NS else []
            k = 0
            for sg in range(4):
                for t in range(5):
                    c = vr(acc(sg, t), 4)
                    p(f"v_mfma_f32_16x16x32_bf16 {c}, {AF(j,t)}, {BF(j,sg)}, {'0' if j == 0 else c}")
                    if k < len(tr): p(tr[k]); k += 1
            if nxt < NS:
                ks_next(nxt); loadW(nxt)
                q.append((f"W{nxt}", 5))
                if nxt < 12:
                    loadB(nxt); q.append((f"B{nxt}", 4))
                else:
                    p(f"s_mov_b32 s{62 + nxt - 12}, s54")
            if j == self.cfg.orstep:
                self.stamp2(6); self.lds_wait(W_OR, 1); self.stamp2(7)
                for jj in range(12, NS):
                    p(f"s_mov_b32 s54, s{62 + jj - 12}") if jj - PD <= j else None
                    if jj - PD > j: raise Exception("orstep too early")
                    loadB(jj); q.append((f"B{jj}", 4))
        self.stamp2(8)
        self.cbar()
        for sg in range(1, 4):
            p(f"s_add_u32 s44, s25, {sg}"); p("s_and_b32 s44, s44, 3"); p("s_mul_i32 s44, s44, 3"); p(f"s_add_u32 s44, s44, {sg-1}")
            p("s_mul_i32 s45, s44, 5120")
            p("v_add_u32 v5, s45, v18")
            for t in range(5): p(f"ds_write_b128 v5, {vr(acc(sg,t),4)} offset:{t*1024}")
        self.cbar()
        p("s_mul_i32 s45, s25, 15360")
        p("v_add_u32 v5, s45, v18")
        for k in range(3):
            for t in range(5): p(f"ds_read_b128 {vr(acc(1+k,t),4)}, v5 offset:{k*5120+t*1024}")
        p("s_waitcnt lgkmcnt(0)")
        for k in range(3):
            for t in range(5):
                a, b = acc(0, t), acc(1+k, t)
                p(f"v_pk_add_f32 v[{a}:{a+1}], v[{a}:{a+1}], v[{b}:{b+1}]")
                p(f"v_pk_add_f32 v[{a+2}:{a+3}], v[{a+2}:{a+3}], v[{b+2}:{b+3}]")
        O = 112
        for t in range(5):
            for i in range(4): p(f"v_mul_f32 v{acc(0,t)+i}, v{acc(0,t)+i}, v19")
        for t in range(5):
            a = acc(0, t)
            p(f"v_cvt_pk_bf16_f32 v{O+2*t}, v{a}, v{a+1}")
            p(f"v_cvt_pk_bf16_f32 v{O+2*t+1}, v{a+2}, v{a+3}")
        p("""
        s_mov_b32 s32, s18
        s_mov_b32 s33, s19
        s_mov_b32 s34, 2621440
        s_mov_b32 s35, 0x20000
        v_lshrrev_b32 v2, 4, v1
        v_and_b32 v3, 15, v1
        s_lshl_b32 s44, s71, 4
        v_add_u32 v3, s44, v3
        v_mul_u32_u24 v3, 1280, v3
        v_mul_u32_u24 v2, 40, v2
        s_mul_i32 s44, s27, 160
        v_add3_u32 v3, v3, v2, s44
        """)
        p(f"buffer_store_dwordx4 v[{O}:{O+3}], v3, s[32:35], 0 offen")
        p(f"buffer_store_dwordx4 v[{O+4}:{O+7}], v3, s[32:35], 0 offen offset:16")
        p(f"buffer_store_dwordx2 v[{O+8}:{O+9}], v3, s[32:35], 0 offen offset:32")
        self.stamp(9)
        self.stamp2(9)
        self.stamp_flush(10)

def kd(name, vgpr, accum, sgpr=102):
    return f""".amdhsa_kernel {name}
  .amdhsa_next_free_vgpr {vgpr}
  .amdhsa_next_free_sgpr {sgpr}
  .amdhsa_accum_offset {accum}
  .amdhsa_group_segment_fixed_size 0
  .amdhsa_kernarg_size 80
  .amdhsa_user_sgpr_count 2
  .amdhsa_user_sgpr_kernarg_segment_ptr 1
  .amdhsa_system_sgpr_workgroup_id_x 1
.end_amdhsa_kernel
"""

def head_comment():
    f = "cdna_kernels/" + NAME + ".s.ref"
    return open(f).read().split("; Override launch")[0] if os.path.exists(f) else ""

def build(cfg):
    g = Gen(cfg); g.emit()
    body = g.p.text(verbose=True)
    hdr = head_comment() + f"""; @launch grid=(256,1,1) block=(512,1,1) lds={LDS_BYTES}
.amdgcn_target "amdgcn-amd-amdhsa--gfx950"
.text
.globl {KNAME}
.p2align 8
.type {KNAME},@function
{KNAME}:
"""
    body = body.replace("CODE_BYTES_M", f".Lcode_end-{KNAME}-512")
    tail = ".Lcode_end:\n"
    return hdr + body + tail + '.section .rodata,"a"\n.p2align 6\n' + kd(KNAME, 256, 160)

if __name__ == "__main__":
    cfg = Cfg()
    cfg.stamps = "stamps" in sys.argv
    cfg.dbg2 = "dbg2" in sys.argv
    cfg.rot = "norot" not in sys.argv
    cfg.local = "nolocal" not in sys.argv
    cfg.t12only = "t12only" in sys.argv
    cfg.map81 = "map81" in sys.argv
    cfg.spoll = "vpoll" not in sys.argv
    cfg.kv1 = "kv1" in sys.argv
    cfg.noqdma = "noqdma" in sys.argv
    cfg.noqread = "noqread" in sys.argv
    cfg.nomfma = "nomfma" in sys.argv
    cfg.stouch = "stouch" in sys.argv
    for a in sys.argv:
        if a.startswith("wpre="): cfg.wpre = tuple(int(x) for x in a[5:].split(","))
    cfg.w45late = "w45early" not in sys.argv
    for a in sys.argv:
        if a.startswith("or="): cfg.orstep = int(a[3:])
    cfg.early_s1 = "es1" in sys.argv
    if not cfg.map81: cfg.local = False
    out = [a for a in sys.argv[1:] if a.endswith(".s")]
    open(out[0] if out else "x5.s", "w").write(build(cfg))
```

```python
import sys, os
from asmlib import *

NAME = "gated_mix__linear_attn_block__dense_activation_relu__prompt"
KNAME = NAME + "_kernel"

AP_ST = 68 * 1024
WS_AP = 0
WS_KVP = 13 << 20
WS_KVS = 14 << 20
WS_F = 15 << 20
F_H = WS_F
F_KV = WS_F + 16384
F_O = WS_F + 32768
F_X = WS_F + 65536
F_KS = WS_F + 73728
WS_TS = 16 << 20
WS_SIZE = 17 << 20
OOB = 0x80000000

STG = 51200
SEG = 10256
QOFF = 40960
WBASE = [51200, 71680, 102400, 122880, 0, 20480]
KVRED = 92160
BQL0, BQL1 = 40960, 143360
KVT = 153600
GW = 159744
GL = 161024
GR = 161280
SY = 161536
LDS_BYTES = 161792
W_TAG, W_KVR, W_HR, W_OR, W_PUB1, W_BQ, W_PUB2, W_KVF, W_LOC, W_P01, W_P23, W_GT, W_KF1, W_ZOK = [4*i for i in range(14)]
W_CB = 64
LOG2E = 0x3fb8aa3b
EPS6 = 0x358637bd
POLL_MAX = 1 << 13
PD = 6

class Cfg:
    stamps = False
    dbg2 = False
    rot = True
    local = True
    t12only = False
    map81 = False
    spoll = True
    kv1 = False
    span = False
    noqdma = False
    noqread = False
    nomfma = False
    stouch = False
    wpre = (7, 8)
    w45late = True
    orstep = 11
    early_s1 = False

class Gen:
    def __init__(self, cfg):
        self.p = Prog(); self.cfg = cfg; self.ncb = 0
    def stamp(self, idx):
        if self.cfg.stamps and (idx == 0 or not self.cfg.dbg2): self.p(f"s_memtime s[{80+2*idx}:{81+2*idx}]")
    def stamp2(self, idx):
        if self.cfg.stamps and self.cfg.dbg2: self.p(f"s_memtime s[{80+2*idx}:{81+2*idx}]")
    def stamp_flush(self, n):
        if not self.cfg.stamps: return
        p = self.p
        p("s_waitcnt lgkmcnt(0)")
        p("s_memrealtime s[78:79]")
        p("s_lshl_b32 s100, s2, 3"); p("s_add_u32 s100, s100, s24")
        p("s_lshl_b32 s100, s100, 7")
        p(f"s_add_u32 s100, s100, {WS_TS}")
        p("v_mov_b32 v4, s100")
        p("s_waitcnt lgkmcnt(0)")
        p("s_mov_b64 exec, 1")
        regs = [80 + 2*i for i in range(n)]
        for i, r in enumerate(regs + [76, 78]):
            off = 8*i if i < n else (112 + 8*(i-n))
            p(f"v_mov_b32 v2, s{r}"); p(f"v_mov_b32 v3, s{r+1}")
            p(f"buffer_store_dwordx2 v[2:3], v4, s[40:43], 0 offen offset:{off}")
            p("s_nop 1")
        p("s_mov_b64 exec, -1")
    def lds_signal(self, word, vtmp=(2, 3)):
        p = self.p; a, b = vtmp
        p(f"v_mov_b32 v{a}, {SY}"); p(f"v_mov_b32 v{b}, 1")
        p("s_mov_b64 exec, 1")
        p(f"ds_add_u32 v{a}, v{b} offset:{word}")
        p("s_mov_b64 exec, -1")
    def lds_wait(self, word, target, vtmp=(2, 3), sleep=False):
        p = self.p; a, b = vtmp
        L = p.newlabel("L_lw"); D = p.newlabel("L_lwd")
        p(f"v_mov_b32 v{a}, {SY}")
        p(f"s_mov_b32 s47, {POLL_MAX*32}")
        p.label(L)
        p(f"ds_read_b32 v{b}, v{a} offset:{word}")
        p("s_waitcnt lgkmcnt(0)")
        p(f"v_readfirstlane_b32 s46, v{b}")
        p(f"s_cmp_ge_u32 s46, {target}")
        p(f"s_cbranch_scc1 {D}")
        if sleep: p("s_sleep 1")
        p("s_sub_u32 s47, s47, 1")
        p("s_cmp_lg_u32 s47, 0")
        p(f"s_cbranch_scc1 {L}")
        p.label(D)
    def cbar(self, vtmp=(2, 3)):
        w = W_CB + 4 * self.ncb; self.ncb += 1
        assert w < 256
        self.p("s_waitcnt lgkmcnt(0)")
        self.lds_signal(w, vtmp)
        self.lds_wait(w, 4, vtmp)
    def poll_flags(self, addr_s, nwords, vt=(2, 3)):
        p = self.p; a, b = vt
        L = p.newlabel("L_pf"); D = p.newlabel("L_pfd")
        if self.cfg.spoll:
            p(f"s_add_u32 s4, s22, {addr_s}"); p("s_addc_u32 s5, s23, 0")
            p(f"s_mov_b32 s47, {POLL_MAX}")
            p.label(L)
            p("s_mov_b32 s46, 0")
            for base in range(0, nwords, 8):
                for i in range(8): p(f"s_load_dword s{8+i}, s[4:5], {(base+i)*128} glc")
                p("s_waitcnt lgkmcnt(0)")
                for i in range(8):
                    p(f"s_xor_b32 s{8+i}, s{8+i}, s30"); p(f"s_or_b32 s46, s46, s{8+i}")
            p("s_cmp_eq_u32 s46, 0")
            p(f"s_cbranch_scc1 {D}")
            p("s_sleep 1")
            p("s_sub_u32 s47, s47, 1")
            p("s_cmp_lg_u32 s47, 0")
            p(f"s_cbranch_scc1 {L}")
            p.label(D)
            return
        p(f"v_min_u32 v{a}, {nwords-1}, v1")
        p(f"v_lshlrev_b32 v{a}, 7, v{a}")
        p(f"v_add_u32 v{a}, {addr_s}, v{a}")
        p(f"s_mov_b32 s47, {POLL_MAX}")
        p.label(L)
        p(f"buffer_load_dword v{b}, v{a}, s[40:43], 0 offen sc1")
        p("s_waitcnt vmcnt(0)")
        p(f"v_cmp_eq_u32 vcc, s30, v{b}")
        p("s_nop 1")
        p("s_cmp_eq_u64 vcc, -1")
        p(f"s_cbranch_scc1 {D}")
        p("s_sleep 2")
        p("s_sub_u32 s47, s47, 1")
        p("s_cmp_lg_u32 s47, 0")
        p(f"s_cbranch_scc1 {L}")
        p.label(D)
    def poll_flags_safe(self, addr_s, nwords):
        p = self.p
        L = p.newlabel("L_pf"); D = p.newlabel("L_pfd")
        p(f"s_add_u32 s100, s22, {addr_s}"); p("s_addc_u32 s101, s23, 0")
        p(f"s_mov_b32 s47, {POLL_MAX}")
        p.label(L)
        p("s_mov_b32 s46, 0")
        for half in range(2):
            for i in range(4): p(f"s_load_dword s{76+i}, s[100:101], {(4*half+i)*128} glc")
            p("s_waitcnt lgkmcnt(0)")
            for i in range(4):
                p(f"s_xor_b32 s{76+i}, s{76+i}, s30"); p(f"s_or_b32 s46, s46, s{76+i}")
        p("s_cmp_eq_u32 s46, 0")
        p(f"s_cbranch_scc1 {D}")
        p("s_sleep 1")
        p("s_sub_u32 s47, s47, 1")
        p("s_cmp_lg_u32 s47, 0")
        p(f"s_cbranch_scc1 {L}")
        p.label(D)
    def dual(self, emit):
        p = self.p
        if not self.cfg.local:
            emit(" sc1"); return
        A, B = p.newlabel("L_du"), p.newlabel("L_du")
        p("s_cmp_eq_u32 s72, 1"); p(f"s_cbranch_scc1 {A}")
        emit(" sc1")
        p(f"s_branch {B}")
        p.label(A)
        emit("")
        p.label(B)
    def flag_store(self, addr_s, vt=(2, 3), dual=False):
        p = self.p; a, b = vt
        p(f"v_mov_b32 v{a}, {addr_s}"); p(f"v_mov_b32 v{b}, s30")
        p("s_mov_b64 exec, 1")
        if dual: self.dual(lambda sc: p(f"buffer_store_dword v{b}, v{a}, s[40:43], 0 offen{sc}"))
        else: p(f"buffer_store_dword v{b}, v{a}, s[40:43], 0 offen sc1")
        p("s_mov_b64 exec, -1")
    def publish_last(self, word, target, addr_s, vt=(2, 3), dual=False):
        p = self.p; a, b = vt
        p(f"v_mov_b32 v{a}, {SY}"); p(f"v_mov_b32 v{b}, 1")
        p("s_mov_b64 exec, 1")
        p(f"ds_add_rtn_u32 v{b}, v{a}, v{b} offset:{word}")
        p("s_mov_b64 exec, -1")
        p("s_waitcnt lgkmcnt(0)")
        p(f"v_readfirstlane_b32 s46, v{b}")
        p(f"s_cmp_eq_u32 s46, {target-1}")
        p(f"s_cselect_b32 s47, {addr_s}, {OOB}")
        self.flag_store("s47", vt, dual)
    def read_loc(self, vt=(2, 3)):
        p = self.p; a, b = vt
        p(f"v_mov_b32 v{a}, {SY}"); p(f"ds_read_b32 v{b}, v{a} offset:{W_LOC}"); p("s_waitcnt lgkmcnt(0)")
        p(f"v_readfirstlane_b32 s72, v{b}")
    def rot10(self, dst):
        p = self.p
        if not self.cfg.rot:
            p(f"s_mov_b32 {dst}, 0"); return
        if self.cfg.map81:
            p(f"""
            s_and_b32 s45, s26, 1
            s_mul_i32 s45, s45, 5
            s_add_u32 {dst}, s27, s45
            s_add_u32 {dst}, {dst}, s73
            s_cmp_ge_u32 {dst}, 10
            s_cselect_b32 s45, 10, 0
            s_sub_u32 {dst}, {dst}, s45
            s_cmp_ge_u32 {dst}, 10
            s_cselect_b32 s45, 10, 0
            s_sub_u32 {dst}, {dst}, s45
            """)
        else:
            p(f"""
            s_and_b32 s45, s27, 3
            s_lshl_b32 s45, s45, 1
            s_add_u32 {dst}, s45, s28
            s_and_b32 s45, s26, 3
            s_mul_i32 s45, s45, 3
            s_add_u32 {dst}, {dst}, s45
            s_cmp_ge_u32 {dst}, 10
            s_cselect_b32 s45, 10, 0
            s_sub_u32 {dst}, {dst}, s45
            """)
    def wpattern(self, dst, kind, stride, tmp=(2, 3, 4, 5, 6), out=None):
        L = []
        e = L.append
        a, b, c, d, f = tmp
        for u in range(5):
            e(f"v_add_u32 v{a}, {64*u}, v1")
            e(f"v_mul_u32_u24 v{b}, 6554, v{a}")
            e(f"v_lshrrev_b32 v{b}, 16, v{b}")
            e(f"v_mul_u32_u24 v{c}, 10, v{b}")
            e(f"v_sub_u32 v{c}, v{a}, v{c}")
            if kind == 'B':
                e(f"v_lshrrev_b32 v{d}, 4, v{b}"); e(f"v_mul_u32_u24 v{d}, 20, v{d}")
                e(f"v_and_b32 v{b}, 15, v{b}"); e(f"v_add_u32 v{b}, v{b}, v{d}")
            elif kind == 'C':
                e(f"v_lshrrev_b32 v{d}, 4, v{b}"); e(f"v_lshlrev_b32 v{d}, 2, v{d}")
                e(f"v_bfe_u32 v{f}, v{b}, 2, 2"); e(f"v_add_u32 v{f}, 2, v{f}"); e(f"v_and_b32 v{f}, 3, v{f}")
                e(f"v_add_u32 v{d}, v{d}, v{f}"); e(f"v_mul_u32_u24 v{d}, 20, v{d}")
                e(f"v_and_b32 v{b}, 3, v{b}"); e(f"v_add3_u32 v{b}, v{b}, v{d}, 16")
            e(f"v_mul_u32_u24 v{b}, {stride}, v{b}")
            e(f"v_lshl_add_u32 v{b}, v{c}, 4, v{b}")
            if 0 < u < 4: e(f"v_subrev_u32 v{dst+u}, {1024*u}, v{b}")
            else: e(f"v_mov_b32 v{dst+u}, v{b}")
        if out is not None: out += L
        else:
            for x in L: self.p(x)
    def wdma(self, pat, srd, soff, m0_s):
        p = self.p
        p(f"s_mov_b32 m0, {m0_s}")
        for u in range(4):
            p(f"buffer_load_dwordx4 v{pat+u}, {srd}, {soff} offen offset:{1024*u} lds")
        p(f"s_add_u32 m0, {m0_s}, 4096")
        p(f"buffer_load_dwordx4 v{pat+4}, {srd}, {soff} offen lds")
    def t4_rot(self, rb="s56", ro="s57"):
        p = self.p
        if self.cfg.rot and not self.cfg.map81:
            p("s_and_b32 s44, s29, 7"); p("s_and_b32 s45, s27, 3")
            p("s_mul_i32 s46, s45, 3"); p(f"s_add_u32 {rb}, s44, s46")
            p(f"s_cmp_ge_u32 {rb}, 12"); p("s_cselect_b32 s46, 12, 0"); p(f"s_sub_u32 {rb}, {rb}, s46")
            p(f"s_add_u32 {ro}, s44, s45")
            p(f"s_cmp_ge_u32 {ro}, 10"); p("s_cselect_b32 s46, 10, 0"); p(f"s_sub_u32 {ro}, {ro}, s46")
            p(f"s_cmp_ge_u32 {ro}, 5"); p("s_cselect_b32 s46, 5, 0"); p(f"s_sub_u32 {ro}, {ro}, s46")
        elif self.cfg.rot:
            p("s_and_b32 s44, s29, 3"); p("s_mul_i32 s45, s44, 3"); p(f"s_add_u32 {rb}, s45, s73")
            p(f"s_cmp_ge_u32 {rb}, 12"); p("s_cselect_b32 s46, 12, 0"); p(f"s_sub_u32 {rb}, {rb}, s46")
            p(f"s_add_u32 {ro}, s44, s73")
            p(f"s_cmp_ge_u32 {ro}, 10"); p("s_cselect_b32 s46, 10, 0"); p(f"s_sub_u32 {ro}, {ro}, s46")
            p(f"s_cmp_ge_u32 {ro}, 5"); p("s_cselect_b32 s46, 5, 0"); p(f"s_sub_u32 {ro}, {ro}, s46")
        else:
            p(f"s_mov_b32 {rb}, 0"); p(f"s_mov_b32 {ro}, 0")

    def emit(self):
        p = self.p; cfg = self.cfg
        if cfg.stamps: p("s_memrealtime s[76:77]")
        if cfg.map81:
            MAP = """s_and_b32 s73, s2, 7
        s_lshr_b32 s31, s2, 3
        s_and_b32 s44, s31, 1
        s_lshl_b32 s26, s73, 1
        s_add_u32 s26, s26, s44
        s_bfe_u32 s28, s31, 0x10001
        s_lshr_b32 s27, s31, 2
        s_lshl_b32 s29, s26, 1
        s_add_u32 s29, s29, s28"""
        else:
            MAP = """s_and_b32 s44, s2, 7
        s_lshr_b32 s31, s2, 3
        s_lshr_b32 s73, s44, 1
        s_and_b32 s3, s44, 1
        s_and_b32 s28, s31, 1
        s_lshr_b32 s45, s31, 1
        s_and_b32 s26, s45, 3
        s_lshl_b32 s46, s73, 2
        s_add_u32 s26, s26, s46
        s_lshr_b32 s27, s45, 2
        s_lshl_b32 s46, s3, 2
        s_add_u32 s27, s27, s46
        s_lshl_b32 s29, s26, 1
        s_add_u32 s29, s29, s28"""
        p(f"""
        s_cmp_ge_u32 s2, 256
        s_cbranch_scc1 L_end
        s_load_dwordx16 s[4:19], s[0:1], 0
        s_load_dwordx4 s[20:23], s[0:1], 64
        s_getpc_b64 s[74:75]
        v_and_b32 v1, 63, v0
        v_lshrrev_b32 v2, 6, v0
        v_readfirstlane_b32 s24, v2
        {MAP}
        s_and_b32 s25, s24, 3
        s_mov_b32 s72, 0
        s_waitcnt lgkmcnt(0)
        """)
        self.stamp(0)
        p(f"""
        s_mov_b32 s40, s22
        s_mov_b32 s41, s23
        s_mov_b32 s42, {WS_SIZE}
        s_mov_b32 s43, 0x20000
        s_cmp_ge_u32 s24, 4
        s_cbranch_scc0 L_compute
        s_cmp_eq_u32 s28, 0
        s_cbranch_scc0 L_helper_h
        """)
        self.helper_t12('kv')
        p("s_branch L_hp_post")
        p.label("L_helper_h")
        self.helper_t12('h')
        p.label("L_hp_post")
        self.helper_post()
        p.label("L_compute")
        self.compute_path()
        p.label("L_end")
        p("s_endpgm")

    def helper_t12(self, kind):
        p = self.p; cfg = self.cfg
        VO = 8; SD = 48
        NW = 5 if kind == 'kv' else 6
        n = 4 + NW + (3 if kind == 'kv' and not cfg.noqdma else 0)
        wstep = 245760 if kind == 'kv' else 196608
        p(f"""
        s_mul_i32 s44, s26, 163840
        s_add_u32 s32, s4, s44
        s_addc_u32 s33, s5, 0
        s_sub_u32 s34, 2621440, s44
        s_mov_b32 s35, 0x20000
        v_lshrrev_b32 v2, 3, v1
        v_and_b32 v3, 7, v1
        v_xor_b32 v4, v3, v2
        v_lshlrev_b32 v4, 4, v4
        s_lshl_b32 s44, s25, 5
        v_add_u32 v5, s44, v2
        v_mul_u32_u24 v5, 1280, v5
        v_add_u32 v8, v5, v4
        v_add_u32 v9, 10240, v8
        v_add_u32 v10, 20480, v8
        v_add_u32 v11, 30720, v8
        s_lshl_b32 s48, s25, 12
        s_add_u32 s49, s48, 1024
        s_add_u32 s50, s48, 2048
        s_add_u32 s51, s48, 3072
        s_mov_b32 s60, 0
        """)
        self.rot10("s59")
        p("s_lshl_b32 s61, s59, 7")
        p(f"s_mul_i32 s62, s59, {wstep}")
        p("s_mul_i32 s66, s59, 245760")
        for b in range(4):
            p(f"s_mov_b32 m0, s{SD+b}")
            p(f"buffer_load_dwordx4 v{VO+b}, s[32:35], s61 offen lds")
        if kind == 'kv':
            p("s_mul_i32 s44, s27, 160"); p("s_add_u32 s44, s44, 1280")
            p("s_add_u32 s36, s6, s44"); p("s_addc_u32 s37, s7, 0"); p("s_sub_u32 s38, 2457600, s44")
        else:
            p("s_mul_i32 s44, s27, 384")
            p("s_add_u32 s36, s12, s44"); p("s_addc_u32 s37, s13, 0"); p("s_sub_u32 s38, 1966080, s44")
        p("s_mov_b32 s39, 0x20000")
        def seg_pattern(dst):
            p(f"""
            v_mul_u32_u24 v3, 6554, v2
            v_lshrrev_b32 v3, 16, v3
            v_mul_u32_u24 v4, 10, v3
            v_sub_u32 v4, v2, v4
            v_and_b32 v5, 0x33, v3
            v_and_b32 v6, 4, v3
            v_lshl_or_b32 v5, v6, 1, v5
            v_and_b32 v6, 8, v3
            v_lshrrev_b32 v6, 1, v6
            v_or_b32 v5, v5, v6
            v_mul_u32_u24 v5, 3840, v5
            v_lshl_add_u32 v{dst}, v4, 4, v5
            """)
        if kind == 'kv':
            for a in range(5):
                p(f"""
                s_add_u32 s44, s25, {4*a}
                s_cmp_ge_u32 s44, 10
                s_cselect_b32 s45, 1, 0
                s_mul_i32 s46, s45, 10
                s_sub_u32 s46, s44, s46
                s_lshl_b32 s47, s46, 6
                v_add_u32 v2, s47, v1
                """)
                seg_pattern(VO+4+a)
                p(f"""
                s_mul_i32 s47, s45, 1280
                v_add_u32 v{VO+4+a}, s47, v{VO+4+a}
                s_mul_i32 s47, s45, {SEG}
                s_lshl_b32 s46, s46, 10
                s_add_u32 s47, s47, s46
                s_add_u32 s{SD+4+a}, s47, 16384
                s_mov_b32 m0, s{SD+4+a}
                buffer_load_dwordx4 v{VO+4+a}, s[36:39], s62 offen lds
                """)
        else:
            for a in range(6):
                pat = a % 3
                p(f"""
                v_add_u32 v2, {64*pat}, v1
                v_mul_u32_u24 v3, 2731, v2
                v_lshrrev_b32 v3, 16, v3
                v_mul_u32_u24 v4, 24, v3
                v_sub_u32 v4, v2, v4
                v_and_b32 v5, 6, v3
                v_xor_b32 v4, v4, v5
                v_lshrrev_b32 v5, 2, v3
                v_lshlrev_b32 v5, 3, v5
                v_and_b32 v6, 3, v3
                v_add_u32 v5, v5, v6
                s_lshl_b32 s44, s25, 4
                s_add_u32 s44, s44, {4*(a//3)}
                v_add_u32 v5, s44, v5
                v_mul_u32_u24 v5, 3072, v5
                v_lshl_add_u32 v{VO+4+a}, v4, 4, v5
                s_mul_i32 s44, s25, 6144
                s_add_u32 s{SD+4+a}, s44, {16384 + a*1024}
                s_mov_b32 m0, s{SD+4+a}
                buffer_load_dwordx4 v{VO+4+a}, s[36:39], s62 offen lds
                """)
        if kind == 'kv':
            p("s_mul_i32 s44, s27, 160")
            p("s_add_u32 s68, s6, s44"); p("s_addc_u32 s69, s7, 0"); p("s_sub_u32 s70, 2457600, s44"); p("s_mov_b32 s71, 0x20000")
            p("s_mul_i32 s44, s25, 160"); p("s_mul_i32 s67, s25, 2560"); p(f"s_add_u32 s67, s67, {QOFF}")
            for a in range(3):
                p(f"v_add_u32 v2, s44, v1")
                if a: p(f"v_add_u32 v2, {64*a}, v2")
                p("v_min_u32 v2, 639, v2")
                seg_pattern(20 + a)
        def issue_q(buf):
            if kind != 'kv' or cfg.noqdma: return
            for a in range(3):
                p(f"s_add_u32 m0, {buf}, s67") if a == 0 else p(f"s_add_u32 m0, m0, 1024")
                if a == 2: p("s_mov_b32 exec_hi, 0")
                p(f"buffer_load_dwordx4 v{20+a}, s[68:71], s66 offen lds")
                if a == 2: p("s_mov_b64 exec, -1")
        issue_q("s60")
        def advance():
            p(f"s_add_u32 s60, s60, {STG}")
            p(f"s_cmp_eq_u32 s60, {3*STG}")
            p("s_cselect_b32 s60, 0, s60")
            p("s_add_u32 s61, s61, 128")
            p(f"s_add_u32 s62, s62, {wstep}")
            p("s_add_u32 s66, s66, 245760")
            p("s_add_u32 s59, s59, 1")
            p("s_cmp_eq_u32 s59, 10")
            p("s_cselect_b32 s59, 0, s59")
            p("s_cselect_b32 s61, 0, s61")
            p("s_cselect_b32 s62, 0, s62")
            p("s_cselect_b32 s66, 0, s66")
        def issue():
            for i in range(4 + NW):
                p(f"s_add_u32 m0, s60, s{SD+i}")
                srd, so = ("s[32:35]", "s61") if i < 4 else ("s[36:39]", "s62")
                p(f"buffer_load_dwordx4 v{VO+i}, {srd}, {so} offen lds")
            issue_q("s60")
            advance()
        p("s_mov_b32 s96, s16"); p("s_mov_b32 s97, s17"); p("s_movk_i32 s98, 1280"); p("s_mov_b32 s99, 0x20000")
        p("v_lshlrev_b32 v2, 4, v1")
        p(f"s_mov_b32 m0, {GW}")
        p("buffer_load_dwordx4 v2, s[96:99], 0 offen lds")
        p("s_mov_b32 exec_lo, 0xffff"); p("s_mov_b32 exec_hi, 0")
        p("buffer_load_dwordx4 v2, s[96:99], 0 offen offset:1024 lds")
        p("s_mov_b64 exec, -1")
        advance()
        self.stamp(1)
        q = [("s0", n), ("gw", 2)]
        def push(tag, k): q.append((tag, k))
        def wait_for(tag):
            tags = [t for t, _ in q]
            if tag not in tags: return
            idx = tags.index(tag)
            p(f"s_waitcnt vmcnt({sum(k for _, k in q[idx+1:])})")
            del q[:idx+1]
        if cfg.early_s1:
            issue(); push("s1", n)
        wait_for("gw")
        self.stamp(2)
        p("s_barrier")
        if not cfg.early_s1:
            issue(); push("s1", n)
        issue(); push("s2", n)
        p(f"v_mov_b32 v2, {SY}")
        p(f"ds_read_b32 v3, v2 offset:{W_TAG}")
        p("s_waitcnt lgkmcnt(0)")
        p("v_readfirstlane_b32 s30, v3")
        for i in range(10):
            if i <= 8: wait_for(f"s{i+1}")
            p("s_barrier")
            if i == 0: self.stamp(3)
            if i <= 6: issue(); push(f"s{i+3}", n)
            if i == 0 and kind == 'h':
                p("s_lshl_b32 s44, s27, 13"); p("s_lshl_b32 s45, s26, 9"); p("s_add_u32 s44, s44, s45"); p(f"s_add_u32 s44, s44, {WS_KVS}")
                p("s_cmp_eq_u32 s25, 0"); p(f"s_cselect_b32 s44, s44, {OOB}")
                p("v_and_b32 v2, 31, v1"); p("v_lshlrev_b32 v2, 4, v2"); p("v_add_u32 v2, s44, v2")
                for e in range(4): p(f"v_mov_b32 v{32+e}, 0")
                p("s_mov_b32 exec_hi, 0")
                p("buffer_store_dwordx4 v[32:35], v2, s[40:43], 0 offen sc1")
                p("s_mov_b64 exec, -1")
                push("zs", 1)
            if i == 3 and kind == 'h':
                wait_for("zs")
                p("s_lshl_b32 s44, s27, 11"); p("s_lshl_b32 s45, s26, 7"); p("s_add_u32 s44, s44, s45"); p(f"s_add_u32 s58, s44, {F_KS}")
                p("s_cmp_eq_u32 s25, 0"); p(f"s_cselect_b32 s58, s58, {OOB}")
                self.flag_store("s58"); push("zf", 1)
            if i == 2:
                self.wpattern(26, 'lin', 1280)
                p("s_mul_i32 s44, s27, 160")
                p("s_add_u32 s96, s14, s44"); p("s_addc_u32 s97, s15, 0"); p("s_sub_u32 s98, 1966080, s44"); p("s_mov_b32 s99, 0x20000")
                self.t4_rot("s0", "s1")
                p("s_mul_i32 s64, s25, 12")
            if cfg.stouch and i in (2, 4, 6):
                if i == 2 or i == 4:
                    k0 = 0 if i == 2 else 8
                    p("s_mul_i32 s44, s2, 7680"); p("s_mul_i32 s45, s25, 1920"); p("s_add_u32 s44, s44, s45")
                    p("s_add_u32 s46, s14, s44"); p("s_addc_u32 s47, s15, 0")
                    for k in range(k0, min(15, k0 + 8)): p(f"s_load_dword s3, s[46:47], {128*k}")
                else:
                    p("s_mul_i32 s44, s2, 3200"); p("s_mul_i32 s45, s25, 800"); p("s_add_u32 s44, s44, s45")
                    p(f"s_min_u32 s44, s44, {819200 - 7*128}")
                    p("s_add_u32 s46, s8, s44"); p("s_addc_u32 s47, s9, 0")
                    for k in range(7): p(f"s_load_dword s3, s[46:47], {128*k}")
            if i == 5:
                p("v_min_u32 v2, 15, v1"); p("v_lshlrev_b32 v2, 2, v2")
                p("s_lshl_b32 s44, s26, 7"); p(f"s_add_u32 s44, s44, {F_X}")
                p("buffer_load_dword v31, v2, s[40:43], s44 offen sc1")
                push("xc", 1)
            if i == 6 and kind == 'kv':
                NZ = p.newlabel("L_nz")
                p("s_sub_u32 s3, s25, 1"); p("s_cmp_lt_u32 s3, 2"); p(f"s_cbranch_scc0 {NZ}")
                p("s_lshl_b32 s58, s27, 11"); p("s_lshl_b32 s44, s3, 10"); p("s_add_u32 s58, s58, s44"); p(f"s_add_u32 s58, s58, {F_KS}")
                self.poll_flags_safe("s58", 8)
                self.lds_signal(W_ZOK)
                p.label(NZ)
            if i == 7:
                wait_for("xc")
                p("s_getreg_b32 s45, hwreg(HW_REG_XCC_ID)"); p("s_and_b32 s45, s45, 7")
                p("s_and_b32 s44, s30, 0xfffffff0"); p("s_or_b32 s44, s44, 8"); p("s_or_b32 s44, s44, s45")
                p("v_cmp_eq_u32 vcc, s44, v31")
                p("s_nop 1")
                p("s_cmp_eq_u64 vcc, -1")
                p("s_cselect_b32 s72, 1, 2")
                p(f"v_mov_b32 v2, {SY}"); p("v_mov_b32 v3, s72")
                p(f"ds_write_b32 v2, v3 offset:{W_LOC}")
                p("s_waitcnt lgkmcnt(0)")
            if not cfg.t12only:
                if i == cfg.wpre[0]:
                    for j in (0, 1): self.h_wstep(j); push(f"w{j}", 5)
                if i == cfg.wpre[1]:
                    for j in (2, 3): self.h_wstep(j); push(f"w{j}", 5)
        if not cfg.t12only:
            wait_for("w1"); self.lds_signal(W_P01)
            wait_for("w3"); self.lds_signal(W_P23)

    def h_wstep(self, j):
        p = self.p
        p("s_add_u32 s44, s64, s0")
        p("s_add_u32 s0, s0, 1"); p("s_cmp_eq_u32 s0, 12"); p("s_cselect_b32 s0, 0, s0")
        p("s_mul_i32 s44, s44, 40960")
        p("s_mul_i32 s65, s25, 5120"); p(f"s_add_u32 s65, s65, {WBASE[j]}")
        self.wdma(26, "s[96:99]", "s44", "s65")

    def helper_post(self):
        p = self.p
        if self.cfg.t12only:
            p("s_waitcnt vmcnt(0)"); self.stamp_flush(8); p("s_branch L_end"); return
        self.stamp(4)
        N0 = p.newlabel("L_n0")
        p("s_cmp_eq_u32 s25, 0"); p(f"s_cbranch_scc0 {N0}")
        p(f"s_lshl_b32 s58, s26, 10"); p(f"s_add_u32 s58, s58, {F_H}")
        self.poll_flags("s58", 8)
        self.lds_signal(W_HR)
        self.stamp(5)
        p.label(N0)
        p("s_cmp_eq_u32 s28, 0"); p("s_cbranch_scc1 L_hp_kvcu")
        p("s_branch L_hp_or")
        p.label("L_hp_kvcu")
        N3x = p.newlabel("L_n3x")
        p("s_sub_u32 s59, s25, 1"); p("s_cmp_lt_u32 s59, 2"); p(f"s_cbranch_scc0 {N3x}")
        p("s_lshl_b32 s58, s27, 11"); p("s_lshl_b32 s44, s59, 10"); p("s_add_u32 s58, s58, s44"); p(f"s_add_u32 s58, s58, {F_KV}")
        self.poll_flags("s58", 8)
        self.lds_signal(W_KVF)
        p.label(N3x)
        self.lds_wait(W_KVF, 2)
        self.stamp2(4)
        p("v_lshrrev_b32 v2, 4, v1"); p("v_and_b32 v3, 15, v1")
        p(f"v_mov_b32 v7, {OOB}")
        p("v_add_u32 v4, 2, v2"); p("v_and_b32 v4, 3, v4"); p("v_lshrrev_b32 v5, 2, v3")
        p("v_cmp_eq_u32 s[56:57], v4, v5")
        VT = 8
        LA, LB, LE = [p.newlabel("L_kt") for _ in range(3)]
        p("v_lshlrev_b32 v4, 2, v1"); p("v_lshrrev_b32 v5, 1, v2"); p("v_lshlrev_b32 v6, 6, v2")
        p("s_cmp_ge_u32 s25, 2"); p(f"s_cbranch_scc1 {LA}")
        p("s_mul_i32 s44, s25, 3072")
        for i in range(3):
            p(f"v_add_u32 v{VT+i}, s44, v4")
            if i: p(f"v_add_u32 v{VT+i}, {1024*i}, v{VT+i}")
        p(f"s_branch {LE}")
        p.label(LA)
        p("s_cmp_eq_u32 s25, 2"); p(f"s_cbranch_scc0 {LB}")
        p("v_lshlrev_b32 v11, 10, v5"); p("v_add3_u32 v11, v11, v4, 0"); p("v_add_u32 v11, 6144, v11")
        p(f"v_cndmask_b32 v{VT}, v7, v11, s[56:57]")
        p(f"v_add_u32 v{VT+1}, {6144}, v6")
        p(f"v_add_u32 v{VT+2}, {6144+4}, v6")
        p(f"s_branch {LE}")
        p.label(LB)
        p(f"v_add_u32 v{VT}, {7168+32}, v6")
        p(f"v_add_u32 v{VT+1}, {7168+36}, v6")
        p(f"v_mul_u32_u24 v11, {1024+32}, v5")
        p(f"v_add3_u32 v{VT+2}, v11, v6, 0"); p(f"v_add_u32 v{VT+2}, {6144+16}, v{VT+2}")
        p.label(LE)
        SUM = 16
        p(f"s_lshl_b32 s48, s27, 13"); p(f"s_add_u32 s48, s48, {WS_KVS}")
        for i in range(3):
            for e in range(4):
                p(f"buffer_load_dword v{SUM+4*i+e}, v{VT+i}, s[40:43], s48 offen offset:{256*e} sc1")
        p("s_waitcnt vmcnt(0)")
        self.stamp2(5)
        p("s_mul_i32 s44, s25, 1536"); p(f"s_add_u32 s44, s44, {KVT}")
        p("v_lshlrev_b32 v4, 3, v1"); p("v_add_u32 v5, s44, v4")
        for i in range(3):
            p(f"v_cvt_pk_bf16_f32 v{SUM+4*i}, v{SUM+4*i}, v{SUM+4*i+1}")
            p(f"v_cvt_pk_bf16_f32 v{SUM+4*i+1}, v{SUM+4*i+2}, v{SUM+4*i+3}")
            p(f"ds_write_b64 v5, v[{SUM+4*i}:{SUM+4*i+1}] offset:{i*512}")
        p("s_waitcnt lgkmcnt(0)")
        self.lds_signal(W_KVR)
        self.lds_wait(W_KVR, 4)
        self.stamp(6)
        self.stamp2(6)
        TT = 68
        p("v_lshlrev_b32 v5, 3, v1"); p(f"v_add_u32 v5, {KVT}, v5")
        for tau in range(12): p(f"ds_read_b64 v[{TT+2*tau}:{TT+2*tau+1}], v5 offset:{tau*512}")
        p("v_lshrrev_b32 v2, 4, v1"); p("v_and_b32 v3, 15, v1"); p("v_lshrrev_b32 v5, 2, v3")
        for h in range(4):
            p(f"v_cmp_eq_u32 s[{56+2*h}:{57+2*h}], {h}, v2")
            p(f"v_cmp_eq_u32 s[{64+2*h}:{65+2*h}], {(h+2)&3}, v5")
        p("s_waitcnt lgkmcnt(0)")
        KVt = lambda h: TT + 2*h
        EXL, E0H, XXt = TT + 8, TT + 10, TT + 12
        ZL = lambda h: TT + 14 + 2*h
        ZH = TT + 22
        FR = 96
        for h in range(4):
            e0 = FR + 12*h; ex = e0 + 4; dn = e0 + 8
            mg, mr = f"s[{56+2*h}:{57+2*h}]", f"s[{64+2*h}:{65+2*h}]"
            p(f"v_mov_b32 v{e0}, v{KVt(h)}"); p(f"v_mov_b32 v{e0+1}, v{KVt(h)+1}")
            p(f"v_cndmask_b32 v{e0+2}, 0, v{E0H}, {mg}"); p(f"v_cndmask_b32 v{e0+3}, 0, v{E0H+1}, {mg}")
            p(f"v_cndmask_b32 v{ex}, 0, v{EXL}, {mr}"); p(f"v_cndmask_b32 v{ex+1}, 0, v{EXL+1}, {mr}")
            p(f"v_cndmask_b32 v{ex+2}, 0, v{XXt}, {mr}"); p(f"v_cndmask_b32 v{ex+3}, 0, v{XXt+1}, {mr}")
            p(f"v_mov_b32 v{dn}, v{ZL(h)}"); p(f"v_mov_b32 v{dn+1}, v{ZL(h)+1}")
            p(f"v_cndmask_b32 v{dn+2}, 0, v{ZH}, {mg}"); p(f"v_cndmask_b32 v{dn+3}, 0, v{ZH+1}, {mg}")
        self.lds_wait(W_BQ, 4, vtmp=(6, 7))
        for k in range(2):
            BQ = 16 if k == 0 else 32
            p(f"s_lshl_b32 s44, s25, 1"); p(f"s_add_u32 s44, s44, {k}")
            p("s_and_b32 s45, s44, 3"); p("s_mul_i32 s45, s45, 2560")
            p(f"s_mov_b32 s46, {BQL1}"); p("s_cmp_lt_u32 s44, 4"); p(f"s_cselect_b32 s46, {BQL0}, s46"); p("s_add_u32 s45, s45, s46")
            p("v_lshlrev_b32 v4, 3, v1"); p("v_add_u32 v5, s45, v4")
            for h in range(4):
                p(f"ds_read_b64 v[{BQ+4*h}:{BQ+4*h+1}], v5 offset:{h*512}")
                p(f"ds_read_b64 v[{BQ+4*h+2}:{BQ+4*h+3}], v5 offset:2048")
        p("v_lshlrev_b32 v4, 4, v1")
        p("s_waitcnt lgkmcnt(0)")
        NUM = 48; DN = 64; EXO = 80; RR = 144; OO = 84
        for k in range(2):
            BQ = 16 if k == 0 else 32
            bq = lambda h: vr(BQ + 4*h, 4)
            for h in range(4):
                e0 = FR + 12*h
                p(f"v_mfma_f32_16x16x32_bf16 {vr(NUM+4*h,4)}, {vr(e0,4)}, {bq(h)}, 0")
                p(f"v_mfma_f32_16x16x32_bf16 {vr(DN+4*h,4)}, {vr(e0+8,4)}, {bq(h)}, 0")
                c = "0" if h == 0 else vr(EXO, 4)
                p(f"v_mfma_f32_16x16x32_bf16 {vr(EXO,4)}, {vr(e0+4,4)}, {bq(h)}, {c}")
            p(f"s_mov_b32 s44, {EPS6}")
            for h in range(4): p(f"v_add_f32 v{RR+h}, s44, v{DN+4*h}")
            for h in range(4): p(f"v_rcp_f32 v{RR+h}, v{RR+h}")
            p(f"v_cndmask_b32 v{RR+4}, v{RR}, v{RR+2}, s[56:57]")
            p(f"v_cndmask_b32 v{RR+4}, v{RR+4}, v{RR+3}, s[58:59]")
            p(f"v_cndmask_b32 v{RR+4}, v{RR+4}, v{RR+1}, s[62:63]")
            for h in range(4):
                for i in range(4): p(f"v_mul_f32 v{NUM+4*h+i}, v{NUM+4*h+i}, v{RR+h}")
            for i in range(4): p(f"v_mul_f32 v{EXO+i}, v{EXO+i}, v{RR+4}")
            O_ = OO if k == 0 else 148
            for h in range(4):
                p(f"v_cvt_pk_bf16_f32 v{O_+2*h}, v{NUM+4*h}, v{NUM+4*h+1}")
                p(f"v_cvt_pk_bf16_f32 v{O_+2*h+1}, v{NUM+4*h+2}, v{NUM+4*h+3}")
            p(f"v_cvt_pk_bf16_f32 v{O_+8}, v{EXO}, v{EXO+1}")
            p(f"v_cvt_pk_bf16_f32 v{O_+9}, v{EXO+2}, v{EXO+3}")
            p("s_lshl_b32 s50, s26, 3"); p("s_lshl_b32 s44, s25, 1"); p("s_add_u32 s50, s50, s44"); p(f"s_add_u32 s50, s50, {k}")
            p(f"""
            s_mul_i32 s44, s50, {AP_ST}
            s_add_u32 s44, s44, {WS_AP}
            s_lshl_b32 s45, s27, 11
            s_add_u32 s45, s45, s44
            s_add_u32 s45, s45, {48*1024}
            v_add_u32 v5, s45, v4
            s_lshr_b32 s45, s27, 1
            s_lshl_b32 s45, s45, 10
            s_and_b32 s46, s27, 1
            s_lshl_b32 s46, s46, 3
            s_add_u32 s45, s45, s46
            s_add_u32 s45, s45, s44
            s_add_u32 s45, s45, {64*1024}
            v_add_u32 v6, s45, v4
            """)
            p(f"buffer_store_dwordx4 v[{O_}:{O_+3}], v5, s[40:43], 0 offen sc1")
            p(f"buffer_store_dwordx4 v[{O_+4}:{O_+7}], v5, s[40:43], 0 offen offset:1024 sc1")
            p(f"buffer_store_dwordx2 v[{O_+8}:{O_+9}], v6, s[40:43], 0 offen sc1")
        p("s_waitcnt vmcnt(0)")
        p("s_lshl_b32 s44, s26, 10"); p("s_lshl_b32 s45, s27, 7"); p("s_add_u32 s44, s44, s45"); p(f"s_add_u32 s58, s44, {F_O}")
        self.publish_last(W_PUB2, 4, "s58")
        self.stamp2(7)
        p.label("L_hp_or")
        N1 = p.newlabel("L_n1")
        p("s_cmp_eq_u32 s25, 0"); p(f"s_cbranch_scc0 {N1}")
        p(f"s_lshl_b32 s58, s26, 10"); p(f"s_add_u32 s58, s58, {F_O}")
        self.poll_flags("s58", 8)
        self.lds_signal(W_OR)
        self.stamp(7)
        p.label(N1)
        p("s_waitcnt lgkmcnt(0)")
        self.stamp_flush(8)
        p("s_branch L_end")

    def compute_path(self):
        p = self.p; cfg = self.cfg
        p("s_cmp_eq_u32 s25, 0"); p("s_cbranch_scc0 L_c_n0")
        p("v_lshlrev_b32 v3, 2, v1"); p(f"v_add_u32 v3, {SY}, v3"); p("v_mov_b32 v4, 0")
        p("s_mov_b64 exec, -2")
        p("ds_write_b32 v3, v4")
        p("s_mov_b64 exec, -1")
        p("s_cmp_eq_u32 s2, 0"); p("s_cbranch_scc0 L_c_n0")
        p("s_memrealtime s[44:45]")
        p("s_mov_b32 s96, s20"); p("s_mov_b32 s97, s21"); p("s_movk_i32 s98, 256"); p("s_mov_b32 s99, 0x20000")
        p("s_waitcnt lgkmcnt(0)")
        p("s_or_b32 s44, s44, 1")
        p("v_mov_b32 v3, s44"); p("v_mov_b32 v4, 0")
        p("s_mov_b64 exec, 1")
        p("buffer_store_dword v3, v4, s[96:99], 0 offen sc1")
        p("s_mov_b64 exec, -1")
        p.label("L_c_n0")
        p("s_cmp_eq_u32 s25, 3"); p("s_cbranch_scc0 L_c_n3")
        p("s_mov_b64 exec, 0xff")
        p("s_lshl_b32 s44, s31, 10")
        p("v_lshlrev_b32 v3, 7, v1"); p("v_add_u32 v3, s44, v3")
        p(f"v_min_u32 v3, CODE_BYTES_M, v3")
        p(f"global_load_dword v31, v3, s[74:75]")
        p("s_mov_b64 exec, -1")
        p("s_mov_b32 s96, s20"); p("s_mov_b32 s97, s21"); p("s_movk_i32 s98, 256"); p("s_mov_b32 s99, 0x20000")
        p("v_mov_b32 v4, 0")
        p(f"s_mov_b32 s47, {POLL_MAX*4}")
        p.label("L_c_tag")
        p("buffer_load_dword v3, v4, s[96:99], 0 offen sc1")
        p("s_waitcnt vmcnt(0)")
        p("v_readfirstlane_b32 s44, v3")
        p("s_cmp_lg_u32 s44, 0"); p("s_cbranch_scc1 L_c_tagd")
        p("s_sub_u32 s47, s47, 1"); p("s_cmp_lg_u32 s47, 0"); p("s_cbranch_scc1 L_c_tag")
        p.label("L_c_tagd")
        p(f"v_mov_b32 v2, {SY}")
        p(f"ds_write_b32 v2, v3 offset:{W_TAG}")
        p("s_getreg_b32 s45, hwreg(HW_REG_XCC_ID)")
        p("s_and_b32 s45, s45, 7")
        p("s_and_b32 s44, s44, 0xfffffff0"); p("s_or_b32 s44, s44, 8"); p("s_or_b32 s44, s44, s45")
        p("s_lshl_b32 s45, s26, 7"); p("s_lshl_b32 s46, s28, 5"); p("s_add_u32 s45, s45, s46")
        p("s_lshl_b32 s46, s27, 2"); p("s_add_u32 s45, s45, s46"); p(f"s_add_u32 s45, s45, {F_X}")
        p("v_mov_b32 v4, s45"); p("v_mov_b32 v5, s44")
        p("s_mov_b64 exec, 1")
        p("buffer_store_dword v5, v4, s[40:43], 0 offen sc1")
        p("s_mov_b64 exec, -1")
        p.label("L_c_n3")
        p("s_cmp_eq_u32 s28, 0")
        p("s_cbranch_scc0 L_c_h")
        self.t12_compute('kv')
        p("s_branch L_c_t4")
        p.label("L_c_h")
        self.t12_compute('h')
        p.label("L_c_t4")
        self.t4()
        p("s_branch L_end")

    def t12_compute(self, kind):
        p = self.p
        typ = 0 if kind == 'kv' else 1
        NT = 5 if kind == 'kv' else 6
        SETSZ = 16 + 4 * NT
        ACC = 32
        def xf(s, st): return SETSZ * s + 4 * st
        def wf(s, t): return SETSZ * s + 16 + 4 * t
        def acc(t, st): return ACC + (t * 4 + st) * 4
        if kind == 'kv':
            QACC = lambda i, st: 112 + (i*4 + st)*4
            QXACC = lambda k: 144 + 4*k
            GACC = 152
            QF = [72, 76, 80]; GF = 84
            NACC = 124
        else:
            GACC = 128; GF = 80; NACC = 100
        p("""
        s_lshr_b32 s48, s25, 1
        s_and_b32 s49, s25, 1
        v_lshrrev_b32 v2, 4, v1
        v_bfe_u32 v3, v1, 2, 2
        v_and_b32 v4, 3, v1
        v_bfe_u32 v5, v1, 3, 1
        s_lshl_b32 s44, s48, 3
        v_add_u32 v5, s44, v5
        v_lshlrev_b32 v5, 10, v5
        v_and_b32 v6, 7, v1
        v_lshl_add_u32 v5, v6, 7, v5
        v_xor_b32 v7, v2, v6
        v_lshl_add_u32 v8, v7, 4, v5
        v_xor_b32 v7, 4, v7
        v_lshl_add_u32 v9, v7, 4, v5
        v_lshrrev_b32 v5, 1, v2
        v_lshlrev_b32 v5, 4, v5
        v_and_b32 v6, 1, v2
        v_lshl_add_u32 v5, v6, 2, v5
        v_add_u32 v5, v5, v3
        """)
        self.rot10("s53")
        p("s_lshl_b32 s44, s53, 7"); p(f"s_add_u32 s44, s44, {GW}")
        p("v_lshlrev_b32 v19, 4, v2"); p("v_add_u32 v19, s44, v19")
        if kind == 'kv':
            p(f"""
            v_mul_u32_u24 v6, 160, v5
            v_add_u32 v7, {QOFF}, v6
            s_mul_i32 s44, s49, 80
            v_lshlrev_b32 v16, 3, v4
            v_add3_u32 v16, v16, v7, s44
            v_mul_u32_u24 v17, 40, v4
            v_add3_u32 v17, v17, v7, 32
            v_add_u32 v6, 16384, v6
            v_lshlrev_b32 v7, 3, v4
            v_add3_u32 v10, v6, v7, s44
            v_lshrrev_b32 v7, 1, v4
            v_xor_b32 v7, s49, v7
            v_mul_u32_u24 v7, {SEG}, v7
            v_and_b32 v13, 1, v4
            v_mul_u32_u24 v13, 40, v13
            v_add3_u32 v13, v13, v6, s44
            v_add3_u32 v11, v13, v7, 32
            """)
            def wread(t, s, b2):
                ro = (32 * s + 8 * b2) * 160
                if t in (0, 1): return ("v10", 40 * t + ro)
                if t in (2, 3): return ("v10", SEG + 40 * (t - 2) + ro)
                return ("v11", ro)
            addr_regs = [8, 9, 10, 11, 16, 17]
            transposed = lambda t: False
        else:
            p(f"""
            v_mul_u32_u24 v6, 384, v5
            v_add_u32 v6, 16384, v6
            v_and_b32 v7, 1, v4
            v_lshl_add_u32 v6, v7, 3, v6
            v_and_b32 v7, 6, v5
            v_lshrrev_b32 v20, 1, v4
            s_mul_i32 s44, s49, 12
            v_add_u32 v20, s44, v20
            """)
            for t in range(6):
                p(f"""
                v_add_u32 v21, {2*t}, v20
                v_xor_b32 v21, v21, v7
                v_lshl_add_u32 v{10+t}, v21, 4, v6
                """)
            def wread(t, s, b2): return (f"v{10+t}", (32 * s + 8 * b2) * 384)
            addr_regs = [8, 9, 10, 11, 12, 13, 14, 15]
            transposed = lambda t: True
        def base_reads(s_dst, s_k):
            vx = "v8" if s_k == 0 else "v9"
            xs = [f"ds_read_b128 {ar(xf(s_dst, st), 4)}, {vx} offset:{st*2048}" for st in range(4)]
            ws = []
            for t in range(NT):
                for b2 in range(2):
                    a, off = wread(t, s_k, b2)
                    ws.append(f"ds_read_b64_tr_b16 {ar(wf(s_dst, t) + 2*b2, 2)}, {a} offset:{off}")
            return [xs[0]] + ws[:4] + [xs[1]] + ws[4:8] + [xs[2]] + ws[8:10] + [xs[3]] + ws[10:]
        def q_reads(s_k):
            L = []
            if kind == 'kv' and not self.cfg.noqread:
                for b2 in range(2):
                    ro = (32 * s_k + 8 * b2) * 160
                    L.append(f"ds_read_b64_tr_b16 {ar(QF[0]+2*b2, 2)}, v16 offset:{ro}")
                    L.append(f"ds_read_b64_tr_b16 {ar(QF[1]+2*b2, 2)}, v16 offset:{ro + 40}")
                    L.append(f"ds_read_b64_tr_b16 {ar(QF[2]+2*b2, 2)}, v17 offset:{ro}")
            L.append(f"ds_read_b128 {ar(GF, 4)}, v19 offset:{64*s_k}")
            return L
        def base_mfmas(s):
            L = []
            for st in range(4):
                for t in range(NT):
                    A, B = (ar(wf(s, t), 4), ar(xf(s, st), 4)) if transposed(t) else (ar(xf(s, st), 4), ar(wf(s, t), 4))
                    c = vr(acc(t, st), 4)
                    L.append(f"v_mfma_f32_16x16x32_bf16 {c}, {A}, {B}, {c}")
            return L
        def q_mfmas(s):
            if self.cfg.noqread: return
            if kind == 'kv':
                for st in range(4):
                    for i in range(2):
                        c = vr(QACC(i, st), 4)
                        p(f"v_mfma_f32_16x16x32_bf16 {c}, {ar(QF[i],4)}, {ar(xf(s, st),4)}, {c}")
            LA, LB = p.newlabel("L_qm"), p.newlabel("L_qm")
            p("s_cmp_eq_u32 s49, 0"); p(f"s_cbranch_scc0 {LA}")
            for ch in range(2):
                if ch == 1: p.label(LA)
                if kind == 'kv':
                    for k in range(2):
                        c = vr(QXACC(k), 4)
                        p(f"v_mfma_f32_16x16x32_bf16 {c}, {ar(QF[2],4)}, {ar(xf(s, 2*ch + k),4)}, {c}")
                c = vr(GACC, 4)
                p(f"v_mfma_f32_16x16x32_bf16 {c}, {ar(GF,4)}, {ar(xf(s, 2*typ + ch),4)}, {c}")
                if ch == 0: p(f"s_branch {LB}")
            p.label(LB)
        def phase(s, rd, extra=()):
            q_mfmas(s)
            M = base_mfmas(s); other = list(rd) + list(extra)
            k = 0
            for i, m in enumerate(M):
                if not self.cfg.nomfma: p(m)
                for _ in range(2):
                    if k < len(other): p(other[k]); k += 1
            while k < len(other): p(other[k]); k += 1
        for i in range(NACC): p(f"v_mov_b32 v{ACC+i}, 0")
        p("s_mov_b32 s50, 0"); p("s_mov_b32 s51, 10"); p(f"s_mov_b32 s55, {STG}"); p("s_movk_i32 s54, 128")
        p("s_waitcnt lgkmcnt(0)")
        self.stamp(1)
        p("s_barrier")
        p(f"v_mov_b32 v2, {SY}")
        p(f"ds_read_b32 v3, v2 offset:{W_TAG}")
        for r in base_reads(0, 0) + q_reads(0): p(r)
        p("s_waitcnt lgkmcnt(0)")
        p("v_readfirstlane_b32 s30, v3")
        self.stamp(2)
        if self.cfg.span: self.span_mark(2)
        L = f"L_t12_loop_{kind}"
        p.label(L)
        upd = ["s_add_u32 s50, s50, 1", "s_cmp_eq_u32 s50, 3",
               f"s_cselect_b32 s52, {(-2*STG) & 0xffffffff}, s55", "s_cselect_b32 s50, 0, s50"] + \
              [f"v_add_u32 v{r}, s52, v{r}" for r in addr_regs] + \
              ["s_add_u32 s53, s53, 1", "s_cmp_eq_u32 s53, 10", f"s_cselect_b32 s52, {(-1152) & 0xffffffff}, s54", "s_cselect_b32 s53, 0, s53",
               "v_add_u32 v19, s52, v19"]
        phase(0, q_reads(1) + base_reads(1, 1), upd)
        p("s_waitcnt lgkmcnt(0)")
        p("s_barrier")
        phase(1, q_reads(0) + base_reads(0, 0))
        p("s_waitcnt lgkmcnt(0)")
        p("s_sub_u32 s51, s51, 1"); p("s_cmp_lg_u32 s51, 0"); p(f"s_cbranch_scc1 {L}")
        self.stamp(3)
        self.stamp2(1)
        if self.cfg.span: self.span_mark(3)
        if self.cfg.t12only:
            for k in range(4, 10): self.stamp(k)
            self.stamp_flush(10)
            p("s_branch L_end")
        p("s_waitcnt vmcnt(0)")
        p("v_lshlrev_b32 v18, 4, v1")
        if kind == 'h':
            self.epilogue_h(acc, last=True)
            self.epilogue_gate(GACC)
        else:
            self.epilogue_kv(acc)
            self.epilogue_gate(GACC)
            self.epilogue_q(QACC, QXACC)
        p("s_waitcnt vmcnt(0)")
        if kind == 'h':
            p("s_lshl_b32 s44, s26, 10"); p("s_lshl_b32 s45, s27, 7"); p("s_add_u32 s44, s44, s45"); p(f"s_add_u32 s44, s44, {F_H}")
        else:
            p("s_lshl_b32 s44, s27, 11"); p("s_lshl_b32 s45, s26, 7"); p("s_add_u32 s44, s44, s45"); p(f"s_add_u32 s44, s44, {F_KV}")
        self.publish_last(W_PUB1, 4, "s44")
        self.stamp(4)
        self.stamp2(2)
        if self.cfg.span: self.span_mark(4)

    def epilogue_gate(self, GACC):
        p = self.p
        p(f"s_mov_b32 s58, {LOG2E}")
        p(f"v_mul_f32 v6, s58, v{GACC}")
        p("v_sub_f32 v6, 0, v6")
        p("s_mov_b32 s59, 0x42700000")
        p("v_min_f32 v6, s59, v6")
        p("v_exp_f32 v6, v6")
        p("v_add_f32 v7, 1.0, v6"); p("v_rcp_f32 v7, v7")
        p("s_lshl_b32 s44, s25, 6")
        p("v_and_b32 v5, 15, v1"); p("v_lshlrev_b32 v5, 2, v5"); p("v_add_u32 v5, s44, v5")
        p(f"v_add_u32 v5, {GL}, v5")
        p("ds_write_b32 v5, v7")
        p(f"ds_write_b32 v5, v6 offset:{GR-GL}")
        p("s_waitcnt lgkmcnt(0)")
        self.lds_signal(W_GT)

    def epilogue_q(self, QACC, QXACC):
        p = self.p
        regs = [QACC(i, st) + e for i in range(2) for st in range(4) for e in range(4)] + [QXACC(k) + e for k in range(2) for e in range(4)]
        tmp = [32 + (t*4 + st)*4 + e for t in range(5) for st in (0, 2) for e in range(4)]
        p(f"s_mov_b32 s58, {LOG2E}"); p(f"s_mov_b32 s59, {EPS6}")
        for a, t in zip(regs, tmp): p(f"v_mul_f32 v{t}, s58, v{a}")
        for a, t in zip(regs, tmp): p(f"v_exp_f32 v{t}, v{t} clamp")
        for a in regs: p(f"v_max_f32 v{a}, 0, v{a}")
        for a in regs: p(f"v_add_f32 v{a}, s59, v{a}")
        for a, t in zip(regs, tmp): p(f"v_add_f32 v{a}, v{a}, v{t}")
        p(f"s_mov_b32 s44, {BQL1}"); p("s_cmp_eq_u32 s48, 0"); p(f"s_cselect_b32 s44, {BQL0}, s44")
        p("s_lshl_b32 s45, s49, 10"); p("s_add_u32 s45, s45, s44")
        p("v_lshlrev_b32 v5, 3, v1"); p("v_add_u32 v6, s45, v5")
        for i in range(2):
            for st in range(4):
                a = QACC(i, st)
                p(f"v_cvt_pk_bf16_f32 v{a}, v{a}, v{a+1}"); p(f"v_cvt_pk_bf16_f32 v{a+1}, v{a+2}, v{a+3}")
                p(f"ds_write_b64 v6, v[{a}:{a+1}] offset:{st*2560 + i*512}")
        p("s_mul_i32 s45, s49, 5120"); p("s_add_u32 s45, s45, s44"); p("v_add_u32 v6, s45, v5")
        for k in range(2):
            a = QXACC(k)
            p(f"v_cvt_pk_bf16_f32 v{a}, v{a}, v{a+1}"); p(f"v_cvt_pk_bf16_f32 v{a+1}, v{a+2}, v{a+3}")
            p(f"ds_write_b64 v6, v[{a}:{a+1}] offset:{k*2560 + 2048}")
        p("s_waitcnt lgkmcnt(0)")
        self.lds_signal(W_BQ)

    def epilogue_h(self, acc, last):
        p = self.p
        p(f"""
        s_lshl_b32 s44, s26, 3
        s_lshl_b32 s45, s48, 2
        s_add_u32 s44, s44, s45
        s_mul_i32 s44, s44, {AP_ST}
        s_mul_i32 s45, s27, 6
        s_mul_i32 s46, s49, 3
        s_add_u32 s45, s45, s46
        s_lshl_b32 s45, s45, 10
        s_add_u32 s44, s44, s45
        s_add_u32 s44, s44, {WS_AP}
        v_add_u32 v5, s44, v18
        """)
        self.read_loc()
        for st in range(4):
            for pp in range(3):
                a0, a1 = acc(2*pp, st), acc(2*pp+1, st)
                p(f"v_cvt_pk_bf16_f32 v{a0}, v{a0}, v{a0+1}")
                p(f"v_cvt_pk_bf16_f32 v{a0+1}, v{a0+2}, v{a0+3}")
                p(f"v_cvt_pk_bf16_f32 v{a0+2}, v{a1}, v{a1+1}")
                p(f"v_cvt_pk_bf16_f32 v{a0+3}, v{a1+2}, v{a1+3}")
                for i in range(4): p(f"v_pk_max_i16 v{a0+i}, v{a0+i}, 0")
        for st in range(1, 4): p(f"v_add_u32 v{7+st}, {AP_ST*st}, v5")
        p("v_mov_b32 v7, v5")
        def stores(sc):
            for st in range(4):
                for pp in range(3):
                    a0 = acc(2*pp, st)
                    p(f"buffer_store_dwordx4 v[{a0}:{a0+3}], v{7+st}, s[40:43], 0 offen offset:{pp*1024}{sc}")
        self.dual(stores)

    def epilogue_kv(self, acc):
        p = self.p
        K0, K1, V0, V1, X = range(5)
        p(f"s_mov_b32 s53, {LOG2E}"); p(f"s_mov_b32 s54, {EPS6}")
        p("v_lshrrev_b32 v2, 4, v1"); p("v_and_b32 v3, 15, v1")
        p("v_lshrrev_b32 v4, 3, v3"); p("v_cmp_eq_u32 s[56:57], s49, v4")
        p("v_lshrrev_b32 v7, 1, v2"); p("v_cmp_eq_u32 s[58:59], s49, v7")
        T0 = 20
        def phi_group(regs, tm):
            for i, a in enumerate(regs): p(f"v_mul_f32 v{tm+i}, s53, v{a}")
            for i, a in enumerate(regs): p(f"v_exp_f32 v{tm+i}, v{tm+i} clamp")
            for i, a in enumerate(regs): p(f"v_max_f32 v{a}, 0, v{a}")
            for i, a in enumerate(regs): p(f"v_add_f32 v{a}, s54, v{a}")
            for i, a in enumerate(regs): p(f"v_add_f32 v{a}, v{a}, v{tm+i}")
        for st in range(4):
            phi_group([acc(K0, st)+i for i in range(4)] + [acc(K1, st)+i for i in range(4)], T0)
            a = acc(X, st); tm = T0
            for i in range(4): p(f"v_mul_f32 v{tm+i}, s53, v{a+i}")
            for i in range(4): p(f"v_exp_f32 v{tm+i}, v{tm+i} clamp")
            for i in range(4): p(f"v_max_f32 v{tm+4+i}, 0, v{a+i}")
            for i in range(4): p(f"v_add_f32 v{tm+4+i}, s54, v{tm+4+i}")
            for i in range(4): p(f"v_add_f32 v{tm+4+i}, v{tm+4+i}, v{tm+i}")
            for i in range(4): p(f"v_cndmask_b32 v{a+i}, v{a+i}, v{tm+4+i}, s[56:57]")
        for t in (K0, K1, V0, V1, X):
            for kk in range(2):
                a, b = acc(t, 2*kk), acc(t, 2*kk+1)
                p(f"v_cvt_pk_bf16_f32 v{a}, v{a}, v{a+1}")
                p(f"v_cvt_pk_bf16_f32 v{a+1}, v{a+2}, v{a+3}")
                p(f"v_cvt_pk_bf16_f32 v{a+2}, v{b}, v{b+1}")
                p(f"v_cvt_pk_bf16_f32 v{a+3}, v{b+2}, v{b+3}")
        fr = lambda t, kk: vr(acc(t, 2*kk), 4)
        free = [acc(t, s) for t in (K0, K1, V0, V1, X) for s in (1, 3)]
        KV0, KV1, KX0, KX1, XV0, XV1, XX, Z0, Z1, ZX = free
        ONES = T0
        for i in range(4): p(f"v_mov_b32 v{ONES+i}, 0x3f803f80")
        ones = vr(ONES, 4)
        for kk in range(2):
            for (d, A, B) in ((KV0, fr(K0,kk), fr(V0,kk)), (KV1, fr(K1,kk), fr(V1,kk)), (KX0, fr(K0,kk), fr(X,kk)),
                              (KX1, fr(K1,kk), fr(X,kk)), (XV0, fr(X,kk), fr(V0,kk)), (XV1, fr(X,kk), fr(V1,kk)),
                              (XX, fr(X,kk), fr(X,kk)), (Z0, fr(K0,kk), ones), (Z1, fr(K1,kk), ones), (ZX, fr(X,kk), ones)):
                c = "0" if kk == 0 else vr(d, 4)
                p(f"v_mfma_f32_16x16x32_bf16 {vr(d,4)}, {A}, {B}, {c}")
        p("v_bfe_u32 v4, v3, 2, 1"); p("v_cmp_eq_u32 s[60:61], 1, v4")
        p("v_and_b32 v4, 1, v2"); p("v_cmp_eq_u32 s[62:63], 1, v4")
        p("v_and_b32 v4, 1, v3"); p("v_cmp_eq_u32 s[64:65], 1, v4")
        for i in range(4): p(f"v_cndmask_b32 v{KX0+i}, v{KX0+i}, v{KX1+i}, s[60:61]")
        for i in range(4): p(f"v_cndmask_b32 v{XV0+i}, v{XV0+i}, v{XV1+i}, s[62:63]")
        for i in range(4): p(f"v_cndmask_b32 v{Z0+i}, v{Z0+i}, v{Z1+i}, s[64:65]")
        p("s_lshl_b32 s44, s49, 2"); p("v_lshrrev_b32 v4, 1, v3"); p("v_cmp_eq_u32 s[60:61], s44, v4")
        p("s_lshl_b32 s44, s49, 3"); p("s_add_u32 s44, s44, 4"); p("v_cmp_eq_u32 s[62:63], s44, v3")
        for i in range(4): p(f"v_cndmask_b32 v{XX+i}, v{XX+i}, v{Z0+i}, s[60:61]")
        for i in range(4): p(f"v_cndmask_b32 v{XX+i}, v{XX+i}, v{ZX+i}, s[62:63]")
        tiles = [KV0, KV1, KX0, XV0, XX]
        p("s_mul_i32 s44, s49, 5120"); p(f"s_add_u32 s44, s44, {KVRED}")
        p("v_add_u32 v4, s44, v18")
        R0 = p.newlabel("L_kr")
        p("s_cmp_eq_u32 s48, 0"); p(f"s_cbranch_scc1 {R0}")
        for j, t in enumerate(tiles): p(f"ds_write_b128 v4, {vr(t,4)} offset:{j*1024}")
        p.label(R0)
        self.cbar(vtmp=(5, 6))
        TMs = [acc(t, 0) for t in range(5)]
        for j in range(5): p(f"ds_read_b128 {vr(TMs[j],4)}, v4 offset:{j*1024}")
        p("s_waitcnt lgkmcnt(0)")
        for j, t in enumerate(tiles):
            m = TMs[j]
            p(f"v_pk_add_f32 v[{t}:{t+1}], v[{t}:{t+1}], v[{m}:{m+1}]")
            p(f"v_pk_add_f32 v[{t+2}:{t+3}], v[{t+2}:{t+3}], v[{m+2}:{m+3}]")
        for i in range(4): p(f"v_cndmask_b32 v{KX0+i}, v{KX0+i}, 0, s[56:57]")
        for i in range(4): p(f"v_cndmask_b32 v{XV0+i}, 0, v{XV0+i}, s[58:59]")
        self.lds_wait(W_ZOK, 2, vtmp=(5, 6))
        p(f"""
        s_lshl_b32 s44, s27, 13
        s_add_u32 s44, s44, {WS_KVS}
        s_cmp_eq_u32 s48, 0
        s_cselect_b32 s44, s44, {OOB}
        v_lshlrev_b32 v4, 2, v1
        v_add_u32 v4, s44, v4
        s_lshl_b32 s45, s49, 11
        v_add_u32 v5, s45, v4
        v_add_u32 v6, 4096, v4
        s_lshl_b32 s45, s49, 10
        v_add_u32 v7, s45, v4
        v_add_u32 v7, 6144, v7
        """)
        for (t, a, off) in ((KV0, "v5", 0), (KV1, "v5", 1024), (KX0, "v6", 0), (XV0, "v6", 1024), (XX, "v7", 0)):
            for e in range(4):
                p(f"buffer_atomic_add_f32 v{t+e}, {a}, s[40:43], 0 offen offset:{off + 256*e}")

    def t4(self):
        p = self.p
        ACC = 32
        acc = lambda sg, t: ACC + (sg*5 + t)*4
        def BF(j, sg):
            k = (j % PD)*4 + sg
            return ar(40 + 4*k, 4) if k < 14 else vr(112 + 4*(k-14), 4)
        AF = lambda j, t: ar(20*(j & 1) + 4*t, 4)
        VB = 8
        PL, PB, PC = 20, 25, 152
        def stile(sg, out):
            p(f"s_add_u32 s44, s25, {sg}"); p("s_and_b32 s44, s44, 3")
            p("s_lshr_b32 s45, s44, 1"); p("s_lshl_b32 s45, s45, 2"); p("s_and_b32 s46, s44, 1"); p("s_add_u32 s45, s45, s46")
            p("s_lshl_b32 s46, s28, 1"); p("s_add_u32 s45, s45, s46"); p("s_lshl_b32 s46, s26, 3"); p(f"s_add_u32 {out}, s45, s46")
        for sg in range(4):
            stile(sg, "s47")
            if sg == 0: p("s_mov_b32 s71, s47")
            p(f"s_mul_i32 s47, s47, {AP_ST}"); p(f"s_add_u32 s47, s47, {WS_AP}")
            p(f"v_add_u32 v{VB+sg}, s47, v18")
        p("s_mul_i32 s44, s27, 160")
        p("s_add_u32 s32, s14, s44"); p("s_addc_u32 s33, s15, 0"); p("s_sub_u32 s34, 1966080, s44"); p("s_mov_b32 s35, 0x20000")
        p("s_add_u32 s36, s8, s44"); p("s_addc_u32 s37, s9, 0"); p("s_sub_u32 s38, 819200, s44"); p("s_mov_b32 s39, 0x20000")
        p("s_mul_i32 s52, s25, 12"); p("s_mul_i32 s53, s25, 5")
        p("s_mul_i32 s60, s25, 5120")
        self.t4_rot()
        def ks_next(j):
            if j < 12:
                p("s_add_u32 s54, s52, s56")
                p("s_add_u32 s56, s56, 1"); p("s_cmp_eq_u32 s56, 12"); p("s_cselect_b32 s56, 0, s56")
            else:
                p("s_add_u32 s54, s53, s57")
                p("s_add_u32 s57, s57, 1"); p("s_cmp_eq_u32 s57, 5"); p("s_cselect_b32 s57, 0, s57")
        def loadW(j):
            p(f"s_add_u32 s61, s60, {WBASE[j % PD]}")
            if j < 12:
                p("s_mul_i32 s55, s54, 40960")
                self.wdma(PL, "s[32:35]", "s55", "s61")
            else:
                LC, LD_ = p.newlabel("L_oc"), p.newlabel("L_od")
                p("s_cmp_lt_u32 s54, 16"); p(f"s_cbranch_scc0 {LC}")
                p("s_mul_i32 s55, s54, 51200")
                self.wdma(PB, "s[36:39]", "s55", "s61")
                p(f"s_branch {LD_}")
                p.label(LC)
                p("s_sub_u32 s55, s54, 16"); p("s_mul_i32 s55, s55, 204800")
                self.wdma(PC, "s[36:39]", "s55", "s61")
                p.label(LD_)
        def loadB(j):
            if j < 12: p("s_lshl_b32 s54, s54, 10")
            else: p("s_add_u32 s54, s54, 48"); p("s_lshl_b32 s54, s54, 10")
            for sg in range(4):
                p(f"buffer_load_dwordx4 {BF(j, sg)}, v{VB+sg}, s[40:43], s54 offen sc1")
        self.wpattern(PL, 'lin', 1280)
        for j in range(PD):
            ks_next(j)
            p(f"s_mov_b32 s{62 + j}, s54")
            if j >= 4: loadW(j)
        self.lds_wait(W_HR, 1)
        self.stamp2(3)
        for j in range(PD):
            p(f"s_mov_b32 s54, s{62 + j}"); loadB(j)
        self.stamp(5)
        self.stamp2(4)
        self.wpattern(PB, 'B', 1280); self.wpattern(PC, 'C', 1280)
        self.lds_wait(W_GT, 4)
        p("v_and_b32 v5, 15, v1"); p("v_lshlrev_b32 v5, 2, v5")
        for sg in range(4):
            p(f"s_add_u32 s44, s25, {sg}"); p("s_and_b32 s44, s44, 3"); p("s_lshl_b32 s44, s44, 6"); p(f"s_add_u32 s44, s44, {GL}")
            p("v_add_u32 v6, s44, v5")
            p(f"ds_read_b32 v{12+sg}, v6 offset:{GR-GL}")
            if sg == 0: p("ds_read_b32 v19, v6")
        p("""
        v_lshrrev_b32 v2, 4, v1
        v_bfe_u32 v3, v1, 2, 2
        v_and_b32 v4, 3, v1
        v_lshl_add_u32 v6, v2, 2, v3
        v_mul_u32_u24 v6, 160, v6
        v_mul_u32_u24 v4, 40, v4
        v_add3_u32 v6, v6, v4, s60
        """)
        p("v_add_u32 v7, 65536, v6")
        NS = 17
        def treads(j):
            L = []
            base = WBASE[j % PD]
            for t in range(5):
                for b2 in range(2):
                    off = base + 16*b2*160 + 8*t
                    a = "v6"
                    if off >= 65536: a = "v7"; off -= 65536
                    L.append(f"ds_read_b64_tr_b16 {ar(20*(j&1) + 4*t + 2*b2, 2)}, {a} offset:{off}")
            return L
        q = [("W4", 5), ("W5", 5)] + [(f"B{j}", 4) for j in range(PD)]
        def wait_for(tag):
            tags = [t for t, _ in q]
            if tag not in tags: return
            idx = tags.index(tag)
            p(f"s_waitcnt vmcnt({sum(k for _, k in q[idx+1:])})")
            del q[:idx+1]
        self.lds_wait(W_P01, 4)
        for r in treads(0): p(r)
        self.stamp(6)
        for j in range(NS):
            nxt = j + PD
            if j + 1 == 2: self.lds_wait(W_P23, 4, vtmp=(2, 3))
            if j + 1 < NS: wait_for(f"W{j+1}")
            wait_for(f"B{j}")
            p("s_waitcnt lgkmcnt(0)")
            if j == 1: self.stamp(7); self.stamp2(5)
            if j == 12:
                self.stamp(8)
                for sg in range(4):
                    for t in range(5):
                        for i in range(4): p(f"v_mul_f32 v{acc(sg,t)+i}, v{acc(sg,t)+i}, v{12+sg}")
            tr = treads(j+1) if j + 1 < NS else []
            k = 0
            for sg in range(4):
                for t in range(5):
                    c = vr(acc(sg, t), 4)
                    p(f"v_mfma_f32_16x16x32_bf16 {c}, {AF(j,t)}, {BF(j,sg)}, {'0' if j == 0 else c}")
                    if k < len(tr): p(tr[k]); k += 1
            if nxt < NS:
                ks_next(nxt); loadW(nxt)
                q.append((f"W{nxt}", 5))
                if nxt < 12:
                    loadB(nxt); q.append((f"B{nxt}", 4))
                else:
                    p(f"s_mov_b32 s{62 + nxt - 12}, s54")
            if j == self.cfg.orstep:
                if self.cfg.span: self.span_mark(5)
                self.stamp2(6); self.lds_wait(W_OR, 1); self.stamp2(7)
                if self.cfg.span: self.span_mark(6)
                for jj in range(12, NS):
                    p(f"s_mov_b32 s54, s{62 + jj - 12}") if jj - PD <= j else None
                    if jj - PD > j: raise Exception("orstep too early")
                    loadB(jj); q.append((f"B{jj}", 4))
        self.stamp2(8)
        self.cbar()
        for sg in range(1, 4):
            p(f"s_add_u32 s44, s25, {sg}"); p("s_and_b32 s44, s44, 3"); p("s_mul_i32 s44, s44, 3"); p(f"s_add_u32 s44, s44, {sg-1}")
            p("s_mul_i32 s45, s44, 5120")
            p("v_add_u32 v5, s45, v18")
            for t in range(5): p(f"ds_write_b128 v5, {vr(acc(sg,t),4)} offset:{t*1024}")
        self.cbar()
        p("s_mul_i32 s45, s25, 15360")
        p("v_add_u32 v5, s45, v18")
        for k in range(3):
            for t in range(5): p(f"ds_read_b128 {vr(acc(1+k,t),4)}, v5 offset:{k*5120+t*1024}")
        p("s_waitcnt lgkmcnt(0)")
        for k in range(3):
            for t in range(5):
                a, b = acc(0, t), acc(1+k, t)
                p(f"v_pk_add_f32 v[{a}:{a+1}], v[{a}:{a+1}], v[{b}:{b+1}]")
                p(f"v_pk_add_f32 v[{a+2}:{a+3}], v[{a+2}:{a+3}], v[{b+2}:{b+3}]")
        O = 112
        for t in range(5):
            for i in range(4): p(f"v_mul_f32 v{acc(0,t)+i}, v{acc(0,t)+i}, v19")
        for t in range(5):
            a = acc(0, t)
            p(f"v_cvt_pk_bf16_f32 v{O+2*t}, v{a}, v{a+1}")
            p(f"v_cvt_pk_bf16_f32 v{O+2*t+1}, v{a+2}, v{a+3}")
        p("""
        s_mov_b32 s32, s18
        s_mov_b32 s33, s19
        s_mov_b32 s34, 2621440
        s_mov_b32 s35, 0x20000
        v_lshrrev_b32 v2, 4, v1
        v_and_b32 v3, 15, v1
        s_lshl_b32 s44, s71, 4
        v_add_u32 v3, s44, v3
        v_mul_u32_u24 v3, 1280, v3
        v_mul_u32_u24 v2, 40, v2
        s_mul_i32 s44, s27, 160
        v_add3_u32 v3, v3, v2, s44
        """)
        p(f"buffer_store_dwordx4 v[{O}:{O+3}], v3, s[32:35], 0 offen")
        p(f"buffer_store_dwordx4 v[{O+4}:{O+7}], v3, s[32:35], 0 offen offset:16")
        p(f"buffer_store_dwordx2 v[{O+8}:{O+9}], v3, s[32:35], 0 offen offset:32")
        self.stamp(9)
        self.stamp2(9)
        self.stamp_flush(10)
        if self.cfg.span:
            self.span_mark(1)

    def span_mark(self, word):
        p = self.p
        p("s_memrealtime s[44:45]"); p("s_waitcnt lgkmcnt(0)")
        p("s_sub_u32 s44, s44, s30")
        p("s_mov_b32 s96, s20"); p("s_mov_b32 s97, s21"); p("s_movk_i32 s98, 256"); p("s_mov_b32 s99, 0x20000")
        p("v_mov_b32 v2, s44"); p(f"v_mov_b32 v3, {4*word}")
        p("s_mov_b64 exec, 1")
        p("buffer_atomic_umax v2, v3, s[96:99], 0 offen sc1")
        p("s_mov_b64 exec, -1")

def kd(name, vgpr, accum, sgpr=102):
    return f""".amdhsa_kernel {name}
  .amdhsa_next_free_vgpr {vgpr}
  .amdhsa_next_free_sgpr {sgpr}
  .amdhsa_accum_offset {accum}
  .amdhsa_group_segment_fixed_size 0
  .amdhsa_kernarg_size 80
  .amdhsa_user_sgpr_count 2
  .amdhsa_user_sgpr_kernarg_segment_ptr 1
  .amdhsa_system_sgpr_workgroup_id_x 1
.end_amdhsa_kernel
"""

def head_comment():
    f = "cdna_kernels/" + NAME + ".s.ref"
    return open(f).read().split("; Override launch")[0] if os.path.exists(f) else ""

def build(cfg):
    g = Gen(cfg); g.emit()
    body = g.p.text(verbose=True)
    hdr = head_comment() + f"""; @launch grid=(256,1,1) block=(512,1,1) lds={LDS_BYTES}
.amdgcn_target "amdgcn-amd-amdhsa--gfx950"
.text
.globl {KNAME}
.p2align 8
.type {KNAME},@function
{KNAME}:
"""
    body = body.replace("CODE_BYTES_M", f".Lcode_end-{KNAME}-512")
    tail = ".Lcode_end:\n"
    return hdr + body + tail + '.section .rodata,"a"\n.p2align 6\n' + kd(KNAME, 256, 160)

if __name__ == "__main__":
    cfg = Cfg()
    cfg.stamps = "stamps" in sys.argv
    cfg.dbg2 = "dbg2" in sys.argv
    cfg.rot = "norot" not in sys.argv
    cfg.local = "nolocal" not in sys.argv
    cfg.t12only = "t12only" in sys.argv
    cfg.map81 = "map81" in sys.argv
    cfg.spoll = "vpoll" not in sys.argv
    cfg.kv1 = "kv1" in sys.argv
    cfg.span = "span" in sys.argv
    cfg.noqdma = "noqdma" in sys.argv
    cfg.noqread = "noqread" in sys.argv
    cfg.nomfma = "nomfma" in sys.argv
    cfg.stouch = "stouch" in sys.argv
    for a in sys.argv:
        if a.startswith("wpre="): cfg.wpre = tuple(int(x) for x in a[5:].split(","))
    cfg.w45late = "w45early" not in sys.argv
    for a in sys.argv:
        if a.startswith("or="): cfg.orstep = int(a[3:])
    cfg.early_s1 = "es1" in sys.argv
    if not cfg.map81: cfg.local = False
    out = [a for a in sys.argv[1:] if a.endswith(".s")]
    open(out[0] if out else "x5.s", "w").write(build(cfg))
```

```python
import sys, os
from asmlib import *

NAME = "gated_mix__linear_attn_block__dense_activation_relu__prompt"
KNAME = NAME + "_kernel"

AP_ST = 68 * 1024
WS_AP = 0
WS_KVP = 13 << 20
WS_KVS = 14 << 20
WS_F = 15 << 20
F_H = WS_F
F_KV = WS_F + 16384
F_O = WS_F + 32768
F_X = WS_F + 65536
F_KS = WS_F + 73728
WS_TS = 16 << 20
WS_SIZE = 17 << 20
OOB = 0x80000000

STG = 51200
SEG = 10256
QOFF = 40960
WBASE = [51200, 71680, 102400, 122880, 0, 20480]
KVRED = 92160
BQL0, BQL1 = 40960, 143360
KVT = 153600
GW = 159744
GL = 161024
GR = 161280
SY = 161536
LDS_BYTES = 161792
W_TAG, W_KVR, W_HR, W_OR, W_PUB1, W_BQ, W_PUB2, W_KVF, W_LOC, W_P01, W_P23, W_GT, W_KF1, W_ZOK = [4*i for i in range(14)]
W_CB = 64
LOG2E = 0x3fb8aa3b
EPS6 = 0x358637bd
POLL_MAX = 1 << 13
PD = 6

class Cfg:
    stamps = False
    dbg2 = False
    rot = True
    local = True
    t12only = False
    map81 = False
    spoll = True
    kv1 = False
    span = False
    noqdma = False
    noqread = False
    nomfma = False
    stouch = False
    wpre = (7, 8)
    w45late = True
    orstep = 11
    early_s1 = False

class Gen:
    def __init__(self, cfg):
        self.p = Prog(); self.cfg = cfg; self.ncb = 0
    def stamp(self, idx):
        if self.cfg.stamps and (idx == 0 or not self.cfg.dbg2): self.p(f"s_memtime s[{80+2*idx}:{81+2*idx}]")
    def stamp2(self, idx):
        if self.cfg.stamps and self.cfg.dbg2: self.p(f"s_memtime s[{80+2*idx}:{81+2*idx}]")
    def stamp_flush(self, n):
        if not self.cfg.stamps: return
        p = self.p
        p("s_waitcnt lgkmcnt(0)")
        p("s_memrealtime s[78:79]")
        p("s_lshl_b32 s100, s2, 3"); p("s_add_u32 s100, s100, s24")
        p("s_lshl_b32 s100, s100, 7")
        p(f"s_add_u32 s100, s100, {WS_TS}")
        p("v_mov_b32 v4, s100")
        p("s_waitcnt lgkmcnt(0)")
        p("s_mov_b64 exec, 1")
        regs = [80 + 2*i for i in range(n)]
        for i, r in enumerate(regs + [76, 78]):
            off = 8*i if i < n else (112 + 8*(i-n))
            p(f"v_mov_b32 v2, s{r}"); p(f"v_mov_b32 v3, s{r+1}")
            p(f"buffer_store_dwordx2 v[2:3], v4, s[40:43], 0 offen offset:{off}")
            p("s_nop 1")
        p("s_mov_b64 exec, -1")
    def lds_signal(self, word, vtmp=(2, 3)):
        p = self.p; a, b = vtmp
        p(f"v_mov_b32 v{a}, {SY}"); p(f"v_mov_b32 v{b}, 1")
        p("s_mov_b64 exec, 1")
        p(f"ds_add_u32 v{a}, v{b} offset:{word}")
        p("s_mov_b64 exec, -1")
    def lds_wait(self, word, target, vtmp=(2, 3), sleep=False):
        p = self.p; a, b = vtmp
        L = p.newlabel("L_lw"); D = p.newlabel("L_lwd")
        p(f"v_mov_b32 v{a}, {SY}")
        p(f"s_mov_b32 s47, {POLL_MAX*32}")
        p.label(L)
        p(f"ds_read_b32 v{b}, v{a} offset:{word}")
        p("s_waitcnt lgkmcnt(0)")
        p(f"v_readfirstlane_b32 s46, v{b}")
        p(f"s_cmp_ge_u32 s46, {target}")
        p(f"s_cbranch_scc1 {D}")
        if sleep: p("s_sleep 1")
        p("s_sub_u32 s47, s47, 1")
        p("s_cmp_lg_u32 s47, 0")
        p(f"s_cbranch_scc1 {L}")
        p.label(D)
    def cbar(self, vtmp=(2, 3)):
        w = W_CB + 4 * self.ncb; self.ncb += 1
        assert w < 256
        self.p("s_waitcnt lgkmcnt(0)")
        self.lds_signal(w, vtmp)
        self.lds_wait(w, 4, vtmp)
    def poll_flags(self, addr_s, nwords, vt=(2, 3)):
        p = self.p; a, b = vt
        L = p.newlabel("L_pf"); D = p.newlabel("L_pfd")
        if self.cfg.spoll:
            p(f"s_add_u32 s4, s22, {addr_s}"); p("s_addc_u32 s5, s23, 0")
            p(f"s_mov_b32 s47, {POLL_MAX}")
            p.label(L)
            p("s_mov_b32 s46, 0")
            for base in range(0, nwords, 8):
                for i in range(8): p(f"s_load_dword s{8+i}, s[4:5], {(base+i)*128} glc")
                p("s_waitcnt lgkmcnt(0)")
                for i in range(8):
                    p(f"s_xor_b32 s{8+i}, s{8+i}, s30"); p(f"s_or_b32 s46, s46, s{8+i}")
            p("s_cmp_eq_u32 s46, 0")
            p(f"s_cbranch_scc1 {D}")
            p("s_sleep 1")
            p("s_sub_u32 s47, s47, 1")
            p("s_cmp_lg_u32 s47, 0")
            p(f"s_cbranch_scc1 {L}")
            p.label(D)
            return
        p(f"v_min_u32 v{a}, {nwords-1}, v1")
        p(f"v_lshlrev_b32 v{a}, 7, v{a}")
        p(f"v_add_u32 v{a}, {addr_s}, v{a}")
        p(f"s_mov_b32 s47, {POLL_MAX}")
        p.label(L)
        p(f"buffer_load_dword v{b}, v{a}, s[40:43], 0 offen sc1")
        p("s_waitcnt vmcnt(0)")
        p(f"v_cmp_eq_u32 vcc, s30, v{b}")
        p("s_nop 1")
        p("s_cmp_eq_u64 vcc, -1")
        p(f"s_cbranch_scc1 {D}")
        p("s_sleep 2")
        p("s_sub_u32 s47, s47, 1")
        p("s_cmp_lg_u32 s47, 0")
        p(f"s_cbranch_scc1 {L}")
        p.label(D)
    def poll_flags_safe(self, addr_s, nwords):
        p = self.p
        L = p.newlabel("L_pf"); D = p.newlabel("L_pfd")
        p(f"s_add_u32 s100, s22, {addr_s}"); p("s_addc_u32 s101, s23, 0")
        p(f"s_mov_b32 s47, {POLL_MAX}")
        p.label(L)
        p("s_mov_b32 s46, 0")
        for half in range(2):
            for i in range(4): p(f"s_load_dword s{76+i}, s[100:101], {(4*half+i)*128} glc")
            p("s_waitcnt lgkmcnt(0)")
            for i in range(4):
                p(f"s_xor_b32 s{76+i}, s{76+i}, s30"); p(f"s_or_b32 s46, s46, s{76+i}")
        p("s_cmp_eq_u32 s46, 0")
        p(f"s_cbranch_scc1 {D}")
        p("s_sleep 1")
        p("s_sub_u32 s47, s47, 1")
        p("s_cmp_lg_u32 s47, 0")
        p(f"s_cbranch_scc1 {L}")
        p.label(D)
    def dual(self, emit):
        p = self.p
        if not self.cfg.local:
            emit(" sc1"); return
        A, B = p.newlabel("L_du"), p.newlabel("L_du")
        p("s_cmp_eq_u32 s72, 1"); p(f"s_cbranch_scc1 {A}")
        emit(" sc1")
        p(f"s_branch {B}")
        p.label(A)
        emit("")
        p.label(B)
    def flag_store(self, addr_s, vt=(2, 3), dual=False):
        p = self.p; a, b = vt
        p(f"v_mov_b32 v{a}, {addr_s}"); p(f"v_mov_b32 v{b}, s30")
        p("s_mov_b64 exec, 1")
        if dual: self.dual(lambda sc: p(f"buffer_store_dword v{b}, v{a}, s[40:43], 0 offen{sc}"))
        else: p(f"buffer_store_dword v{b}, v{a}, s[40:43], 0 offen sc1")
        p("s_mov_b64 exec, -1")
    def publish_last(self, word, target, addr_s, vt=(2, 3), dual=False):
        p = self.p; a, b = vt
        p(f"v_mov_b32 v{a}, {SY}"); p(f"v_mov_b32 v{b}, 1")
        p("s_mov_b64 exec, 1")
        p(f"ds_add_rtn_u32 v{b}, v{a}, v{b} offset:{word}")
        p("s_mov_b64 exec, -1")
        p("s_waitcnt lgkmcnt(0)")
        p(f"v_readfirstlane_b32 s46, v{b}")
        p(f"s_cmp_eq_u32 s46, {target-1}")
        p(f"s_cselect_b32 s47, {addr_s}, {OOB}")
        self.flag_store("s47", vt, dual)
    def read_loc(self, vt=(2, 3)):
        p = self.p; a, b = vt
        p(f"v_mov_b32 v{a}, {SY}"); p(f"ds_read_b32 v{b}, v{a} offset:{W_LOC}"); p("s_waitcnt lgkmcnt(0)")
        p(f"v_readfirstlane_b32 s72, v{b}")
    def rot10(self, dst):
        p = self.p
        if not self.cfg.rot:
            p(f"s_mov_b32 {dst}, 0"); return
        if self.cfg.map81:
            p(f"""
            s_and_b32 s45, s26, 1
            s_mul_i32 s45, s45, 5
            s_add_u32 {dst}, s27, s45
            s_add_u32 {dst}, {dst}, s73
            s_cmp_ge_u32 {dst}, 10
            s_cselect_b32 s45, 10, 0
            s_sub_u32 {dst}, {dst}, s45
            s_cmp_ge_u32 {dst}, 10
            s_cselect_b32 s45, 10, 0
            s_sub_u32 {dst}, {dst}, s45
            """)
        else:
            p(f"""
            s_and_b32 s45, s27, 3
            s_lshl_b32 s45, s45, 1
            s_add_u32 {dst}, s45, s28
            s_and_b32 s45, s26, 3
            s_mul_i32 s45, s45, 3
            s_add_u32 {dst}, {dst}, s45
            s_cmp_ge_u32 {dst}, 10
            s_cselect_b32 s45, 10, 0
            s_sub_u32 {dst}, {dst}, s45
            """)
    def wpattern(self, dst, kind, stride, tmp=(2, 3, 4, 5, 6), out=None):
        L = []
        e = L.append
        a, b, c, d, f = tmp
        for u in range(5):
            e(f"v_add_u32 v{a}, {64*u}, v1")
            e(f"v_mul_u32_u24 v{b}, 6554, v{a}")
            e(f"v_lshrrev_b32 v{b}, 16, v{b}")
            e(f"v_mul_u32_u24 v{c}, 10, v{b}")
            e(f"v_sub_u32 v{c}, v{a}, v{c}")
            if kind == 'B':
                e(f"v_lshrrev_b32 v{d}, 4, v{b}"); e(f"v_mul_u32_u24 v{d}, 20, v{d}")
                e(f"v_and_b32 v{b}, 15, v{b}"); e(f"v_add_u32 v{b}, v{b}, v{d}")
            elif kind == 'C':
                e(f"v_lshrrev_b32 v{d}, 4, v{b}"); e(f"v_lshlrev_b32 v{d}, 2, v{d}")
                e(f"v_bfe_u32 v{f}, v{b}, 2, 2"); e(f"v_add_u32 v{f}, 2, v{f}"); e(f"v_and_b32 v{f}, 3, v{f}")
                e(f"v_add_u32 v{d}, v{d}, v{f}"); e(f"v_mul_u32_u24 v{d}, 20, v{d}")
                e(f"v_and_b32 v{b}, 3, v{b}"); e(f"v_add3_u32 v{b}, v{b}, v{d}, 16")
            e(f"v_mul_u32_u24 v{b}, {stride}, v{b}")
            e(f"v_lshl_add_u32 v{b}, v{c}, 4, v{b}")
            if 0 < u < 4: e(f"v_subrev_u32 v{dst+u}, {1024*u}, v{b}")
            else: e(f"v_mov_b32 v{dst+u}, v{b}")
        if out is not None: out += L
        else:
            for x in L: self.p(x)
    def wdma(self, pat, srd, soff, m0_s):
        p = self.p
        p(f"s_mov_b32 m0, {m0_s}")
        for u in range(4):
            p(f"buffer_load_dwordx4 v{pat+u}, {srd}, {soff} offen offset:{1024*u} lds")
        p(f"s_add_u32 m0, {m0_s}, 4096")
        p(f"buffer_load_dwordx4 v{pat+4}, {srd}, {soff} offen lds")
    def t4_rot(self, rb="s56", ro="s57"):
        p = self.p
        if self.cfg.rot and not self.cfg.map81:
            p("s_and_b32 s44, s29, 7"); p("s_and_b32 s45, s27, 3")
            p("s_mul_i32 s46, s45, 3"); p(f"s_add_u32 {rb}, s44, s46")
            p(f"s_cmp_ge_u32 {rb}, 12"); p("s_cselect_b32 s46, 12, 0"); p(f"s_sub_u32 {rb}, {rb}, s46")
            p(f"s_add_u32 {ro}, s44, s45")
            p(f"s_cmp_ge_u32 {ro}, 10"); p("s_cselect_b32 s46, 10, 0"); p(f"s_sub_u32 {ro}, {ro}, s46")
            p(f"s_cmp_ge_u32 {ro}, 5"); p("s_cselect_b32 s46, 5, 0"); p(f"s_sub_u32 {ro}, {ro}, s46")
        elif self.cfg.rot:
            p("s_and_b32 s44, s29, 3"); p("s_mul_i32 s45, s44, 3"); p(f"s_add_u32 {rb}, s45, s73")
            p(f"s_cmp_ge_u32 {rb}, 12"); p("s_cselect_b32 s46, 12, 0"); p(f"s_sub_u32 {rb}, {rb}, s46")
            p(f"s_add_u32 {ro}, s44, s73")
            p(f"s_cmp_ge_u32 {ro}, 10"); p("s_cselect_b32 s46, 10, 0"); p(f"s_sub_u32 {ro}, {ro}, s46")
            p(f"s_cmp_ge_u32 {ro}, 5"); p("s_cselect_b32 s46, 5, 0"); p(f"s_sub_u32 {ro}, {ro}, s46")
        else:
            p(f"s_mov_b32 {rb}, 0"); p(f"s_mov_b32 {ro}, 0")

    def emit(self):
        p = self.p; cfg = self.cfg
        if cfg.stamps: p("s_memrealtime s[76:77]")
        if cfg.map81:
            MAP = """s_and_b32 s73, s2, 7
        s_lshr_b32 s31, s2, 3
        s_and_b32 s44, s31, 1
        s_lshl_b32 s26, s73, 1
        s_add_u32 s26, s26, s44
        s_bfe_u32 s28, s31, 0x10001
        s_lshr_b32 s27, s31, 2
        s_lshl_b32 s29, s26, 1
        s_add_u32 s29, s29, s28"""
        else:
            MAP = """s_and_b32 s44, s2, 7
        s_lshr_b32 s31, s2, 3
        s_lshr_b32 s73, s44, 1
        s_and_b32 s3, s44, 1
        s_and_b32 s28, s31, 1
        s_lshr_b32 s45, s31, 1
        s_and_b32 s26, s45, 3
        s_lshl_b32 s46, s73, 2
        s_add_u32 s26, s26, s46
        s_lshr_b32 s27, s45, 2
        s_lshl_b32 s46, s3, 2
        s_add_u32 s27, s27, s46
        s_lshl_b32 s29, s26, 1
        s_add_u32 s29, s29, s28"""
        p(f"""
        s_cmp_ge_u32 s2, 256
        s_cbranch_scc1 L_end
        s_load_dwordx16 s[4:19], s[0:1], 0
        s_load_dwordx4 s[20:23], s[0:1], 64
        s_getpc_b64 s[74:75]
        v_and_b32 v1, 63, v0
        v_lshrrev_b32 v2, 6, v0
        v_readfirstlane_b32 s24, v2
        {MAP}
        s_and_b32 s25, s24, 3
        s_mov_b32 s72, 0
        s_waitcnt lgkmcnt(0)
        """)
        self.stamp(0)
        p(f"""
        s_mov_b32 s40, s22
        s_mov_b32 s41, s23
        s_mov_b32 s42, {WS_SIZE}
        s_mov_b32 s43, 0x20000
        s_cmp_ge_u32 s24, 4
        s_cbranch_scc0 L_compute
        s_cmp_eq_u32 s28, 0
        s_cbranch_scc0 L_helper_h
        """)
        self.helper_t12('kv')
        p("s_branch L_hp_post")
        p.label("L_helper_h")
        self.helper_t12('h')
        p.label("L_hp_post")
        self.helper_post()
        p.label("L_compute")
        self.compute_path()
        p.label("L_end")
        p("s_endpgm")

    def helper_t12(self, kind):
        p = self.p; cfg = self.cfg
        VO = 8; SD = 48
        NW = 5 if kind == 'kv' else 6
        n = 4 + NW + (3 if kind == 'kv' and not cfg.noqdma else 0)
        wstep = 245760 if kind == 'kv' else 196608
        p(f"""
        s_mul_i32 s44, s26, 163840
        s_add_u32 s32, s4, s44
        s_addc_u32 s33, s5, 0
        s_sub_u32 s34, 2621440, s44
        s_mov_b32 s35, 0x20000
        v_lshrrev_b32 v2, 3, v1
        v_and_b32 v3, 7, v1
        v_xor_b32 v4, v3, v2
        v_lshlrev_b32 v4, 4, v4
        s_lshl_b32 s44, s25, 5
        v_add_u32 v5, s44, v2
        v_mul_u32_u24 v5, 1280, v5
        v_add_u32 v8, v5, v4
        v_add_u32 v9, 10240, v8
        v_add_u32 v10, 20480, v8
        v_add_u32 v11, 30720, v8
        s_lshl_b32 s48, s25, 12
        s_add_u32 s49, s48, 1024
        s_add_u32 s50, s48, 2048
        s_add_u32 s51, s48, 3072
        s_mov_b32 s60, 0
        """)
        self.rot10("s59")
        p("s_lshl_b32 s61, s59, 7")
        p(f"s_mul_i32 s62, s59, {wstep}")
        p("s_mul_i32 s66, s59, 245760")
        for b in range(4):
            p(f"s_mov_b32 m0, s{SD+b}")
            p(f"buffer_load_dwordx4 v{VO+b}, s[32:35], s61 offen lds")
        if kind == 'kv':
            p("s_mul_i32 s44, s27, 160"); p("s_add_u32 s44, s44, 1280")
            p("s_add_u32 s36, s6, s44"); p("s_addc_u32 s37, s7, 0"); p("s_sub_u32 s38, 2457600, s44")
        else:
            p("s_mul_i32 s44, s27, 384")
            p("s_add_u32 s36, s12, s44"); p("s_addc_u32 s37, s13, 0"); p("s_sub_u32 s38, 1966080, s44")
        p("s_mov_b32 s39, 0x20000")
        def seg_pattern(dst):
            p(f"""
            v_mul_u32_u24 v3, 6554, v2
            v_lshrrev_b32 v3, 16, v3
            v_mul_u32_u24 v4, 10, v3
            v_sub_u32 v4, v2, v4
            v_and_b32 v5, 0x33, v3
            v_and_b32 v6, 4, v3
            v_lshl_or_b32 v5, v6, 1, v5
            v_and_b32 v6, 8, v3
            v_lshrrev_b32 v6, 1, v6
            v_or_b32 v5, v5, v6
            v_mul_u32_u24 v5, 3840, v5
            v_lshl_add_u32 v{dst}, v4, 4, v5
            """)
        if kind == 'kv':
            for a in range(5):
                p(f"""
                s_add_u32 s44, s25, {4*a}
                s_cmp_ge_u32 s44, 10
                s_cselect_b32 s45, 1, 0
                s_mul_i32 s46, s45, 10
                s_sub_u32 s46, s44, s46
                s_lshl_b32 s47, s46, 6
                v_add_u32 v2, s47, v1
                """)
                seg_pattern(VO+4+a)
                p(f"""
                s_mul_i32 s47, s45, 1280
                v_add_u32 v{VO+4+a}, s47, v{VO+4+a}
                s_mul_i32 s47, s45, {SEG}
                s_lshl_b32 s46, s46, 10
                s_add_u32 s47, s47, s46
                s_add_u32 s{SD+4+a}, s47, 16384
                s_mov_b32 m0, s{SD+4+a}
                buffer_load_dwordx4 v{VO+4+a}, s[36:39], s62 offen lds
                """)
        else:
            for a in range(6):
                pat = a % 3
                p(f"""
                v_add_u32 v2, {64*pat}, v1
                v_mul_u32_u24 v3, 2731, v2
                v_lshrrev_b32 v3, 16, v3
                v_mul_u32_u24 v4, 24, v3
                v_sub_u32 v4, v2, v4
                v_and_b32 v5, 6, v3
                v_xor_b32 v4, v4, v5
                v_lshrrev_b32 v5, 2, v3
                v_lshlrev_b32 v5, 3, v5
                v_and_b32 v6, 3, v3
                v_add_u32 v5, v5, v6
                s_lshl_b32 s44, s25, 4
                s_add_u32 s44, s44, {4*(a//3)}
                v_add_u32 v5, s44, v5
                v_mul_u32_u24 v5, 3072, v5
                v_lshl_add_u32 v{VO+4+a}, v4, 4, v5
                s_mul_i32 s44, s25, 6144
                s_add_u32 s{SD+4+a}, s44, {16384 + a*1024}
                s_mov_b32 m0, s{SD+4+a}
                buffer_load_dwordx4 v{VO+4+a}, s[36:39], s62 offen lds
                """)
        if kind == 'kv':
            p("s_mul_i32 s44, s27, 160")
            p("s_add_u32 s68, s6, s44"); p("s_addc_u32 s69, s7, 0"); p("s_sub_u32 s70, 2457600, s44"); p("s_mov_b32 s71, 0x20000")
            p("s_mul_i32 s44, s25, 160"); p("s_mul_i32 s67, s25, 2560"); p(f"s_add_u32 s67, s67, {QOFF}")
            for a in range(3):
                p(f"v_add_u32 v2, s44, v1")
                if a: p(f"v_add_u32 v2, {64*a}, v2")
                p("v_min_u32 v2, 639, v2")
                seg_pattern(20 + a)
        def issue_q(buf):
            if kind != 'kv' or cfg.noqdma: return
            for a in range(3):
                p(f"s_add_u32 m0, {buf}, s67") if a == 0 else p(f"s_add_u32 m0, m0, 1024")
                if a == 2: p("s_mov_b32 exec_hi, 0")
                p(f"buffer_load_dwordx4 v{20+a}, s[68:71], s66 offen lds")
                if a == 2: p("s_mov_b64 exec, -1")
        issue_q("s60")
        def advance():
            p(f"s_add_u32 s60, s60, {STG}")
            p(f"s_cmp_eq_u32 s60, {3*STG}")
            p("s_cselect_b32 s60, 0, s60")
            p("s_add_u32 s61, s61, 128")
            p(f"s_add_u32 s62, s62, {wstep}")
            p("s_add_u32 s66, s66, 245760")
            p("s_add_u32 s59, s59, 1")
            p("s_cmp_eq_u32 s59, 10")
            p("s_cselect_b32 s59, 0, s59")
            p("s_cselect_b32 s61, 0, s61")
            p("s_cselect_b32 s62, 0, s62")
            p("s_cselect_b32 s66, 0, s66")
        def issue():
            for i in range(4 + NW):
                p(f"s_add_u32 m0, s60, s{SD+i}")
                srd, so = ("s[32:35]", "s61") if i < 4 else ("s[36:39]", "s62")
                p(f"buffer_load_dwordx4 v{VO+i}, {srd}, {so} offen lds")
            issue_q("s60")
            advance()
        p("s_mov_b32 s96, s16"); p("s_mov_b32 s97, s17"); p("s_movk_i32 s98, 1280"); p("s_mov_b32 s99, 0x20000")
        p("v_lshlrev_b32 v2, 4, v1")
        p(f"s_mov_b32 m0, {GW}")
        p("buffer_load_dwordx4 v2, s[96:99], 0 offen lds")
        p("s_mov_b32 exec_lo, 0xffff"); p("s_mov_b32 exec_hi, 0")
        p("buffer_load_dwordx4 v2, s[96:99], 0 offen offset:1024 lds")
        p("s_mov_b64 exec, -1")
        advance()
        self.stamp(1)
        q = [("s0", n), ("gw", 2)]
        def push(tag, k): q.append((tag, k))
        def wait_for(tag):
            tags = [t for t, _ in q]
            if tag not in tags: return
            idx = tags.index(tag)
            p(f"s_waitcnt vmcnt({sum(k for _, k in q[idx+1:])})")
            del q[:idx+1]
        if cfg.early_s1:
            issue(); push("s1", n)
        wait_for("gw")
        self.stamp(2)
        p("s_barrier")
        if not cfg.early_s1:
            issue(); push("s1", n)
        issue(); push("s2", n)
        p(f"v_mov_b32 v2, {SY}")
        p(f"ds_read_b32 v3, v2 offset:{W_TAG}")
        p("s_waitcnt lgkmcnt(0)")
        p("v_readfirstlane_b32 s30, v3")
        for i in range(10):
            if i <= 8: wait_for(f"s{i+1}")
            p("s_barrier")
            if i == 0: self.stamp(3)
            if i <= 6: issue(); push(f"s{i+3}", n)
            if i == 0 and kind == 'h':
                p("s_lshl_b32 s44, s27, 13"); p("s_lshl_b32 s45, s26, 9"); p("s_add_u32 s44, s44, s45"); p(f"s_add_u32 s44, s44, {WS_KVS}")
                p("s_cmp_eq_u32 s25, 0"); p(f"s_cselect_b32 s44, s44, {OOB}")
                p("v_and_b32 v2, 31, v1"); p("v_lshlrev_b32 v2, 4, v2"); p("v_add_u32 v2, s44, v2")
                for e in range(4): p(f"v_mov_b32 v{32+e}, 0")
                p("s_mov_b32 exec_hi, 0")
                p("buffer_store_dwordx4 v[32:35], v2, s[40:43], 0 offen sc1")
                p("s_mov_b64 exec, -1")
                push("zs", 1)
            if i == 3 and kind == 'h':
                wait_for("zs")
                p("s_lshl_b32 s44, s27, 11"); p("s_lshl_b32 s45, s26, 7"); p("s_add_u32 s44, s44, s45"); p(f"s_add_u32 s58, s44, {F_KS}")
                p("s_cmp_eq_u32 s25, 0"); p(f"s_cselect_b32 s58, s58, {OOB}")
                self.flag_store("s58"); push("zf", 1)
            if i == 2:
                self.wpattern(26, 'lin', 1280)
                p("s_mul_i32 s44, s27, 160")
                p("s_add_u32 s96, s14, s44"); p("s_addc_u32 s97, s15, 0"); p("s_sub_u32 s98, 1966080, s44"); p("s_mov_b32 s99, 0x20000")
                self.t4_rot("s0", "s1")
                p("s_mul_i32 s64, s25, 12")
            if cfg.stouch and i in (2, 4, 6):
                if i == 2 or i == 4:
                    k0 = 0 if i == 2 else 8
                    p("s_mul_i32 s44, s2, 7680"); p("s_mul_i32 s45, s25, 1920"); p("s_add_u32 s44, s44, s45")
                    p("s_add_u32 s46, s14, s44"); p("s_addc_u32 s47, s15, 0")
                    for k in range(k0, min(15, k0 + 8)): p(f"s_load_dword s3, s[46:47], {128*k}")
                else:
                    p("s_mul_i32 s44, s2, 3200"); p("s_mul_i32 s45, s25, 800"); p("s_add_u32 s44, s44, s45")
                    p(f"s_min_u32 s44, s44, {819200 - 7*128}")
                    p("s_add_u32 s46, s8, s44"); p("s_addc_u32 s47, s9, 0")
                    for k in range(7): p(f"s_load_dword s3, s[46:47], {128*k}")
            if i == 5:
                p("v_min_u32 v2, 15, v1"); p("v_lshlrev_b32 v2, 2, v2")
                p("s_lshl_b32 s44, s26, 7"); p(f"s_add_u32 s44, s44, {F_X}")
                p("buffer_load_dword v31, v2, s[40:43], s44 offen sc1")
                push("xc", 1)
            if i == 6 and kind == 'kv':
                NZ = p.newlabel("L_nz")
                p("s_sub_u32 s3, s25, 1"); p("s_cmp_lt_u32 s3, 2"); p(f"s_cbranch_scc0 {NZ}")
                p("s_lshl_b32 s58, s27, 11"); p("s_lshl_b32 s44, s3, 10"); p("s_add_u32 s58, s58, s44"); p(f"s_add_u32 s58, s58, {F_KS}")
                self.poll_flags_safe("s58", 8)
                self.lds_signal(W_ZOK)
                p.label(NZ)
            if i == 7:
                wait_for("xc")
                p("s_getreg_b32 s45, hwreg(HW_REG_XCC_ID)"); p("s_and_b32 s45, s45, 7")
                p("s_and_b32 s44, s30, 0xfffffff0"); p("s_or_b32 s44, s44, 8"); p("s_or_b32 s44, s44, s45")
                p("v_cmp_eq_u32 vcc, s44, v31")
                p("s_nop 1")
                p("s_cmp_eq_u64 vcc, -1")
                p("s_cselect_b32 s72, 1, 2")
                p(f"v_mov_b32 v2, {SY}"); p("v_mov_b32 v3, s72")
                p(f"ds_write_b32 v2, v3 offset:{W_LOC}")
                p("s_waitcnt lgkmcnt(0)")
            if not cfg.t12only:
                if i == cfg.wpre[0]:
                    for j in (0, 1): self.h_wstep(j); push(f"w{j}", 5)
                if i == cfg.wpre[1]:
                    for j in (2, 3): self.h_wstep(j); push(f"w{j}", 5)
        if not cfg.t12only:
            wait_for("w1"); self.lds_signal(W_P01)
            wait_for("w3"); self.lds_signal(W_P23)

    def h_wstep(self, j):
        p = self.p
        p("s_add_u32 s44, s64, s0")
        p("s_add_u32 s0, s0, 1"); p("s_cmp_eq_u32 s0, 12"); p("s_cselect_b32 s0, 0, s0")
        p("s_mul_i32 s44, s44, 40960")
        p("s_mul_i32 s65, s25, 5120"); p(f"s_add_u32 s65, s65, {WBASE[j]}")
        self.wdma(26, "s[96:99]", "s44", "s65")

    def helper_post(self):
        p = self.p
        if self.cfg.t12only:
            p("s_waitcnt vmcnt(0)"); self.stamp_flush(8); p("s_branch L_end"); return
        self.stamp(4)
        N0 = p.newlabel("L_n0")
        p("s_cmp_eq_u32 s25, 0"); p(f"s_cbranch_scc0 {N0}")
        p(f"s_lshl_b32 s58, s26, 10"); p(f"s_add_u32 s58, s58, {F_H}")
        self.poll_flags("s58", 8)
        self.lds_signal(W_HR)
        self.stamp(5)
        p.label(N0)
        p("s_cmp_eq_u32 s28, 0"); p("s_cbranch_scc1 L_hp_kvcu")
        p("s_branch L_hp_or")
        p.label("L_hp_kvcu")
        N3x = p.newlabel("L_n3x")
        p("s_sub_u32 s59, s25, 1"); p("s_cmp_lt_u32 s59, 2"); p(f"s_cbranch_scc0 {N3x}")
        p("s_lshl_b32 s58, s27, 11"); p("s_lshl_b32 s44, s59, 10"); p("s_add_u32 s58, s58, s44"); p(f"s_add_u32 s58, s58, {F_KV}")
        self.poll_flags("s58", 8)
        self.lds_signal(W_KVF)
        p.label(N3x)
        self.lds_wait(W_KVF, 2)
        self.stamp2(4)
        p("v_lshrrev_b32 v2, 4, v1"); p("v_and_b32 v3, 15, v1")
        p(f"v_mov_b32 v7, {OOB}")
        p("v_add_u32 v4, 2, v2"); p("v_and_b32 v4, 3, v4"); p("v_lshrrev_b32 v5, 2, v3")
        p("v_cmp_eq_u32 s[56:57], v4, v5")
        VT = 8
        LA, LB, LE = [p.newlabel("L_kt") for _ in range(3)]
        p("v_lshlrev_b32 v4, 2, v1"); p("v_lshrrev_b32 v5, 1, v2"); p("v_lshlrev_b32 v6, 6, v2")
        p("s_cmp_ge_u32 s25, 2"); p(f"s_cbranch_scc1 {LA}")
        p("s_mul_i32 s44, s25, 3072")
        for i in range(3):
            p(f"v_add_u32 v{VT+i}, s44, v4")
            if i: p(f"v_add_u32 v{VT+i}, {1024*i}, v{VT+i}")
        p(f"s_branch {LE}")
        p.label(LA)
        p("s_cmp_eq_u32 s25, 2"); p(f"s_cbranch_scc0 {LB}")
        p("v_lshlrev_b32 v11, 10, v5"); p("v_add3_u32 v11, v11, v4, 0"); p("v_add_u32 v11, 6144, v11")
        p(f"v_cndmask_b32 v{VT}, v7, v11, s[56:57]")
        p(f"v_add_u32 v{VT+1}, {6144}, v6")
        p(f"v_add_u32 v{VT+2}, {6144+4}, v6")
        p(f"s_branch {LE}")
        p.label(LB)
        p(f"v_add_u32 v{VT}, {7168+32}, v6")
        p(f"v_add_u32 v{VT+1}, {7168+36}, v6")
        p(f"v_mul_u32_u24 v11, {1024+32}, v5")
        p(f"v_add3_u32 v{VT+2}, v11, v6, 0"); p(f"v_add_u32 v{VT+2}, {6144+16}, v{VT+2}")
        p.label(LE)
        SUM = 16
        p(f"s_lshl_b32 s48, s27, 13"); p(f"s_add_u32 s48, s48, {WS_KVS}")
        for i in range(3):
            for e in range(4):
                p(f"buffer_load_dword v{SUM+4*i+e}, v{VT+i}, s[40:43], s48 offen offset:{256*e} sc1")
        p("s_waitcnt vmcnt(0)")
        self.stamp2(5)
        p("s_mul_i32 s44, s25, 1536"); p(f"s_add_u32 s44, s44, {KVT}")
        p("v_lshlrev_b32 v4, 3, v1"); p("v_add_u32 v5, s44, v4")
        for i in range(3):
            p(f"v_cvt_pk_bf16_f32 v{SUM+4*i}, v{SUM+4*i}, v{SUM+4*i+1}")
            p(f"v_cvt_pk_bf16_f32 v{SUM+4*i+1}, v{SUM+4*i+2}, v{SUM+4*i+3}")
            p(f"ds_write_b64 v5, v[{SUM+4*i}:{SUM+4*i+1}] offset:{i*512}")
        p("s_waitcnt lgkmcnt(0)")
        self.lds_signal(W_KVR)
        self.lds_wait(W_KVR, 4)
        self.stamp(6)
        self.stamp2(6)
        TT = 68
        p("v_lshlrev_b32 v5, 3, v1"); p(f"v_add_u32 v5, {KVT}, v5")
        for tau in range(12): p(f"ds_read_b64 v[{TT+2*tau}:{TT+2*tau+1}], v5 offset:{tau*512}")
        p("v_lshrrev_b32 v2, 4, v1"); p("v_and_b32 v3, 15, v1"); p("v_lshrrev_b32 v5, 2, v3")
        for h in range(4):
            p(f"v_cmp_eq_u32 s[{56+2*h}:{57+2*h}], {h}, v2")
            p(f"v_cmp_eq_u32 s[{64+2*h}:{65+2*h}], {(h+2)&3}, v5")
        p("s_waitcnt lgkmcnt(0)")
        KVt = lambda h: TT + 2*h
        EXL, E0H, XXt = TT + 8, TT + 10, TT + 12
        ZL = lambda h: TT + 14 + 2*h
        ZH = TT + 22
        FR = 96
        for h in range(4):
            e0 = FR + 12*h; ex = e0 + 4; dn = e0 + 8
            mg, mr = f"s[{56+2*h}:{57+2*h}]", f"s[{64+2*h}:{65+2*h}]"
            p(f"v_mov_b32 v{e0}, v{KVt(h)}"); p(f"v_mov_b32 v{e0+1}, v{KVt(h)+1}")
            p(f"v_cndmask_b32 v{e0+2}, 0, v{E0H}, {mg}"); p(f"v_cndmask_b32 v{e0+3}, 0, v{E0H+1}, {mg}")
            p(f"v_cndmask_b32 v{ex}, 0, v{EXL}, {mr}"); p(f"v_cndmask_b32 v{ex+1}, 0, v{EXL+1}, {mr}")
            p(f"v_cndmask_b32 v{ex+2}, 0, v{XXt}, {mr}"); p(f"v_cndmask_b32 v{ex+3}, 0, v{XXt+1}, {mr}")
            p(f"v_mov_b32 v{dn}, v{ZL(h)}"); p(f"v_mov_b32 v{dn+1}, v{ZL(h)+1}")
            p(f"v_cndmask_b32 v{dn+2}, 0, v{ZH}, {mg}"); p(f"v_cndmask_b32 v{dn+3}, 0, v{ZH+1}, {mg}")
        self.lds_wait(W_BQ, 4, vtmp=(6, 7))
        for k in range(2):
            BQ = 16 if k == 0 else 32
            p(f"s_lshl_b32 s44, s25, 1"); p(f"s_add_u32 s44, s44, {k}")
            p("s_and_b32 s45, s44, 3"); p("s_mul_i32 s45, s45, 2560")
            p(f"s_mov_b32 s46, {BQL1}"); p("s_cmp_lt_u32 s44, 4"); p(f"s_cselect_b32 s46, {BQL0}, s46"); p("s_add_u32 s45, s45, s46")
            p("v_lshlrev_b32 v4, 3, v1"); p("v_add_u32 v5, s45, v4")
            for h in range(4):
                p(f"ds_read_b64 v[{BQ+4*h}:{BQ+4*h+1}], v5 offset:{h*512}")
                p(f"ds_read_b64 v[{BQ+4*h+2}:{BQ+4*h+3}], v5 offset:2048")
        p("v_lshlrev_b32 v4, 4, v1")
        p("s_waitcnt lgkmcnt(0)")
        NUM = 48; DN = 64; EXO = 80; RR = 144; OO = 84
        for k in range(2):
            BQ = 16 if k == 0 else 32
            bq = lambda h: vr(BQ + 4*h, 4)
            for h in range(4):
                e0 = FR + 12*h
                p(f"v_mfma_f32_16x16x32_bf16 {vr(NUM+4*h,4)}, {vr(e0,4)}, {bq(h)}, 0")
                p(f"v_mfma_f32_16x16x32_bf16 {vr(DN+4*h,4)}, {vr(e0+8,4)}, {bq(h)}, 0")
                c = "0" if h == 0 else vr(EXO, 4)
                p(f"v_mfma_f32_16x16x32_bf16 {vr(EXO,4)}, {vr(e0+4,4)}, {bq(h)}, {c}")
            p(f"s_mov_b32 s44, {EPS6}")
            for h in range(4): p(f"v_add_f32 v{RR+h}, s44, v{DN+4*h}")
            for h in range(4): p(f"v_rcp_f32 v{RR+h}, v{RR+h}")
            p(f"v_cndmask_b32 v{RR+4}, v{RR}, v{RR+2}, s[56:57]")
            p(f"v_cndmask_b32 v{RR+4}, v{RR+4}, v{RR+3}, s[58:59]")
            p(f"v_cndmask_b32 v{RR+4}, v{RR+4}, v{RR+1}, s[62:63]")
            for h in range(4):
                for i in range(4): p(f"v_mul_f32 v{NUM+4*h+i}, v{NUM+4*h+i}, v{RR+h}")
            for i in range(4): p(f"v_mul_f32 v{EXO+i}, v{EXO+i}, v{RR+4}")
            O_ = OO if k == 0 else 148
            for h in range(4):
                p(f"v_cvt_pk_bf16_f32 v{O_+2*h}, v{NUM+4*h}, v{NUM+4*h+1}")
                p(f"v_cvt_pk_bf16_f32 v{O_+2*h+1}, v{NUM+4*h+2}, v{NUM+4*h+3}")
            p(f"v_cvt_pk_bf16_f32 v{O_+8}, v{EXO}, v{EXO+1}")
            p(f"v_cvt_pk_bf16_f32 v{O_+9}, v{EXO+2}, v{EXO+3}")
            p("s_lshl_b32 s50, s26, 3"); p("s_lshl_b32 s44, s25, 1"); p("s_add_u32 s50, s50, s44"); p(f"s_add_u32 s50, s50, {k}")
            p(f"""
            s_mul_i32 s44, s50, {AP_ST}
            s_add_u32 s44, s44, {WS_AP}
            s_lshl_b32 s45, s27, 11
            s_add_u32 s45, s45, s44
            s_add_u32 s45, s45, {48*1024}
            v_add_u32 v5, s45, v4
            s_lshr_b32 s45, s27, 1
            s_lshl_b32 s45, s45, 10
            s_and_b32 s46, s27, 1
            s_lshl_b32 s46, s46, 3
            s_add_u32 s45, s45, s46
            s_add_u32 s45, s45, s44
            s_add_u32 s45, s45, {64*1024}
            v_add_u32 v6, s45, v4
            """)
            p(f"buffer_store_dwordx4 v[{O_}:{O_+3}], v5, s[40:43], 0 offen sc1")
            p(f"buffer_store_dwordx4 v[{O_+4}:{O_+7}], v5, s[40:43], 0 offen offset:1024 sc1")
            p(f"buffer_store_dwordx2 v[{O_+8}:{O_+9}], v6, s[40:43], 0 offen sc1")
        p("s_waitcnt vmcnt(0)")
        p("s_lshl_b32 s44, s26, 10"); p("s_lshl_b32 s45, s27, 7"); p("s_add_u32 s44, s44, s45"); p(f"s_add_u32 s58, s44, {F_O}")
        self.publish_last(W_PUB2, 4, "s58")
        self.stamp2(7)
        p.label("L_hp_or")
        N1 = p.newlabel("L_n1")
        p("s_cmp_eq_u32 s25, 0"); p(f"s_cbranch_scc0 {N1}")
        p(f"s_lshl_b32 s58, s26, 10"); p(f"s_add_u32 s58, s58, {F_O}")
        self.poll_flags("s58", 8)
        self.lds_signal(W_OR)
        self.stamp(7)
        p.label(N1)
        p("s_waitcnt lgkmcnt(0)")
        self.stamp_flush(8)
        p("s_branch L_end")

    def compute_path(self):
        p = self.p; cfg = self.cfg
        p("s_cmp_eq_u32 s25, 0"); p("s_cbranch_scc0 L_c_n0")
        p("v_lshlrev_b32 v3, 2, v1"); p(f"v_add_u32 v3, {SY}, v3"); p("v_mov_b32 v4, 0")
        p("s_mov_b64 exec, -2")
        p("ds_write_b32 v3, v4")
        p("s_mov_b64 exec, -1")
        p("s_cmp_eq_u32 s2, 0"); p("s_cbranch_scc0 L_c_n0")
        p("s_memrealtime s[44:45]")
        p("s_mov_b32 s96, s20"); p("s_mov_b32 s97, s21"); p("s_movk_i32 s98, 256"); p("s_mov_b32 s99, 0x20000")
        p("s_waitcnt lgkmcnt(0)")
        p("s_or_b32 s44, s44, 1")
        p("v_mov_b32 v3, s44"); p("v_mov_b32 v4, 0")
        p("s_mov_b64 exec, 1")
        p("buffer_store_dword v3, v4, s[96:99], 0 offen sc1")
        p("s_mov_b64 exec, -1")
        p.label("L_c_n0")
        p("s_cmp_eq_u32 s25, 3"); p("s_cbranch_scc0 L_c_n3")
        p("s_mov_b64 exec, 0xff")
        p("s_lshl_b32 s44, s31, 10")
        p("v_lshlrev_b32 v3, 7, v1"); p("v_add_u32 v3, s44, v3")
        p(f"v_min_u32 v3, CODE_BYTES_M, v3")
        p(f"global_load_dword v31, v3, s[74:75]")
        p("s_mov_b64 exec, -1")
        p("s_mov_b32 s96, s20"); p("s_mov_b32 s97, s21"); p("s_movk_i32 s98, 256"); p("s_mov_b32 s99, 0x20000")
        p("v_mov_b32 v4, 0")
        p(f"s_mov_b32 s47, {POLL_MAX*4}")
        p.label("L_c_tag")
        p("buffer_load_dword v3, v4, s[96:99], 0 offen sc1")
        p("s_waitcnt vmcnt(0)")
        p("v_readfirstlane_b32 s44, v3")
        p("s_cmp_lg_u32 s44, 0"); p("s_cbranch_scc1 L_c_tagd")
        p("s_sub_u32 s47, s47, 1"); p("s_cmp_lg_u32 s47, 0"); p("s_cbranch_scc1 L_c_tag")
        p.label("L_c_tagd")
        p(f"v_mov_b32 v2, {SY}")
        p(f"ds_write_b32 v2, v3 offset:{W_TAG}")
        p("s_getreg_b32 s45, hwreg(HW_REG_XCC_ID)")
        p("s_and_b32 s45, s45, 7")
        p("s_and_b32 s44, s44, 0xfffffff0"); p("s_or_b32 s44, s44, 8"); p("s_or_b32 s44, s44, s45")
        p("s_lshl_b32 s45, s26, 7"); p("s_lshl_b32 s46, s28, 5"); p("s_add_u32 s45, s45, s46")
        p("s_lshl_b32 s46, s27, 2"); p("s_add_u32 s45, s45, s46"); p(f"s_add_u32 s45, s45, {F_X}")
        p("v_mov_b32 v4, s45"); p("v_mov_b32 v5, s44")
        p("s_mov_b64 exec, 1")
        p("buffer_store_dword v5, v4, s[40:43], 0 offen sc1")
        p("s_mov_b64 exec, -1")
        p.label("L_c_n3")
        p("s_cmp_eq_u32 s28, 0")
        p("s_cbranch_scc0 L_c_h")
        self.t12_compute('kv')
        p("s_branch L_c_t4")
        p.label("L_c_h")
        self.t12_compute('h')
        p.label("L_c_t4")
        self.t4()
        p("s_branch L_end")

    def t12_compute(self, kind):
        p = self.p
        typ = 0 if kind == 'kv' else 1
        NT = 5 if kind == 'kv' else 6
        SETSZ = 16 + 4 * NT
        ACC = 32
        def xf(s, st): return SETSZ * s + 4 * st
        def wf(s, t): return SETSZ * s + 16 + 4 * t
        def acc(t, st): return ACC + (t * 4 + st) * 4
        if kind == 'kv':
            QACC = lambda i, st: 112 + (i*4 + st)*4
            QXACC = lambda k: 144 + 4*k
            GACC = 152
            QF = [72, 76, 80]; GF = 84
            NACC = 124
        else:
            GACC = 128; GF = 80; NACC = 100
        p("""
        s_lshr_b32 s48, s25, 1
        s_and_b32 s49, s25, 1
        v_lshrrev_b32 v2, 4, v1
        v_bfe_u32 v3, v1, 2, 2
        v_and_b32 v4, 3, v1
        v_bfe_u32 v5, v1, 3, 1
        s_lshl_b32 s44, s48, 3
        v_add_u32 v5, s44, v5
        v_lshlrev_b32 v5, 10, v5
        v_and_b32 v6, 7, v1
        v_lshl_add_u32 v5, v6, 7, v5
        v_xor_b32 v7, v2, v6
        v_lshl_add_u32 v8, v7, 4, v5
        v_xor_b32 v7, 4, v7
        v_lshl_add_u32 v9, v7, 4, v5
        v_lshrrev_b32 v5, 1, v2
        v_lshlrev_b32 v5, 4, v5
        v_and_b32 v6, 1, v2
        v_lshl_add_u32 v5, v6, 2, v5
        v_add_u32 v5, v5, v3
        """)
        self.rot10("s53")
        p("s_lshl_b32 s44, s53, 7"); p(f"s_add_u32 s44, s44, {GW}")
        p("v_lshlrev_b32 v19, 4, v2"); p("v_add_u32 v19, s44, v19")
        if kind == 'kv':
            p(f"""
            v_mul_u32_u24 v6, 160, v5
            v_add_u32 v7, {QOFF}, v6
            s_mul_i32 s44, s49, 80
            v_lshlrev_b32 v16, 3, v4
            v_add3_u32 v16, v16, v7, s44
            v_mul_u32_u24 v17, 40, v4
            v_add3_u32 v17, v17, v7, 32
            v_add_u32 v6, 16384, v6
            v_lshlrev_b32 v7, 3, v4
            v_add3_u32 v10, v6, v7, s44
            v_lshrrev_b32 v7, 1, v4
            v_xor_b32 v7, s49, v7
            v_mul_u32_u24 v7, {SEG}, v7
            v_and_b32 v13, 1, v4
            v_mul_u32_u24 v13, 40, v13
            v_add3_u32 v13, v13, v6, s44
            v_add3_u32 v11, v13, v7, 32
            """)
            def wread(t, s, b2):
                ro = (32 * s + 8 * b2) * 160
                if t in (0, 1): return ("v10", 40 * t + ro)
                if t in (2, 3): return ("v10", SEG + 40 * (t - 2) + ro)
                return ("v11", ro)
            addr_regs = [8, 9, 10, 11, 16, 17]
            transposed = lambda t: False
        else:
            p(f"""
            v_mul_u32_u24 v6, 384, v5
            v_add_u32 v6, 16384, v6
            v_and_b32 v7, 1, v4
            v_lshl_add_u32 v6, v7, 3, v6
            v_and_b32 v7, 6, v5
            v_lshrrev_b32 v20, 1, v4
            s_mul_i32 s44, s49, 12
            v_add_u32 v20, s44, v20
            """)
            for t in range(6):
                p(f"""
                v_add_u32 v21, {2*t}, v20
                v_xor_b32 v21, v21, v7
                v_lshl_add_u32 v{10+t}, v21, 4, v6
                """)
            def wread(t, s, b2): return (f"v{10+t}", (32 * s + 8 * b2) * 384)
            addr_regs = [8, 9, 10, 11, 12, 13, 14, 15]
            transposed = lambda t: True
        def base_reads(s_dst, s_k):
            vx = "v8" if s_k == 0 else "v9"
            xs = [f"ds_read_b128 {ar(xf(s_dst, st), 4)}, {vx} offset:{st*2048}" for st in range(4)]
            ws = []
            for t in range(NT):
                for b2 in range(2):
                    a, off = wread(t, s_k, b2)
                    ws.append(f"ds_read_b64_tr_b16 {ar(wf(s_dst, t) + 2*b2, 2)}, {a} offset:{off}")
            return [xs[0]] + ws[:4] + [xs[1]] + ws[4:8] + [xs[2]] + ws[8:10] + [xs[3]] + ws[10:]
        def q_reads(s_k):
            L = []
            if kind == 'kv' and not self.cfg.noqread:
                for b2 in range(2):
                    ro = (32 * s_k + 8 * b2) * 160
                    L.append(f"ds_read_b64_tr_b16 {ar(QF[0]+2*b2, 2)}, v16 offset:{ro}")
                    L.append(f"ds_read_b64_tr_b16 {ar(QF[1]+2*b2, 2)}, v16 offset:{ro + 40}")
                    L.append(f"ds_read_b64_tr_b16 {ar(QF[2]+2*b2, 2)}, v17 offset:{ro}")
            L.append(f"ds_read_b128 {ar(GF, 4)}, v19 offset:{64*s_k}")
            return L
        def base_mfmas(s):
            L = []
            for st in range(4):
                for t in range(NT):
                    A, B = (ar(wf(s, t), 4), ar(xf(s, st), 4)) if transposed(t) else (ar(xf(s, st), 4), ar(wf(s, t), 4))
                    c = vr(acc(t, st), 4)
                    L.append(f"v_mfma_f32_16x16x32_bf16 {c}, {A}, {B}, {c}")
            return L
        def q_mfmas(s):
            if self.cfg.noqread: return
            if kind == 'kv':
                for st in range(4):
                    for i in range(2):
                        c = vr(QACC(i, st), 4)
                        p(f"v_mfma_f32_16x16x32_bf16 {c}, {ar(QF[i],4)}, {ar(xf(s, st),4)}, {c}")
            LA, LB = p.newlabel("L_qm"), p.newlabel("L_qm")
            p("s_cmp_eq_u32 s49, 0"); p(f"s_cbranch_scc0 {LA}")
            for ch in range(2):
                if ch == 1: p.label(LA)
                if kind == 'kv':
                    for k in range(2):
                        c = vr(QXACC(k), 4)
                        p(f"v_mfma_f32_16x16x32_bf16 {c}, {ar(QF[2],4)}, {ar(xf(s, 2*ch + k),4)}, {c}")
                c = vr(GACC, 4)
                p(f"v_mfma_f32_16x16x32_bf16 {c}, {ar(GF,4)}, {ar(xf(s, 2*typ + ch),4)}, {c}")
                if ch == 0: p(f"s_branch {LB}")
            p.label(LB)
        def phase(s, rd, extra=()):
            q_mfmas(s)
            M = base_mfmas(s); other = list(rd) + list(extra)
            k = 0
            for i, m in enumerate(M):
                if not self.cfg.nomfma: p(m)
                for _ in range(2):
                    if k < len(other): p(other[k]); k += 1
            while k < len(other): p(other[k]); k += 1
        for i in range(NACC): p(f"v_mov_b32 v{ACC+i}, 0")
        p("s_mov_b32 s50, 0"); p("s_mov_b32 s51, 10"); p(f"s_mov_b32 s55, {STG}"); p("s_movk_i32 s54, 128")
        p("s_waitcnt lgkmcnt(0)")
        self.stamp(1)
        p("s_barrier")
        p(f"v_mov_b32 v2, {SY}")
        p(f"ds_read_b32 v3, v2 offset:{W_TAG}")
        for r in base_reads(0, 0) + q_reads(0): p(r)
        p("s_waitcnt lgkmcnt(0)")
        p("v_readfirstlane_b32 s30, v3")
        self.stamp(2)
        if self.cfg.span: self.span_mark(2)
        L = f"L_t12_loop_{kind}"
        p.label(L)
        upd = ["s_add_u32 s50, s50, 1", "s_cmp_eq_u32 s50, 3",
               f"s_cselect_b32 s52, {(-2*STG) & 0xffffffff}, s55", "s_cselect_b32 s50, 0, s50"] + \
              [f"v_add_u32 v{r}, s52, v{r}" for r in addr_regs] + \
              ["s_add_u32 s53, s53, 1", "s_cmp_eq_u32 s53, 10", f"s_cselect_b32 s52, {(-1152) & 0xffffffff}, s54", "s_cselect_b32 s53, 0, s53",
               "v_add_u32 v19, s52, v19"]
        phase(0, q_reads(1) + base_reads(1, 1), upd)
        p("s_waitcnt lgkmcnt(0)")
        p("s_barrier")
        phase(1, q_reads(0) + base_reads(0, 0))
        p("s_waitcnt lgkmcnt(0)")
        p("s_sub_u32 s51, s51, 1"); p("s_cmp_lg_u32 s51, 0"); p(f"s_cbranch_scc1 {L}")
        self.stamp(3)
        self.stamp2(1)
        if self.cfg.span: self.span_mark(3)
        if self.cfg.t12only:
            for k in range(4, 10): self.stamp(k)
            self.stamp_flush(10)
            p("s_branch L_end")
        p("s_waitcnt vmcnt(0)")
        p("v_lshlrev_b32 v18, 4, v1")
        if kind == 'h':
            self.epilogue_h(acc, last=True)
            self.epilogue_gate(GACC)
        else:
            self.epilogue_kv(acc)
            self.epilogue_gate(GACC)
            self.epilogue_q(QACC, QXACC)
        p("s_waitcnt vmcnt(0)")
        if kind == 'h':
            p("s_lshl_b32 s44, s26, 10"); p("s_lshl_b32 s45, s27, 7"); p("s_add_u32 s44, s44, s45"); p(f"s_add_u32 s44, s44, {F_H}")
        else:
            p("s_lshl_b32 s44, s27, 11"); p("s_lshl_b32 s45, s26, 7"); p("s_add_u32 s44, s44, s45"); p(f"s_add_u32 s44, s44, {F_KV}")
        self.publish_last(W_PUB1, 4, "s44")
        self.stamp(4)
        self.stamp2(2)
        if self.cfg.span: self.span_mark(4)

    def epilogue_gate(self, GACC):
        p = self.p
        p(f"s_mov_b32 s58, {LOG2E}")
        p(f"v_mul_f32 v6, s58, v{GACC}")
        p("v_sub_f32 v6, 0, v6")
        p("s_mov_b32 s59, 0x42700000")
        p("v_min_f32 v6, s59, v6")
        p("v_exp_f32 v6, v6")
        p("v_add_f32 v7, 1.0, v6"); p("v_rcp_f32 v7, v7")
        p("s_lshl_b32 s44, s25, 6")
        p("v_and_b32 v5, 15, v1"); p("v_lshlrev_b32 v5, 2, v5"); p("v_add_u32 v5, s44, v5")
        p(f"v_add_u32 v5, {GL}, v5")
        p("ds_write_b32 v5, v7")
        p(f"ds_write_b32 v5, v6 offset:{GR-GL}")
        p("s_waitcnt lgkmcnt(0)")
        self.lds_signal(W_GT)

    def epilogue_q(self, QACC, QXACC):
        p = self.p
        regs = [QACC(i, st) + e for i in range(2) for st in range(4) for e in range(4)] + [QXACC(k) + e for k in range(2) for e in range(4)]
        tmp = [32 + (t*4 + st)*4 + e for t in range(5) for st in (0, 2) for e in range(4)]
        p(f"s_mov_b32 s58, {LOG2E}"); p(f"s_mov_b32 s59, {EPS6}")
        for a, t in zip(regs, tmp): p(f"v_mul_f32 v{t}, s58, v{a}")
        for a, t in zip(regs, tmp): p(f"v_exp_f32 v{t}, v{t} clamp")
        for a in regs: p(f"v_max_f32 v{a}, 0, v{a}")
        for a in regs: p(f"v_add_f32 v{a}, s59, v{a}")
        for a, t in zip(regs, tmp): p(f"v_add_f32 v{a}, v{a}, v{t}")
        p(f"s_mov_b32 s44, {BQL1}"); p("s_cmp_eq_u32 s48, 0"); p(f"s_cselect_b32 s44, {BQL0}, s44")
        p("s_lshl_b32 s45, s49, 10"); p("s_add_u32 s45, s45, s44")
        p("v_lshlrev_b32 v5, 3, v1"); p("v_add_u32 v6, s45, v5")
        for i in range(2):
            for st in range(4):
                a = QACC(i, st)
                p(f"v_cvt_pk_bf16_f32 v{a}, v{a}, v{a+1}"); p(f"v_cvt_pk_bf16_f32 v{a+1}, v{a+2}, v{a+3}")
                p(f"ds_write_b64 v6, v[{a}:{a+1}] offset:{st*2560 + i*512}")
        p("s_mul_i32 s45, s49, 5120"); p("s_add_u32 s45, s45, s44"); p("v_add_u32 v6, s45, v5")
        for k in range(2):
            a = QXACC(k)
            p(f"v_cvt_pk_bf16_f32 v{a}, v{a}, v{a+1}"); p(f"v_cvt_pk_bf16_f32 v{a+1}, v{a+2}, v{a+3}")
            p(f"ds_write_b64 v6, v[{a}:{a+1}] offset:{k*2560 + 2048}")
        p("s_waitcnt lgkmcnt(0)")
        self.lds_signal(W_BQ)

    def epilogue_h(self, acc, last):
        p = self.p
        p(f"""
        s_lshl_b32 s44, s26, 3
        s_lshl_b32 s45, s48, 2
        s_add_u32 s44, s44, s45
        s_mul_i32 s44, s44, {AP_ST}
        s_mul_i32 s45, s27, 6
        s_mul_i32 s46, s49, 3
        s_add_u32 s45, s45, s46
        s_lshl_b32 s45, s45, 10
        s_add_u32 s44, s44, s45
        s_add_u32 s44, s44, {WS_AP}
        v_add_u32 v5, s44, v18
        """)
        self.read_loc()
        for st in range(4):
            for pp in range(3):
                a0, a1 = acc(2*pp, st), acc(2*pp+1, st)
                p(f"v_cvt_pk_bf16_f32 v{a0}, v{a0}, v{a0+1}")
                p(f"v_cvt_pk_bf16_f32 v{a0+1}, v{a0+2}, v{a0+3}")
                p(f"v_cvt_pk_bf16_f32 v{a0+2}, v{a1}, v{a1+1}")
                p(f"v_cvt_pk_bf16_f32 v{a0+3}, v{a1+2}, v{a1+3}")
                for i in range(4): p(f"v_pk_max_i16 v{a0+i}, v{a0+i}, 0")
        for st in range(1, 4): p(f"v_add_u32 v{7+st}, {AP_ST*st}, v5")
        p("v_mov_b32 v7, v5")
        def stores(sc):
            for st in range(4):
                for pp in range(3):
                    a0 = acc(2*pp, st)
                    p(f"buffer_store_dwordx4 v[{a0}:{a0+3}], v{7+st}, s[40:43], 0 offen offset:{pp*1024}{sc}")
        self.dual(stores)

    def epilogue_kv(self, acc):
        p = self.p
        K0, K1, V0, V1, X = range(5)
        p(f"s_mov_b32 s53, {LOG2E}"); p(f"s_mov_b32 s54, {EPS6}")
        p("v_lshrrev_b32 v2, 4, v1"); p("v_and_b32 v3, 15, v1")
        p("v_lshrrev_b32 v4, 3, v3"); p("v_cmp_eq_u32 s[56:57], s49, v4")
        p("v_lshrrev_b32 v7, 1, v2"); p("v_cmp_eq_u32 s[58:59], s49, v7")
        T0 = 20
        def phi_group(regs, tm):
            for i, a in enumerate(regs): p(f"v_mul_f32 v{tm+i}, s53, v{a}")
            for i, a in enumerate(regs): p(f"v_exp_f32 v{tm+i}, v{tm+i} clamp")
            for i, a in enumerate(regs): p(f"v_max_f32 v{a}, 0, v{a}")
            for i, a in enumerate(regs): p(f"v_add_f32 v{a}, s54, v{a}")
            for i, a in enumerate(regs): p(f"v_add_f32 v{a}, v{a}, v{tm+i}")
        for st in range(4):
            phi_group([acc(K0, st)+i for i in range(4)] + [acc(K1, st)+i for i in range(4)], T0)
            a = acc(X, st); tm = T0
            for i in range(4): p(f"v_mul_f32 v{tm+i}, s53, v{a+i}")
            for i in range(4): p(f"v_exp_f32 v{tm+i}, v{tm+i} clamp")
            for i in range(4): p(f"v_max_f32 v{tm+4+i}, 0, v{a+i}")
            for i in range(4): p(f"v_add_f32 v{tm+4+i}, s54, v{tm+4+i}")
            for i in range(4): p(f"v_add_f32 v{tm+4+i}, v{tm+4+i}, v{tm+i}")
            for i in range(4): p(f"v_cndmask_b32 v{a+i}, v{a+i}, v{tm+4+i}, s[56:57]")
        for t in (K0, K1, V0, V1, X):
            for kk in range(2):
                a, b = acc(t, 2*kk), acc(t, 2*kk+1)
                p(f"v_cvt_pk_bf16_f32 v{a}, v{a}, v{a+1}")
                p(f"v_cvt_pk_bf16_f32 v{a+1}, v{a+2}, v{a+3}")
                p(f"v_cvt_pk_bf16_f32 v{a+2}, v{b}, v{b+1}")
                p(f"v_cvt_pk_bf16_f32 v{a+3}, v{b+2}, v{b+3}")
        fr = lambda t, kk: vr(acc(t, 2*kk), 4)
        free = [acc(t, s) for t in (K0, K1, V0, V1, X) for s in (1, 3)]
        KV0, KV1, KX0, KX1, XV0, XV1, XX, Z0, Z1, ZX = free
        ONES = T0
        for i in range(4): p(f"v_mov_b32 v{ONES+i}, 0x3f803f80")
        ones = vr(ONES, 4)
        for kk in range(2):
            for (d, A, B) in ((KV0, fr(K0,kk), fr(V0,kk)), (KV1, fr(K1,kk), fr(V1,kk)), (KX0, fr(K0,kk), fr(X,kk)),
                              (KX1, fr(K1,kk), fr(X,kk)), (XV0, fr(X,kk), fr(V0,kk)), (XV1, fr(X,kk), fr(V1,kk)),
                              (XX, fr(X,kk), fr(X,kk)), (Z0, fr(K0,kk), ones), (Z1, fr(K1,kk), ones), (ZX, fr(X,kk), ones)):
                c = "0" if kk == 0 else vr(d, 4)
                p(f"v_mfma_f32_16x16x32_bf16 {vr(d,4)}, {A}, {B}, {c}")
        p("v_bfe_u32 v4, v3, 2, 1"); p("v_cmp_eq_u32 s[60:61], 1, v4")
        p("v_and_b32 v4, 1, v2"); p("v_cmp_eq_u32 s[62:63], 1, v4")
        p("v_and_b32 v4, 1, v3"); p("v_cmp_eq_u32 s[64:65], 1, v4")
        for i in range(4): p(f"v_cndmask_b32 v{KX0+i}, v{KX0+i}, v{KX1+i}, s[60:61]")
        for i in range(4): p(f"v_cndmask_b32 v{XV0+i}, v{XV0+i}, v{XV1+i}, s[62:63]")
        for i in range(4): p(f"v_cndmask_b32 v{Z0+i}, v{Z0+i}, v{Z1+i}, s[64:65]")
        p("s_lshl_b32 s44, s49, 2"); p("v_lshrrev_b32 v4, 1, v3"); p("v_cmp_eq_u32 s[60:61], s44, v4")
        p("s_lshl_b32 s44, s49, 3"); p("s_add_u32 s44, s44, 4"); p("v_cmp_eq_u32 s[62:63], s44, v3")
        for i in range(4): p(f"v_cndmask_b32 v{XX+i}, v{XX+i}, v{Z0+i}, s[60:61]")
        for i in range(4): p(f"v_cndmask_b32 v{XX+i}, v{XX+i}, v{ZX+i}, s[62:63]")
        tiles = [KV0, KV1, KX0, XV0, XX]
        p("s_mul_i32 s44, s49, 5120"); p(f"s_add_u32 s44, s44, {KVRED}")
        p("v_add_u32 v4, s44, v18")
        R0 = p.newlabel("L_kr")
        p("s_cmp_eq_u32 s48, 0"); p(f"s_cbranch_scc1 {R0}")
        for j, t in enumerate(tiles): p(f"ds_write_b128 v4, {vr(t,4)} offset:{j*1024}")
        p.label(R0)
        self.cbar(vtmp=(5, 6))
        TMs = [acc(t, 0) for t in range(5)]
        for j in range(5): p(f"ds_read_b128 {vr(TMs[j],4)}, v4 offset:{j*1024}")
        p("s_waitcnt lgkmcnt(0)")
        for j, t in enumerate(tiles):
            m = TMs[j]
            p(f"v_pk_add_f32 v[{t}:{t+1}], v[{t}:{t+1}], v[{m}:{m+1}]")
            p(f"v_pk_add_f32 v[{t+2}:{t+3}], v[{t+2}:{t+3}], v[{m+2}:{m+3}]")
        for i in range(4): p(f"v_cndmask_b32 v{KX0+i}, v{KX0+i}, 0, s[56:57]")
        for i in range(4): p(f"v_cndmask_b32 v{XV0+i}, 0, v{XV0+i}, s[58:59]")
        self.lds_wait(W_ZOK, 2, vtmp=(5, 6))
        p(f"""
        s_lshl_b32 s44, s27, 13
        s_add_u32 s44, s44, {WS_KVS}
        s_cmp_eq_u32 s48, 0
        s_cselect_b32 s44, s44, {OOB}
        v_lshlrev_b32 v4, 2, v1
        v_add_u32 v4, s44, v4
        s_lshl_b32 s45, s49, 11
        v_add_u32 v5, s45, v4
        v_add_u32 v6, 4096, v4
        s_lshl_b32 s45, s49, 10
        v_add_u32 v7, s45, v4
        v_add_u32 v7, 6144, v7
        """)
        for (t, a, off) in ((KV0, "v5", 0), (KV1, "v5", 1024), (KX0, "v6", 0), (XV0, "v6", 1024), (XX, "v7", 0)):
            for e in range(4):
                p(f"buffer_atomic_add_f32 v{t+e}, {a}, s[40:43], 0 offen offset:{off + 256*e}")

    def t4(self):
        p = self.p
        ACC = 32
        acc = lambda sg, t: ACC + (sg*5 + t)*4
        def BF(j, sg):
            k = (j % PD)*4 + sg
            return ar(40 + 4*k, 4) if k < 14 else vr(112 + 4*(k-14), 4)
        AF = lambda j, t: ar(20*(j & 1) + 4*t, 4)
        VB = 8
        PL, PB, PC = 20, 25, 152
        def stile(sg, out):
            p(f"s_add_u32 s44, s25, {sg}"); p("s_and_b32 s44, s44, 3")
            p("s_lshr_b32 s45, s44, 1"); p("s_lshl_b32 s45, s45, 2"); p("s_and_b32 s46, s44, 1"); p("s_add_u32 s45, s45, s46")
            p("s_lshl_b32 s46, s28, 1"); p("s_add_u32 s45, s45, s46"); p("s_lshl_b32 s46, s26, 3"); p(f"s_add_u32 {out}, s45, s46")
        for sg in range(4):
            stile(sg, "s47")
            if sg == 0: p("s_mov_b32 s71, s47")
            p(f"s_mul_i32 s47, s47, {AP_ST}"); p(f"s_add_u32 s47, s47, {WS_AP}")
            p(f"v_add_u32 v{VB+sg}, s47, v18")
        p("s_mul_i32 s44, s27, 160")
        p("s_add_u32 s32, s14, s44"); p("s_addc_u32 s33, s15, 0"); p("s_sub_u32 s34, 1966080, s44"); p("s_mov_b32 s35, 0x20000")
        p("s_add_u32 s36, s8, s44"); p("s_addc_u32 s37, s9, 0"); p("s_sub_u32 s38, 819200, s44"); p("s_mov_b32 s39, 0x20000")
        p("s_mul_i32 s52, s25, 12"); p("s_mul_i32 s53, s25, 5")
        p("s_mul_i32 s60, s25, 5120")
        self.t4_rot()
        def ks_next(j):
            if j < 12:
                p("s_add_u32 s54, s52, s56")
                p("s_add_u32 s56, s56, 1"); p("s_cmp_eq_u32 s56, 12"); p("s_cselect_b32 s56, 0, s56")
            else:
                p("s_add_u32 s54, s53, s57")
                p("s_add_u32 s57, s57, 1"); p("s_cmp_eq_u32 s57, 5"); p("s_cselect_b32 s57, 0, s57")
        def loadW(j):
            p(f"s_add_u32 s61, s60, {WBASE[j % PD]}")
            if j < 12:
                p("s_mul_i32 s55, s54, 40960")
                self.wdma(PL, "s[32:35]", "s55", "s61")
            else:
                LC, LD_ = p.newlabel("L_oc"), p.newlabel("L_od")
                p("s_cmp_lt_u32 s54, 16"); p(f"s_cbranch_scc0 {LC}")
                p("s_mul_i32 s55, s54, 51200")
                self.wdma(PB, "s[36:39]", "s55", "s61")
                p(f"s_branch {LD_}")
                p.label(LC)
                p("s_sub_u32 s55, s54, 16"); p("s_mul_i32 s55, s55, 204800")
                self.wdma(PC, "s[36:39]", "s55", "s61")
                p.label(LD_)
        def loadB(j):
            if j < 12: p("s_lshl_b32 s54, s54, 10")
            else: p("s_add_u32 s54, s54, 48"); p("s_lshl_b32 s54, s54, 10")
            for sg in range(4):
                p(f"buffer_load_dwordx4 {BF(j, sg)}, v{VB+sg}, s[40:43], s54 offen sc1")
        self.wpattern(PL, 'lin', 1280)
        for j in range(PD):
            ks_next(j)
            p(f"s_mov_b32 s{62 + j}, s54")
            if j >= 4: loadW(j)
        self.lds_wait(W_HR, 1)
        self.stamp2(3)
        for j in range(PD):
            p(f"s_mov_b32 s54, s{62 + j}"); loadB(j)
        self.stamp(5)
        self.stamp2(4)
        self.wpattern(PB, 'B', 1280); self.wpattern(PC, 'C', 1280)
        self.lds_wait(W_GT, 4)
        p("v_and_b32 v5, 15, v1"); p("v_lshlrev_b32 v5, 2, v5")
        for sg in range(4):
            p(f"s_add_u32 s44, s25, {sg}"); p("s_and_b32 s44, s44, 3"); p("s_lshl_b32 s44, s44, 6"); p(f"s_add_u32 s44, s44, {GL}")
            p("v_add_u32 v6, s44, v5")
            p(f"ds_read_b32 v{12+sg}, v6 offset:{GR-GL}")
            if sg == 0: p("ds_read_b32 v19, v6")
        p("""
        v_lshrrev_b32 v2, 4, v1
        v_bfe_u32 v3, v1, 2, 2
        v_and_b32 v4, 3, v1
        v_lshl_add_u32 v6, v2, 2, v3
        v_mul_u32_u24 v6, 160, v6
        v_mul_u32_u24 v4, 40, v4
        v_add3_u32 v6, v6, v4, s60
        """)
        p("v_add_u32 v7, 65536, v6")
        NS = 17
        def treads(j):
            L = []
            base = WBASE[j % PD]
            for t in range(5):
                for b2 in range(2):
                    off = base + 16*b2*160 + 8*t
                    a = "v6"
                    if off >= 65536: a = "v7"; off -= 65536
                    L.append(f"ds_read_b64_tr_b16 {ar(20*(j&1) + 4*t + 2*b2, 2)}, {a} offset:{off}")
            return L
        q = [("W4", 5), ("W5", 5)] + [(f"B{j}", 4) for j in range(PD)]
        def wait_for(tag):
            tags = [t for t, _ in q]
            if tag not in tags: return
            idx = tags.index(tag)
            p(f"s_waitcnt vmcnt({sum(k for _, k in q[idx+1:])})")
            del q[:idx+1]
        self.lds_wait(W_P01, 4)
        for r in treads(0): p(r)
        self.stamp(6)
        for j in range(NS):
            nxt = j + PD
            if j + 1 == 2: self.lds_wait(W_P23, 4, vtmp=(2, 3))
            if j + 1 < NS: wait_for(f"W{j+1}")
            wait_for(f"B{j}")
            p("s_waitcnt lgkmcnt(0)")
            if j == 1: self.stamp(7); self.stamp2(5)
            if j == 12:
                self.stamp(8)
                for sg in range(4):
                    for t in range(5):
                        for i in range(4): p(f"v_mul_f32 v{acc(sg,t)+i}, v{acc(sg,t)+i}, v{12+sg}")
            tr = treads(j+1) if j + 1 < NS else []
            k = 0
            for sg in range(4):
                for t in range(5):
                    c = vr(acc(sg, t), 4)
                    p(f"v_mfma_f32_16x16x32_bf16 {c}, {AF(j,t)}, {BF(j,sg)}, {'0' if j == 0 else c}")
                    if k < len(tr): p(tr[k]); k += 1
            if nxt < NS:
                ks_next(nxt); loadW(nxt)
                q.append((f"W{nxt}", 5))
                if nxt < 12:
                    loadB(nxt); q.append((f"B{nxt}", 4))
                else:
                    p(f"s_mov_b32 s{62 + nxt - 12}, s54")
            if j == self.cfg.orstep:
                if self.cfg.span: self.span_mark(5)
                self.stamp2(6); self.lds_wait(W_OR, 1); self.stamp2(7)
                if self.cfg.span: self.span_mark(6)
                for jj in range(12, NS):
                    p(f"s_mov_b32 s54, s{62 + jj - 12}") if jj - PD <= j else None
                    if jj - PD > j: raise Exception("orstep too early")
                    loadB(jj); q.append((f"B{jj}", 4))
        self.stamp2(8)
        self.cbar()
        for sg in range(1, 4):
            p(f"s_add_u32 s44, s25, {sg}"); p("s_and_b32 s44, s44, 3"); p("s_mul_i32 s44, s44, 3"); p(f"s_add_u32 s44, s44, {sg-1}")
            p("s_mul_i32 s45, s44, 5120")
            p("v_add_u32 v5, s45, v18")
            for t in range(5): p(f"ds_write_b128 v5, {vr(acc(sg,t),4)} offset:{t*1024}")
        self.cbar()
        p("s_mul_i32 s45, s25, 15360")
        p("v_add_u32 v5, s45, v18")
        for k in range(3):
            for t in range(5): p(f"ds_read_b128 {vr(acc(1+k,t),4)}, v5 offset:{k*5120+t*1024}")
        p("s_waitcnt lgkmcnt(0)")
        for k in range(3):
            for t in range(5):
                a, b = acc(0, t), acc(1+k, t)
                p(f"v_pk_add_f32 v[{a}:{a+1}], v[{a}:{a+1}], v[{b}:{b+1}]")
                p(f"v_pk_add_f32 v[{a+2}:{a+3}], v[{a+2}:{a+3}], v[{b+2}:{b+3}]")
        O = 112
        for t in range(5):
            for i in range(4): p(f"v_mul_f32 v{acc(0,t)+i}, v{acc(0,t)+i}, v19")
        for t in range(5):
            a = acc(0, t)
            p(f"v_cvt_pk_bf16_f32 v{O+2*t}, v{a}, v{a+1}")
            p(f"v_cvt_pk_bf16_f32 v{O+2*t+1}, v{a+2}, v{a+3}")
        p("""
        s_mov_b32 s32, s18
        s_mov_b32 s33, s19
        s_mov_b32 s34, 2621440
        s_mov_b32 s35, 0x20000
        v_lshrrev_b32 v2, 4, v1
        v_and_b32 v3, 15, v1
        s_lshl_b32 s44, s71, 4
        v_add_u32 v3, s44, v3
        v_mul_u32_u24 v3, 1280, v3
        v_mul_u32_u24 v2, 40, v2
        s_mul_i32 s44, s27, 160
        v_add3_u32 v3, v3, v2, s44
        """)
        p(f"buffer_store_dwordx4 v[{O}:{O+3}], v3, s[32:35], 0 offen")
        p(f"buffer_store_dwordx4 v[{O+4}:{O+7}], v3, s[32:35], 0 offen offset:16")
        p(f"buffer_store_dwordx2 v[{O+8}:{O+9}], v3, s[32:35], 0 offen offset:32")
        self.stamp(9)
        self.stamp2(9)
        self.stamp_flush(10)
        if self.cfg.span:
            self.span_mark(1)

    def span_mark(self, word):
        p = self.p
        D = p.newlabel("L_sm")
        p("s_and_b32 s44, s2, 0xf7"); p("s_cmp_eq_u32 s44, 0x21"); p(f"s_cbranch_scc0 {D}")
        p("s_cmp_eq_u32 s24, 0"); p(f"s_cbranch_scc0 {D}")
        p("s_memrealtime s[44:45]"); p("s_waitcnt lgkmcnt(0)")
        p("s_sub_u32 s44, s44, s30")
        p("s_mov_b32 s96, s20"); p("s_mov_b32 s97, s21"); p("s_movk_i32 s98, 256"); p("s_mov_b32 s99, 0x20000")
        p("s_lshl_b32 s45, s28, 5"); p(f"s_add_u32 s45, s45, {4*word}")
        p("v_mov_b32 v2, s44"); p("v_mov_b32 v3, s45")
        p("s_mov_b64 exec, 1")
        p("buffer_store_dword v2, v3, s[96:99], 0 offen sc1")
        p("s_mov_b64 exec, -1")
        p.label(D)

def kd(name, vgpr, accum, sgpr=102):
    return f""".amdhsa_kernel {name}
  .amdhsa_next_free_vgpr {vgpr}
  .amdhsa_next_free_sgpr {sgpr}
  .amdhsa_accum_offset {accum}
  .amdhsa_group_segment_fixed_size 0
  .amdhsa_kernarg_size 80
  .amdhsa_user_sgpr_count 2
  .amdhsa_user_sgpr_kernarg_segment_ptr 1
  .amdhsa_system_sgpr_workgroup_id_x 1
.end_amdhsa_kernel
"""

def head_comment():
    f = "cdna_kernels/" + NAME + ".s.ref"
    return open(f).read().split("; Override launch")[0] if os.path.exists(f) else ""

def build(cfg):
    g = Gen(cfg); g.emit()
    body = g.p.text(verbose=True)
    hdr = head_comment() + f"""; @launch grid=(256,1,1) block=(512,1,1) lds={LDS_BYTES}
.amdgcn_target "amdgcn-amd-amdhsa--gfx950"
.text
.globl {KNAME}
.p2align 8
.type {KNAME},@function
{KNAME}:
"""
    body = body.replace("CODE_BYTES_M", f".Lcode_end-{KNAME}-512")
    tail = ".Lcode_end:\n"
    return hdr + body + tail + '.section .rodata,"a"\n.p2align 6\n' + kd(KNAME, 256, 160)

if __name__ == "__main__":
    cfg = Cfg()
    cfg.stamps = "stamps" in sys.argv
    cfg.dbg2 = "dbg2" in sys.argv
    cfg.rot = "norot" not in sys.argv
    cfg.local = "nolocal" not in sys.argv
    cfg.t12only = "t12only" in sys.argv
    cfg.map81 = "map81" in sys.argv
    cfg.spoll = "vpoll" not in sys.argv
    cfg.kv1 = "kv1" in sys.argv
    cfg.span = "span" in sys.argv
    cfg.noqdma = "noqdma" in sys.argv
    cfg.noqread = "noqread" in sys.argv
    cfg.nomfma = "nomfma" in sys.argv
    cfg.stouch = "stouch" in sys.argv
    for a in sys.argv:
        if a.startswith("wpre="): cfg.wpre = tuple(int(x) for x in a[5:].split(","))
    cfg.w45late = "w45early" not in sys.argv
    for a in sys.argv:
        if a.startswith("or="): cfg.orstep = int(a[3:])
    cfg.early_s1 = "es1" in sys.argv
    if not cfg.map81: cfg.local = False
    out = [a for a in sys.argv[1:] if a.endswith(".s")]
    open(out[0] if out else "x5.s", "w").write(build(cfg))
```

```python
import sys, os
from asmlib import *

NAME = "gated_mix__linear_attn_block__dense_activation_relu__prompt"
KNAME = NAME + "_kernel"

AP_ST = 68 * 1024
WS_AP = 0
WS_WP = 9 << 20
WP_CG = 68 * 5 * 1024
WS_KVP = 13 << 20
WS_KVS = 14 << 20
WS_F = 15 << 20
F_H = WS_F
F_KV = WS_F + 16384
F_O = WS_F + 32768
F_X = WS_F + 65536
F_KS = WS_F + 73728
F_J = WS_F + 98304
WS_TS = 16 << 20
WS_SIZE = 17 << 20
OOB = 0x80000000

STG = 51200
SEG = 10256
QOFF = 40960
WBASE = [51200, 71680, 102400, 122880, 0, 20480]
KVRED = 92160
BQL0, BQL1 = 40960, 143360
KVT = 153600
GW = 159744
GL = 161024
GR = 161280
SY = 161536
LDS_BYTES = 161792
W_TAG, W_KVR, W_HR, W_OR, W_PUB1, W_BQ, W_PUB2, W_KVF, W_LOC, W_P01, W_P23, W_GT, W_KF1, W_ZOK, W_JOK, W_PUB3 = [4*i for i in range(16)]
W_CB = 64
LOG2E = 0x3fb8aa3b
EPS6 = 0x358637bd
POLL_MAX = 1 << 15
PD = 4
for _a in sys.argv:
    if _a.startswith('pd='): PD = int(_a[3:])
JSCR = 51200

class Cfg:
    stamps = False
    dbg2 = False
    rot = True
    local = True
    t12only = False
    map81 = False
    spoll = True
    kv1 = False
    kt = 0
    hst = False
    dbg3 = False
    jl = 1
    jp = 4
    jf = 7
    rtab = None
    span = False
    noqdma = False
    noqread = False
    nomfma = False
    stouch = False
    wpre = (7, 8)
    w45late = True
    orstep = 11
    early_s1 = False

class Gen:
    def __init__(self, cfg):
        self.p = Prog(); self.cfg = cfg; self.ncb = 0
    def stamp(self, idx):
        if self.cfg.stamps and (idx == 0 or not self.cfg.dbg2): self.p(f"s_memtime s[{80+2*idx}:{81+2*idx}]")
    def stamp2(self, idx):
        if self.cfg.stamps and self.cfg.dbg2 and not (self.cfg.dbg3 and idx >= 2) and not self.cfg.hst: self.p(f"s_memtime s[{80+2*idx}:{81+2*idx}]")
    def stamp3(self, idx):
        if self.cfg.stamps and self.cfg.dbg3 and not self.cfg.hst: self.p(f"s_memtime s[{80+2*idx}:{81+2*idx}]")
    def stamp_flush(self, n):
        if not self.cfg.stamps: return
        p = self.p
        p("s_waitcnt lgkmcnt(0)")
        p("s_memrealtime s[78:79]")
        p("s_lshl_b32 s100, s2, 3"); p("s_add_u32 s100, s100, s24")
        p("s_lshl_b32 s100, s100, 7")
        p(f"s_add_u32 s100, s100, {WS_TS}")
        p("v_mov_b32 v4, s100")
        p("s_waitcnt lgkmcnt(0)")
        p("s_mov_b64 exec, 1")
        regs = [80 + 2*i for i in range(n)]
        for i, r in enumerate(regs + [76, 78]):
            off = 8*i if i < n else (112 + 8*(i-n))
            p(f"v_mov_b32 v2, s{r}"); p(f"v_mov_b32 v3, s{r+1}")
            p(f"buffer_store_dwordx2 v[2:3], v4, s[40:43], 0 offen offset:{off}")
            p("s_nop 1")
        p("s_mov_b64 exec, -1")
    def lds_signal(self, word, vtmp=(2, 3)):
        p = self.p; a, b = vtmp
        p(f"v_mov_b32 v{a}, {SY}"); p(f"v_mov_b32 v{b}, 1")
        p("s_mov_b64 exec, 1")
        p(f"ds_add_u32 v{a}, v{b} offset:{word}")
        p("s_mov_b64 exec, -1")
    def lds_wait(self, word, target, vtmp=(2, 3), sleep=False):
        p = self.p; a, b = vtmp
        L = p.newlabel("L_lw"); D = p.newlabel("L_lwd")
        p(f"v_mov_b32 v{a}, {SY}")
        p(f"s_mov_b32 s47, {POLL_MAX*32}")
        p.label(L)
        p(f"ds_read_b32 v{b}, v{a} offset:{word}")
        p("s_waitcnt lgkmcnt(0)")
        p(f"v_readfirstlane_b32 s46, v{b}")
        p(f"s_cmp_ge_u32 s46, {target}")
        p(f"s_cbranch_scc1 {D}")
        if sleep: p("s_sleep 1")
        p("s_sub_u32 s47, s47, 1")
        p("s_cmp_lg_u32 s47, 0")
        p(f"s_cbranch_scc1 {L}")
        p.label(D)
    def cbar(self, vtmp=(2, 3)):
        w = W_CB + 4 * self.ncb; self.ncb += 1
        assert w < 256
        self.p("s_waitcnt lgkmcnt(0)")
        self.lds_signal(w, vtmp)
        self.lds_wait(w, 4, vtmp)
    def poll_flags(self, addr_s, nwords, vt=(2, 3)):
        p = self.p; a, b = vt
        L = p.newlabel("L_pf"); D = p.newlabel("L_pfd")
        if self.cfg.spoll:
            p(f"s_add_u32 s4, s22, {addr_s}"); p("s_addc_u32 s5, s23, 0")
            p(f"s_mov_b32 s47, {POLL_MAX}")
            p.label(L)
            p("s_mov_b32 s46, 0")
            for base in range(0, nwords, 8):
                m = min(8, nwords - base)
                for i in range(m): p(f"s_load_dword s{8+i}, s[4:5], {(base+i)*128} glc")
                p("s_waitcnt lgkmcnt(0)")
                for i in range(m):
                    p(f"s_xor_b32 s{8+i}, s{8+i}, s30"); p(f"s_or_b32 s46, s46, s{8+i}")
            p("s_cmp_eq_u32 s46, 0")
            p(f"s_cbranch_scc1 {D}")
            p("s_sleep 1")
            p("s_sub_u32 s47, s47, 1")
            p("s_cmp_lg_u32 s47, 0")
            p(f"s_cbranch_scc1 {L}")
            p.label(D)
            return
        p(f"v_min_u32 v{a}, {nwords-1}, v1")
        p(f"v_lshlrev_b32 v{a}, 7, v{a}")
        p(f"v_add_u32 v{a}, {addr_s}, v{a}")
        p(f"s_mov_b32 s47, {POLL_MAX}")
        p.label(L)
        p(f"buffer_load_dword v{b}, v{a}, s[40:43], 0 offen sc1")
        p("s_waitcnt vmcnt(0)")
        p(f"v_cmp_eq_u32 vcc, s30, v{b}")
        p("s_nop 1")
        p("s_cmp_eq_u64 vcc, -1")
        p(f"s_cbranch_scc1 {D}")
        p("s_sleep 2")
        p("s_sub_u32 s47, s47, 1")
        p("s_cmp_lg_u32 s47, 0")
        p(f"s_cbranch_scc1 {L}")
        p.label(D)
    def poll_flags_safe(self, addr_s, nwords):
        p = self.p
        L = p.newlabel("L_pf"); D = p.newlabel("L_pfd")
        p(f"s_add_u32 s100, s22, {addr_s}"); p("s_addc_u32 s101, s23, 0")
        p(f"s_mov_b32 s47, {POLL_MAX}")
        p.label(L)
        p("s_mov_b32 s46, 0")
        for half in range(2):
            for i in range(4): p(f"s_load_dword s{76+i}, s[100:101], {(4*half+i)*128} glc")
            p("s_waitcnt lgkmcnt(0)")
            for i in range(4):
                p(f"s_xor_b32 s{76+i}, s{76+i}, s30"); p(f"s_or_b32 s46, s46, s{76+i}")
        p("s_cmp_eq_u32 s46, 0")
        p(f"s_cbranch_scc1 {D}")
        p("s_sleep 1")
        p("s_sub_u32 s47, s47, 1")
        p("s_cmp_lg_u32 s47, 0")
        p(f"s_cbranch_scc1 {L}")
        p.label(D)
    def dual(self, emit):
        p = self.p
        if not self.cfg.local:
            emit(" sc1"); return
        A, B = p.newlabel("L_du"), p.newlabel("L_du")
        p("s_cmp_eq_u32 s72, 1"); p(f"s_cbranch_scc1 {A}")
        emit(" sc1")
        p(f"s_branch {B}")
        p.label(A)
        emit("")
        p.label(B)
    def flag_store(self, addr_s, vt=(2, 3), dual=False):
        p = self.p; a, b = vt
        p(f"v_mov_b32 v{a}, {addr_s}"); p(f"v_mov_b32 v{b}, s30")
        p("s_mov_b64 exec, 1")
        if dual: self.dual(lambda sc: p(f"buffer_store_dword v{b}, v{a}, s[40:43], 0 offen{sc}"))
        else: p(f"buffer_store_dword v{b}, v{a}, s[40:43], 0 offen sc1")
        p("s_mov_b64 exec, -1")
    def publish_last(self, word, target, addr_s, vt=(2, 3), dual=False):
        p = self.p; a, b = vt
        p(f"v_mov_b32 v{a}, {SY}"); p(f"v_mov_b32 v{b}, 1")
        p("s_mov_b64 exec, 1")
        p(f"ds_add_rtn_u32 v{b}, v{a}, v{b} offset:{word}")
        p("s_mov_b64 exec, -1")
        p("s_waitcnt lgkmcnt(0)")
        p(f"v_readfirstlane_b32 s46, v{b}")
        p(f"s_cmp_eq_u32 s46, {target-1}")
        p(f"s_cselect_b32 s47, {addr_s}, {OOB}")
        self.flag_store("s47", vt, dual)
    def read_loc(self, vt=(2, 3)):
        p = self.p; a, b = vt
        p(f"v_mov_b32 v{a}, {SY}"); p(f"ds_read_b32 v{b}, v{a} offset:{W_LOC}"); p("s_waitcnt lgkmcnt(0)")
        p(f"v_readfirstlane_b32 s72, v{b}")
    def rot10(self, dst):
        p = self.p
        if not self.cfg.rot or self.cfg.kt:
            p(f"s_mov_b32 {dst}, 0"); return
        if self.cfg.rtab is not None:
            t = self.cfg.rtab
            w = [sum(t[8*k + i] << (4*i) for i in range(8)) for k in range(4)]
            p(f"s_mov_b32 {dst}, {hex(w[0])}")
            for k in range(1, 4):
                p(f"s_lshr_b32 s45, s31, 3"); p(f"s_cmp_eq_u32 s45, {k}"); p(f"s_cselect_b32 {dst}, {hex(w[k])}, {dst}")
            p("s_and_b32 s45, s31, 7"); p("s_lshl_b32 s45, s45, 2"); p(f"s_lshr_b32 {dst}, {dst}, s45"); p(f"s_and_b32 {dst}, {dst}, 15")
        elif self.cfg.map81:
            p(f"""
            s_and_b32 s45, s26, 1
            s_mul_i32 s45, s45, 5
            s_add_u32 {dst}, s27, s45
            s_add_u32 {dst}, {dst}, s73
            s_cmp_ge_u32 {dst}, 10
            s_cselect_b32 s45, 10, 0
            s_sub_u32 {dst}, {dst}, s45
            s_cmp_ge_u32 {dst}, 10
            s_cselect_b32 s45, 10, 0
            s_sub_u32 {dst}, {dst}, s45
            """)
        else:
            p(f"""
            s_and_b32 s45, s27, 3
            s_lshl_b32 s45, s45, 1
            s_add_u32 {dst}, s45, s28
            s_and_b32 s45, s26, 3
            s_mul_i32 s45, s45, 3
            s_add_u32 {dst}, {dst}, s45
            s_cmp_ge_u32 {dst}, 10
            s_cselect_b32 s45, 10, 0
            s_sub_u32 {dst}, {dst}, s45
            """)
    def wpattern(self, dst, kind, stride, tmp=(2, 3, 4, 5, 6), out=None):
        L = []
        e = L.append
        a, b, c, d, f = tmp
        for u in range(5):
            e(f"v_add_u32 v{a}, {64*u}, v1")
            e(f"v_mul_u32_u24 v{b}, 6554, v{a}")
            e(f"v_lshrrev_b32 v{b}, 16, v{b}")
            e(f"v_mul_u32_u24 v{c}, 10, v{b}")
            e(f"v_sub_u32 v{c}, v{a}, v{c}")
            if kind == 'B':
                e(f"v_lshrrev_b32 v{d}, 4, v{b}"); e(f"v_mul_u32_u24 v{d}, 20, v{d}")
                e(f"v_and_b32 v{b}, 15, v{b}"); e(f"v_add_u32 v{b}, v{b}, v{d}")
            elif kind == 'C':
                e(f"v_lshrrev_b32 v{d}, 4, v{b}"); e(f"v_lshlrev_b32 v{d}, 2, v{d}")
                e(f"v_bfe_u32 v{f}, v{b}, 2, 2"); e(f"v_add_u32 v{f}, 2, v{f}"); e(f"v_and_b32 v{f}, 3, v{f}")
                e(f"v_add_u32 v{d}, v{d}, v{f}"); e(f"v_mul_u32_u24 v{d}, 20, v{d}")
                e(f"v_and_b32 v{b}, 3, v{b}"); e(f"v_add3_u32 v{b}, v{b}, v{d}, 16")
            e(f"v_mul_u32_u24 v{b}, {stride}, v{b}")
            e(f"v_lshl_add_u32 v{b}, v{c}, 4, v{b}")
            if 0 < u < 4: e(f"v_subrev_u32 v{dst+u}, {1024*u}, v{b}")
            else: e(f"v_mov_b32 v{dst+u}, v{b}")
        if out is not None: out += L
        else:
            for x in L: self.p(x)
    def wdma(self, pat, srd, soff, m0_s):
        p = self.p
        p(f"s_mov_b32 m0, {m0_s}")
        for u in range(4):
            p(f"buffer_load_dwordx4 v{pat+u}, {srd}, {soff} offen offset:{1024*u} lds")
        p(f"s_add_u32 m0, {m0_s}, 4096")
        p(f"buffer_load_dwordx4 v{pat+4}, {srd}, {soff} offen lds")
    def t4_rot(self, rb="s56", ro="s57"):
        p = self.p
        if self.cfg.rot and not self.cfg.map81:
            p("s_and_b32 s44, s29, 7"); p("s_and_b32 s45, s27, 3")
            p("s_mul_i32 s46, s45, 3"); p(f"s_add_u32 {rb}, s44, s46")
            p(f"s_cmp_ge_u32 {rb}, 12"); p("s_cselect_b32 s46, 12, 0"); p(f"s_sub_u32 {rb}, {rb}, s46")
            p(f"s_add_u32 {ro}, s44, s45")
            p(f"s_cmp_ge_u32 {ro}, 10"); p("s_cselect_b32 s46, 10, 0"); p(f"s_sub_u32 {ro}, {ro}, s46")
            p(f"s_cmp_ge_u32 {ro}, 5"); p("s_cselect_b32 s46, 5, 0"); p(f"s_sub_u32 {ro}, {ro}, s46")
        elif self.cfg.rot:
            p("s_and_b32 s44, s29, 3"); p("s_mul_i32 s45, s44, 3"); p(f"s_add_u32 {rb}, s45, s73")
            p(f"s_cmp_ge_u32 {rb}, 12"); p("s_cselect_b32 s46, 12, 0"); p(f"s_sub_u32 {rb}, {rb}, s46")
            p(f"s_add_u32 {ro}, s44, s73")
            p(f"s_cmp_ge_u32 {ro}, 10"); p("s_cselect_b32 s46, 10, 0"); p(f"s_sub_u32 {ro}, {ro}, s46")
            p(f"s_cmp_ge_u32 {ro}, 5"); p("s_cselect_b32 s46, 5, 0"); p(f"s_sub_u32 {ro}, {ro}, s46")
        else:
            p(f"s_mov_b32 {rb}, 0"); p(f"s_mov_b32 {ro}, 0")

    def emit(self):
        p = self.p; cfg = self.cfg
        if cfg.stamps: p("s_memrealtime s[76:77]")
        if cfg.map81:
            MAP = """s_and_b32 s73, s2, 7
        s_lshr_b32 s31, s2, 3
        s_and_b32 s44, s31, 1
        s_lshl_b32 s26, s73, 1
        s_add_u32 s26, s26, s44
        s_bfe_u32 s28, s31, 0x10001
        s_lshr_b32 s27, s31, 2
        s_lshl_b32 s29, s26, 1
        s_add_u32 s29, s29, s28"""
        else:
            MAP = """s_and_b32 s44, s2, 7
        s_lshr_b32 s31, s2, 3
        s_lshr_b32 s73, s44, 1
        s_and_b32 s3, s44, 1
        s_and_b32 s28, s31, 1
        s_lshr_b32 s45, s31, 1
        s_and_b32 s26, s45, 3
        s_lshl_b32 s46, s73, 2
        s_add_u32 s26, s26, s46
        s_lshr_b32 s27, s45, 2
        s_lshl_b32 s46, s3, 2
        s_add_u32 s27, s27, s46
        s_lshl_b32 s29, s26, 1
        s_add_u32 s29, s29, s28"""
        p(f"""
        s_cmp_ge_u32 s2, 256
        s_cbranch_scc1 L_end
        s_load_dwordx16 s[4:19], s[0:1], 0
        s_load_dwordx4 s[20:23], s[0:1], 64
        s_getpc_b64 s[74:75]
        v_and_b32 v1, 63, v0
        v_lshrrev_b32 v2, 6, v0
        v_readfirstlane_b32 s24, v2
        {MAP}
        s_and_b32 s25, s24, 3
        s_mov_b32 s72, 0
        s_waitcnt lgkmcnt(0)
        """)
        self.stamp(0)
        p(f"""
        s_mov_b32 s40, s22
        s_mov_b32 s41, s23
        s_mov_b32 s42, {WS_SIZE}
        s_mov_b32 s43, 0x20000
        s_cmp_ge_u32 s24, 4
        s_cbranch_scc0 L_compute
        s_cmp_eq_u32 s28, 0
        s_cbranch_scc0 L_helper_h
        """)
        self.helper_t12('kv')
        p("s_branch L_hp_post")
        p.label("L_helper_h")
        self.helper_t12('h')
        p.label("L_hp_post")
        self.helper_post()
        p.label("L_compute")
        self.compute_path()
        p.label("L_end")
        p("s_endpgm")

    def helper_t12(self, kind):
        p = self.p; cfg = self.cfg
        VO = 8; SD = 48
        NW = 5 if kind == 'kv' else 6
        n = 4 + NW + (3 if kind == 'kv' and not cfg.noqdma else 0)
        wstep = 245760 if kind == 'kv' else 196608
        p(f"""
        s_mul_i32 s44, s26, 163840
        s_add_u32 s32, s4, s44
        s_addc_u32 s33, s5, 0
        s_sub_u32 s34, 2621440, s44
        s_mov_b32 s35, 0x20000
        v_lshrrev_b32 v2, 3, v1
        v_and_b32 v3, 7, v1
        v_xor_b32 v4, v3, v2
        v_lshlrev_b32 v4, 4, v4
        s_lshl_b32 s44, s25, 5
        v_add_u32 v5, s44, v2
        v_mul_u32_u24 v5, 1280, v5
        v_add_u32 v8, v5, v4
        v_add_u32 v9, 10240, v8
        v_add_u32 v10, 20480, v8
        v_add_u32 v11, 30720, v8
        s_lshl_b32 s48, s25, 12
        s_add_u32 s49, s48, 1024
        s_add_u32 s50, s48, 2048
        s_add_u32 s51, s48, 3072
        s_mov_b32 s60, 0
        """)
        self.rot10("s59")
        p("s_lshl_b32 s61, s59, 7")
        p(f"s_mul_i32 s62, s59, {wstep}")
        p("s_mul_i32 s66, s59, 245760")
        for b in range(4):
            p(f"s_mov_b32 m0, s{SD+b}")
            p(f"buffer_load_dwordx4 v{VO+b}, s[32:35], s61 offen lds")
        if kind == 'kv':
            p("s_mul_i32 s44, s27, 160"); p("s_add_u32 s44, s44, 1280")
            p("s_add_u32 s36, s6, s44"); p("s_addc_u32 s37, s7, 0"); p("s_sub_u32 s38, 2457600, s44")
        else:
            p("s_mul_i32 s44, s27, 384")
            p("s_add_u32 s36, s12, s44"); p("s_addc_u32 s37, s13, 0"); p("s_sub_u32 s38, 1966080, s44")
        p("s_mov_b32 s39, 0x20000")
        def seg_pattern(dst):
            p(f"""
            v_mul_u32_u24 v3, 6554, v2
            v_lshrrev_b32 v3, 16, v3
            v_mul_u32_u24 v4, 10, v3
            v_sub_u32 v4, v2, v4
            v_and_b32 v5, 0x33, v3
            v_and_b32 v6, 4, v3
            v_lshl_or_b32 v5, v6, 1, v5
            v_and_b32 v6, 8, v3
            v_lshrrev_b32 v6, 1, v6
            v_or_b32 v5, v5, v6
            v_mul_u32_u24 v5, 3840, v5
            v_lshl_add_u32 v{dst}, v4, 4, v5
            """)
        if kind == 'kv':
            for a in range(5):
                p(f"""
                s_add_u32 s44, s25, {4*a}
                s_cmp_ge_u32 s44, 10
                s_cselect_b32 s45, 1, 0
                s_mul_i32 s46, s45, 10
                s_sub_u32 s46, s44, s46
                s_lshl_b32 s47, s46, 6
                v_add_u32 v2, s47, v1
                """)
                seg_pattern(VO+4+a)
                p(f"""
                s_mul_i32 s47, s45, 1280
                v_add_u32 v{VO+4+a}, s47, v{VO+4+a}
                s_mul_i32 s47, s45, {SEG}
                s_lshl_b32 s46, s46, 10
                s_add_u32 s47, s47, s46
                s_add_u32 s{SD+4+a}, s47, 16384
                s_mov_b32 m0, s{SD+4+a}
                buffer_load_dwordx4 v{VO+4+a}, s[36:39], s62 offen lds
                """)
        else:
            for a in range(6):
                pat = a % 3
                p(f"""
                v_add_u32 v2, {64*pat}, v1
                v_mul_u32_u24 v3, 2731, v2
                v_lshrrev_b32 v3, 16, v3
                v_mul_u32_u24 v4, 24, v3
                v_sub_u32 v4, v2, v4
                v_and_b32 v5, 6, v3
                v_xor_b32 v4, v4, v5
                v_lshrrev_b32 v5, 2, v3
                v_lshlrev_b32 v5, 3, v5
                v_and_b32 v6, 3, v3
                v_add_u32 v5, v5, v6
                s_lshl_b32 s44, s25, 4
                s_add_u32 s44, s44, {4*(a//3)}
                v_add_u32 v5, s44, v5
                v_mul_u32_u24 v5, 3072, v5
                v_lshl_add_u32 v{VO+4+a}, v4, 4, v5
                s_mul_i32 s44, s25, 6144
                s_add_u32 s{SD+4+a}, s44, {16384 + a*1024}
                s_mov_b32 m0, s{SD+4+a}
                buffer_load_dwordx4 v{VO+4+a}, s[36:39], s62 offen lds
                """)
        if kind == 'kv':
            p("s_mul_i32 s44, s27, 160")
            p("s_add_u32 s68, s6, s44"); p("s_addc_u32 s69, s7, 0"); p("s_sub_u32 s70, 2457600, s44"); p("s_mov_b32 s71, 0x20000")
            p("s_mul_i32 s44, s25, 160"); p("s_mul_i32 s67, s25, 2560"); p(f"s_add_u32 s67, s67, {QOFF}")
            for a in range(3):
                p(f"v_add_u32 v2, s44, v1")
                if a: p(f"v_add_u32 v2, {64*a}, v2")
                p("v_min_u32 v2, 639, v2")
                seg_pattern(20 + a)
        def issue_q(buf):
            if kind != 'kv' or cfg.noqdma: return
            for a in range(3):
                p(f"s_add_u32 m0, {buf}, s67") if a == 0 else p(f"s_add_u32 m0, m0, 1024")
                if a == 2: p("s_mov_b32 exec_hi, 0")
                p(f"buffer_load_dwordx4 v{20+a}, s[68:71], s66 offen lds")
                if a == 2: p("s_mov_b64 exec, -1")
        issue_q("s60")
        def advance():
            p(f"s_add_u32 s60, s60, {STG}")
            p(f"s_cmp_eq_u32 s60, {3*STG}")
            p("s_cselect_b32 s60, 0, s60")
            p("s_add_u32 s61, s61, 128")
            p(f"s_add_u32 s62, s62, {wstep}")
            p("s_add_u32 s66, s66, 245760")
            p("s_add_u32 s59, s59, 1")
            p("s_cmp_eq_u32 s59, 10")
            p("s_cselect_b32 s59, 0, s59")
            p("s_cselect_b32 s61, 0, s61")
            p("s_cselect_b32 s62, 0, s62")
            p("s_cselect_b32 s66, 0, s66")
        def issue():
            for i in range(4 + NW):
                p(f"s_add_u32 m0, s60, s{SD+i}")
                srd, so = ("s[32:35]", "s61") if i < 4 else ("s[36:39]", "s62")
                p(f"buffer_load_dwordx4 v{VO+i}, {srd}, {so} offen lds")
            issue_q("s60")
            advance()
        p("s_mov_b32 s96, s16"); p("s_mov_b32 s97, s17"); p("s_movk_i32 s98, 1280"); p("s_mov_b32 s99, 0x20000")
        p("v_lshlrev_b32 v2, 4, v1")
        p(f"s_mov_b32 m0, {GW}")
        p("buffer_load_dwordx4 v2, s[96:99], 0 offen lds")
        p("s_mov_b32 exec_lo, 0xffff"); p("s_mov_b32 exec_hi, 0")
        p("buffer_load_dwordx4 v2, s[96:99], 0 offen offset:1024 lds")
        p("s_mov_b64 exec, -1")
        advance()
        self.stamp(1)
        q = [("s0", n), ("gw", 2)]
        def push(tag, k): q.append((tag, k))
        def wait_for(tag):
            tags = [t for t, _ in q]
            if tag not in tags: return
            idx = tags.index(tag)
            p(f"s_waitcnt vmcnt({sum(k for _, k in q[idx+1:])})")
            del q[:idx+1]
        if cfg.early_s1:
            issue(); push("s1", n)
        wait_for("gw")
        self.stamp(2)
        p("s_barrier")
        if not cfg.early_s1:
            issue(); push("s1", n)
        issue(); push("s2", n)
        p(f"v_mov_b32 v2, {SY}")
        p(f"ds_read_b32 v3, v2 offset:{W_TAG}")
        p("s_waitcnt lgkmcnt(0)")
        p("v_readfirstlane_b32 s30, v3")
        for i in range(10):
            if i <= 8: wait_for(f"s{i+1}")
            p("s_barrier")
            if i == 0: self.stamp(3)
            if cfg.hst and cfg.stamps and i in (0, 1, 2, 4, 6, 8, 9): p(f"s_memtime s[{80+2*(1+(0,1,2,4,6,8,9).index(i))}:{81+2*(1+(0,1,2,4,6,8,9).index(i))}]")
            if i <= 6: issue(); push(f"s{i+3}", n)
            if i == 0 and kind == 'h':
                p("s_lshl_b32 s44, s27, 13"); p("s_lshl_b32 s45, s26, 9"); p("s_add_u32 s44, s44, s45"); p(f"s_add_u32 s44, s44, {WS_KVS}")
                p("s_cmp_eq_u32 s25, 0"); p(f"s_cselect_b32 s44, s44, {OOB}")
                p("v_and_b32 v2, 31, v1"); p("v_lshlrev_b32 v2, 4, v2"); p("v_add_u32 v2, s44, v2")
                for e in range(4): p(f"v_mov_b32 v{32+e}, 0")
                p("s_mov_b32 exec_hi, 0")
                p("buffer_store_dwordx4 v[32:35], v2, s[40:43], 0 offen sc1")
                p("s_mov_b64 exec, -1")
                push("zs", 1)
            if i == 3 and kind == 'h':
                wait_for("zs")
                p("s_lshl_b32 s44, s27, 11"); p("s_lshl_b32 s45, s26, 7"); p("s_add_u32 s44, s44, s45"); p(f"s_add_u32 s58, s44, {F_KS}")
                p("s_cmp_eq_u32 s25, 0"); p(f"s_cselect_b32 s58, s58, {OOB}")
                self.flag_store("s58"); push("zf", 1)
            if cfg.stouch and i in (2, 4, 6):
                if i == 2 or i == 4:
                    k0 = 0 if i == 2 else 8
                    p("s_mul_i32 s44, s2, 7680"); p("s_mul_i32 s45, s25, 1920"); p("s_add_u32 s44, s44, s45")
                    p("s_add_u32 s46, s14, s44"); p("s_addc_u32 s47, s15, 0")
                    for k in range(k0, min(15, k0 + 8)): p(f"s_load_dword s3, s[46:47], {128*k}")
                else:
                    p("s_mul_i32 s44, s2, 3200"); p("s_mul_i32 s45, s25, 800"); p("s_add_u32 s44, s44, s45")
                    p(f"s_min_u32 s44, s44, {819200 - 7*128}")
                    p("s_add_u32 s46, s8, s44"); p("s_addc_u32 s47, s9, 0")
                    for k in range(7): p(f"s_load_dword s3, s[46:47], {128*k}")
            if i == 5:
                p("v_min_u32 v2, 15, v1"); p("v_lshlrev_b32 v2, 2, v2")
                p("s_lshl_b32 s44, s26, 7"); p(f"s_add_u32 s44, s44, {F_X}")
                p("buffer_load_dword v31, v2, s[40:43], s44 offen sc1")
                push("xc", 1)
            if i == 6 and kind == 'kv':
                NZ = p.newlabel("L_nz")
                p("s_sub_u32 s3, s25, 1"); p("s_cmp_lt_u32 s3, 2"); p(f"s_cbranch_scc0 {NZ}")
                p("s_lshl_b32 s58, s27, 11"); p("s_lshl_b32 s44, s3, 10"); p("s_add_u32 s58, s58, s44"); p(f"s_add_u32 s58, s58, {F_KS}")
                self.poll_flags_safe("s58", 8)
                self.lds_signal(W_ZOK)
                p.label(NZ)
            if i == 7:
                wait_for("xc")
                p("s_getreg_b32 s45, hwreg(HW_REG_XCC_ID)"); p("s_and_b32 s45, s45, 7")
                p("s_and_b32 s44, s30, 0xfffffff0"); p("s_or_b32 s44, s44, 8"); p("s_or_b32 s44, s44, s45")
                p("v_cmp_eq_u32 vcc, s44, v31")
                p("s_nop 1")
                p("s_cmp_eq_u64 vcc, -1")
                p("s_cselect_b32 s72, 1, 2")
                p(f"v_mov_b32 v2, {SY}"); p("v_mov_b32 v3, s72")
                p(f"ds_write_b32 v2, v3 offset:{W_LOC}")
                p("s_waitcnt lgkmcnt(0)")
            if kind == 'h' and not cfg.t12only:
                if i == cfg.jl: self.job_load(); push("jl", 10)
                if i == cfg.jp:
                    wait_for("jl"); self.job_proc(); push("js", 10)
                if i == cfg.jf:
                    wait_for("js"); self.flag_store("s65"); push("jf", 1)

    def job_load(self):
        p = self.p
        p(f"""
        s_and_b32 s44, s2, 7
        s_lshl_b32 s44, s44, 4
        s_lshr_b32 s45, s31, 1
        s_add_u32 s64, s44, s45
        s_lshl_b32 s44, s25, 7
        s_add_u32 s64, s64, s44
        s_mul_i32 s70, s64, 964
        s_lshr_b32 s70, s70, 16
        s_mul_i32 s44, s70, 68
        s_sub_u32 s71, s64, s44
        s_mul_i32 s68, s25, {STG}
        s_add_u32 s68, s68, 40960
        s_cmp_eq_u32 s25, 3
        s_cselect_b32 s68, {KVT}, s68
        s_cselect_b32 s67, 0, 1024
        s_lshl_b32 s44, s70, 12
        s_lshr_b32 s45, s71, 2
        s_lshl_b32 s45, s45, 7
        s_add_u32 s44, s44, s45
        s_and_b32 s45, s71, 3
        s_lshl_b32 s45, s45, 2
        s_add_u32 s44, s44, s45
        s_add_u32 s65, s44, {F_J}
        s_cmp_ge_u32 s64, 272
        s_cselect_b32 s65, {OOB}, s65
        """)
        for u in range(10):
            p(f"""
            v_add_u32 v2, {64*u}, v1
            v_mul_u32_u24 v3, 3277, v2
            v_lshrrev_b32 v{32+u}, 16, v3
            v_mul_u32_u24 v4, 20, v{32+u}
            v_sub_u32 v4, v2, v4
            v_lshlrev_b32 v{44+u}, 4, v4
            """)
        B, C, Dn = [p.newlabel("L_jr") for _ in range(3)]
        p("s_cmp_lt_u32 s71, 48")
        p("s_cselect_b32 s96, s14, s8"); p("s_cselect_b32 s97, s15, s9")
        p("s_mov_b32 s98, 819200"); p("s_cselect_b32 s98, 1966080, s98")
        p(f"s_cbranch_scc0 {B}")
        p("s_lshl_b32 s44, s71, 5")
        for u in range(10): p(f"v_add_u32 v{32+u}, s44, v{32+u}")
        p(f"s_branch {Dn}")
        p.label(B)
        p("s_cmp_lt_u32 s71, 64"); p(f"s_cbranch_scc0 {C}")
        p("s_sub_u32 s44, s71, 48"); p("s_mul_i32 s44, s44, 40")
        for u in range(10):
            p(f"""
            v_lshrrev_b32 v2, 4, v{32+u}
            v_mul_u32_u24 v2, 20, v2
            v_and_b32 v3, 15, v{32+u}
            v_add3_u32 v{32+u}, v2, v3, s44
            """)
        p(f"s_branch {Dn}")
        p.label(C)
        p("s_sub_u32 s44, s71, 64"); p("s_lshl_b32 s44, s44, 3")
        for u in range(10):
            p(f"""
            v_lshrrev_b32 v2, 4, v{32+u}
            v_lshlrev_b32 v2, 2, v2
            v_bfe_u32 v3, v{32+u}, 2, 2
            v_add_u32 v3, 2, v3
            v_and_b32 v3, 3, v3
            v_add3_u32 v2, v2, v3, s44
            v_mul_u32_u24 v2, 20, v2
            v_and_b32 v3, 3, v{32+u}
            v_add3_u32 v{32+u}, v2, v3, 16
            """)
        p.label(Dn)
        p("s_mov_b32 s99, 0x20000")
        p("s_mul_i32 s44, s70, 320")
        p("s_cmp_ge_u32 s64, 272")
        p(f"s_cselect_b32 s44, {OOB}, s44")
        for u in range(10):
            p(f"v_mul_u32_u24 v2, 1280, v{32+u}")
            p(f"v_add3_u32 v{32+u}, v2, v{44+u}, s44")
        p("s_mov_b32 s44, s68")
        for u in range(10):
            p("s_mov_b32 m0, s44")
            p(f"buffer_load_dwordx4 v{32+u}, s[96:99], 0 offen lds")
            p("s_add_u32 s44, s44, s67")

    def job_proc(self):
        p = self.p
        p("""
        v_lshrrev_b32 v2, 4, v1
        v_bfe_u32 v3, v1, 2, 2
        v_and_b32 v4, 3, v1
        v_lshl_add_u32 v5, v2, 2, v3
        v_mul_u32_u24 v5, 320, v5
        v_mul_u32_u24 v6, 40, v4
        v_add3_u32 v5, v5, v6, s68
        """)
        for hf in range(2):
            for t in range(5):
                for b2 in range(2):
                    r = 32 + (hf*5 + t)*4 + 2*b2
                    p(f"ds_read_b64_tr_b16 v[{r}:{r+1}], v5 offset:{16*b2*320 + hf*160 + 8*t}")
        p(f"s_mul_i32 s44, s70, {2*WP_CG}"); p("s_mul_i32 s45, s71, 5120"); p("s_add_u32 s44, s44, s45"); p(f"s_add_u32 s44, s44, {WS_WP}")
        p("s_cmp_ge_u32 s64, 272"); p(f"s_cselect_b32 s44, {OOB}, s44")
        p("v_lshlrev_b32 v3, 4, v1"); p("v_add_u32 v3, s44, v3")
        p("v_add_u32 v4, 4096, v3"); p(f"v_add_u32 v6, {WP_CG}, v3"); p(f"v_add_u32 v7, {WP_CG+4096}, v3")
        p("s_waitcnt lgkmcnt(0)")
        for hf in range(2):
            for t in range(5):
                r = 32 + (hf*5 + t)*4
                a = ("v3" if t < 4 else "v4") if hf == 0 else ("v6" if t < 4 else "v7")
                off = (t*1024) if t < 4 else 0
                p(f"buffer_store_dwordx4 v[{r}:{r+3}], {a}, s[40:43], 0 offen offset:{off} sc1")

    def helper_post(self):
        p = self.p
        if self.cfg.t12only:
            p("s_waitcnt vmcnt(0)"); self.stamp_flush(8); p("s_branch L_end"); return
        self.stamp(4)
        NJ = p.newlabel("L_nj")
        p("s_cmp_eq_u32 s25, 0"); p(f"s_cbranch_scc1 {NJ}")
        p("s_lshr_b32 s58, s27, 1"); p("s_lshl_b32 s58, s58, 12")
        p("s_sub_u32 s44, s25, 1"); p("s_mul_i32 s44, s44, 6"); p("s_min_u32 s44, s44, 11"); p("s_lshl_b32 s44, s44, 7")
        p("s_add_u32 s58, s58, s44"); p(f"s_add_u32 s58, s58, {F_J}")
        Lp, Dp = p.newlabel("L_jp"), p.newlabel("L_jpd")
        p("s_add_u32 s4, s22, s58"); p("s_addc_u32 s5, s23, 0")
        p(f"s_mov_b32 s47, {POLL_MAX}")
        p.label(Lp)
        p("s_mov_b32 s46, 0")
        for b in range(2):
            for i in range(3): p(f"s_load_dwordx4 s[{8+4*i}:{11+4*i}], s[4:5], {(3*b+i)*128} glc")
            p("s_waitcnt lgkmcnt(0)")
            for i in range(12):
                p(f"s_xor_b32 s{8+i}, s{8+i}, s30"); p(f"s_or_b32 s46, s46, s{8+i}")
        p("s_cmp_eq_u32 s46, 0"); p(f"s_cbranch_scc1 {Dp}")
        p("s_sleep 1")
        p("s_sub_u32 s47, s47, 1"); p("s_cmp_lg_u32 s47, 0"); p(f"s_cbranch_scc1 {Lp}")
        p.label(Dp)
        self.lds_signal(W_JOK)
        p.label(NJ)
        N0 = p.newlabel("L_n0")
        p("s_cmp_eq_u32 s25, 0"); p(f"s_cbranch_scc0 {N0}")
        p(f"s_lshl_b32 s58, s26, 10"); p(f"s_add_u32 s58, s58, {F_H}")
        self.poll_flags("s58", 8)
        self.lds_signal(W_HR)
        self.stamp(5)
        p.label(N0)
        p("s_cmp_eq_u32 s28, 0"); p("s_cbranch_scc1 L_hp_kvcu")
        p("s_branch L_hp_or")
        p.label("L_hp_kvcu")
        N3x = p.newlabel("L_n3x")
        p("s_sub_u32 s59, s25, 1"); p("s_cmp_lt_u32 s59, 2"); p(f"s_cbranch_scc0 {N3x}")
        p("s_lshl_b32 s58, s27, 11"); p("s_lshl_b32 s44, s59, 10"); p("s_add_u32 s58, s58, s44"); p(f"s_add_u32 s58, s58, {F_KV}")
        self.poll_flags("s58", 8)
        self.lds_signal(W_KVF)
        p.label(N3x)
        self.lds_wait(W_KVF, 2)
        self.stamp2(4)
        p("v_lshrrev_b32 v2, 4, v1"); p("v_and_b32 v3, 15, v1")
        p(f"v_mov_b32 v7, {OOB}")
        p("v_add_u32 v4, 2, v2"); p("v_and_b32 v4, 3, v4"); p("v_lshrrev_b32 v5, 2, v3")
        p("v_cmp_eq_u32 s[56:57], v4, v5")
        VT = 8
        LA, LB, LE = [p.newlabel("L_kt") for _ in range(3)]
        p("v_lshlrev_b32 v4, 2, v1"); p("v_lshrrev_b32 v5, 1, v2"); p("v_lshlrev_b32 v6, 6, v2")
        p("s_cmp_ge_u32 s25, 2"); p(f"s_cbranch_scc1 {LA}")
        p("s_mul_i32 s44, s25, 3072")
        for i in range(3):
            p(f"v_add_u32 v{VT+i}, s44, v4")
            if i: p(f"v_add_u32 v{VT+i}, {1024*i}, v{VT+i}")
        p(f"s_branch {LE}")
        p.label(LA)
        p("s_cmp_eq_u32 s25, 2"); p(f"s_cbranch_scc0 {LB}")
        p("v_lshlrev_b32 v11, 10, v5"); p("v_add3_u32 v11, v11, v4, 0"); p("v_add_u32 v11, 6144, v11")
        p(f"v_cndmask_b32 v{VT}, v7, v11, s[56:57]")
        p(f"v_add_u32 v{VT+1}, {6144}, v6")
        p(f"v_add_u32 v{VT+2}, {6144+4}, v6")
        p(f"s_branch {LE}")
        p.label(LB)
        p(f"v_add_u32 v{VT}, {7168+32}, v6")
        p(f"v_add_u32 v{VT+1}, {7168+36}, v6")
        p(f"v_mul_u32_u24 v11, {1024+32}, v5")
        p(f"v_add3_u32 v{VT+2}, v11, v6, 0"); p(f"v_add_u32 v{VT+2}, {6144+16}, v{VT+2}")
        p.label(LE)
        SUM = 16
        p(f"s_lshl_b32 s48, s27, 13"); p(f"s_add_u32 s48, s48, {WS_KVS}")
        for i in range(3):
            for e in range(4):
                p(f"buffer_load_dword v{SUM+4*i+e}, v{VT+i}, s[40:43], s48 offen offset:{256*e} sc1")
        p("s_waitcnt vmcnt(0)")
        self.stamp2(5)
        p("s_mul_i32 s44, s25, 1536"); p(f"s_add_u32 s44, s44, {KVT}")
        p("v_lshlrev_b32 v4, 3, v1"); p("v_add_u32 v5, s44, v4")
        for i in range(3):
            p(f"v_cvt_pk_bf16_f32 v{SUM+4*i}, v{SUM+4*i}, v{SUM+4*i+1}")
            p(f"v_cvt_pk_bf16_f32 v{SUM+4*i+1}, v{SUM+4*i+2}, v{SUM+4*i+3}")
            p(f"ds_write_b64 v5, v[{SUM+4*i}:{SUM+4*i+1}] offset:{i*512}")
        p("s_waitcnt lgkmcnt(0)")
        self.lds_signal(W_KVR)
        self.lds_wait(W_KVR, 4)
        self.stamp(6)
        self.stamp2(6)
        TT = 68
        p("v_lshlrev_b32 v5, 3, v1"); p(f"v_add_u32 v5, {KVT}, v5")
        for tau in range(12): p(f"ds_read_b64 v[{TT+2*tau}:{TT+2*tau+1}], v5 offset:{tau*512}")
        p("v_lshrrev_b32 v2, 4, v1"); p("v_and_b32 v3, 15, v1"); p("v_lshrrev_b32 v5, 2, v3")
        for h in range(4):
            p(f"v_cmp_eq_u32 s[{56+2*h}:{57+2*h}], {h}, v2")
            p(f"v_cmp_eq_u32 s[{64+2*h}:{65+2*h}], {(h+2)&3}, v5")
        p("s_waitcnt lgkmcnt(0)")
        KVt = lambda h: TT + 2*h
        EXL, E0H, XXt = TT + 8, TT + 10, TT + 12
        ZL = lambda h: TT + 14 + 2*h
        ZH = TT + 22
        FR = 96
        for h in range(4):
            e0 = FR + 12*h; ex = e0 + 4; dn = e0 + 8
            mg, mr = f"s[{56+2*h}:{57+2*h}]", f"s[{64+2*h}:{65+2*h}]"
            p(f"v_mov_b32 v{e0}, v{KVt(h)}"); p(f"v_mov_b32 v{e0+1}, v{KVt(h)+1}")
            p(f"v_cndmask_b32 v{e0+2}, 0, v{E0H}, {mg}"); p(f"v_cndmask_b32 v{e0+3}, 0, v{E0H+1}, {mg}")
            p(f"v_cndmask_b32 v{ex}, 0, v{EXL}, {mr}"); p(f"v_cndmask_b32 v{ex+1}, 0, v{EXL+1}, {mr}")
            p(f"v_cndmask_b32 v{ex+2}, 0, v{XXt}, {mr}"); p(f"v_cndmask_b32 v{ex+3}, 0, v{XXt+1}, {mr}")
            p(f"v_mov_b32 v{dn}, v{ZL(h)}"); p(f"v_mov_b32 v{dn+1}, v{ZL(h)+1}")
            p(f"v_cndmask_b32 v{dn+2}, 0, v{ZH}, {mg}"); p(f"v_cndmask_b32 v{dn+3}, 0, v{ZH+1}, {mg}")
        self.lds_wait(W_BQ, 4, vtmp=(6, 7))
        for k in range(2):
            BQ = 16 if k == 0 else 32
            p(f"s_lshl_b32 s44, s25, 1"); p(f"s_add_u32 s44, s44, {k}")
            p("s_and_b32 s45, s44, 3"); p("s_mul_i32 s45, s45, 2560")
            p(f"s_mov_b32 s46, {BQL1}"); p("s_cmp_lt_u32 s44, 4"); p(f"s_cselect_b32 s46, {BQL0}, s46"); p("s_add_u32 s45, s45, s46")
            p("v_lshlrev_b32 v4, 3, v1"); p("v_add_u32 v5, s45, v4")
            for h in range(4):
                p(f"ds_read_b64 v[{BQ+4*h}:{BQ+4*h+1}], v5 offset:{h*512}")
                p(f"ds_read_b64 v[{BQ+4*h+2}:{BQ+4*h+3}], v5 offset:2048")
        p("v_lshlrev_b32 v4, 4, v1")
        p("s_waitcnt lgkmcnt(0)")
        NUM = 48; DN = 64; EXO = 80; RR = 144; OO = 84
        for k in range(2):
            BQ = 16 if k == 0 else 32
            bq = lambda h: vr(BQ + 4*h, 4)
            for h in range(4):
                e0 = FR + 12*h
                p(f"v_mfma_f32_16x16x32_bf16 {vr(NUM+4*h,4)}, {vr(e0,4)}, {bq(h)}, 0")
                p(f"v_mfma_f32_16x16x32_bf16 {vr(DN+4*h,4)}, {vr(e0+8,4)}, {bq(h)}, 0")
                c = "0" if h == 0 else vr(EXO, 4)
                p(f"v_mfma_f32_16x16x32_bf16 {vr(EXO,4)}, {vr(e0+4,4)}, {bq(h)}, {c}")
            p(f"s_mov_b32 s44, {EPS6}")
            for h in range(4): p(f"v_add_f32 v{RR+h}, s44, v{DN+4*h}")
            for h in range(4): p(f"v_rcp_f32 v{RR+h}, v{RR+h}")
            p(f"v_cndmask_b32 v{RR+4}, v{RR}, v{RR+2}, s[56:57]")
            p(f"v_cndmask_b32 v{RR+4}, v{RR+4}, v{RR+3}, s[58:59]")
            p(f"v_cndmask_b32 v{RR+4}, v{RR+4}, v{RR+1}, s[62:63]")
            for h in range(4):
                for i in range(4): p(f"v_mul_f32 v{NUM+4*h+i}, v{NUM+4*h+i}, v{RR+h}")
            for i in range(4): p(f"v_mul_f32 v{EXO+i}, v{EXO+i}, v{RR+4}")
            O_ = OO if k == 0 else 148
            for h in range(4):
                p(f"v_cvt_pk_bf16_f32 v{O_+2*h}, v{NUM+4*h}, v{NUM+4*h+1}")
                p(f"v_cvt_pk_bf16_f32 v{O_+2*h+1}, v{NUM+4*h+2}, v{NUM+4*h+3}")
            p(f"v_cvt_pk_bf16_f32 v{O_+8}, v{EXO}, v{EXO+1}")
            p(f"v_cvt_pk_bf16_f32 v{O_+9}, v{EXO+2}, v{EXO+3}")
            p("s_lshl_b32 s50, s26, 3"); p("s_lshl_b32 s44, s25, 1"); p("s_add_u32 s50, s50, s44"); p(f"s_add_u32 s50, s50, {k}")
            p(f"""
            s_mul_i32 s44, s50, {AP_ST}
            s_add_u32 s44, s44, {WS_AP}
            s_lshl_b32 s45, s27, 11
            s_add_u32 s45, s45, s44
            s_add_u32 s45, s45, {48*1024}
            v_add_u32 v5, s45, v4
            s_lshr_b32 s45, s27, 1
            s_lshl_b32 s45, s45, 10
            s_and_b32 s46, s27, 1
            s_lshl_b32 s46, s46, 3
            s_add_u32 s45, s45, s46
            s_add_u32 s45, s45, s44
            s_add_u32 s45, s45, {64*1024}
            v_add_u32 v6, s45, v4
            """)
            p(f"buffer_store_dwordx4 v[{O_}:{O_+3}], v5, s[40:43], 0 offen sc1")
            p(f"buffer_store_dwordx4 v[{O_+4}:{O_+7}], v5, s[40:43], 0 offen offset:1024 sc1")
            p(f"buffer_store_dwordx2 v[{O_+8}:{O_+9}], v6, s[40:43], 0 offen sc1")
        p("s_waitcnt vmcnt(0)")
        p("s_lshl_b32 s44, s26, 10"); p("s_lshl_b32 s45, s27, 7"); p("s_add_u32 s44, s44, s45"); p(f"s_add_u32 s58, s44, {F_O}")
        self.publish_last(W_PUB2, 4, "s58")
        self.stamp2(7)
        p.label("L_hp_or")
        N1 = p.newlabel("L_n1")
        p("s_cmp_eq_u32 s25, 0"); p(f"s_cbranch_scc0 {N1}")
        p(f"s_lshl_b32 s58, s26, 10"); p(f"s_add_u32 s58, s58, {F_O}")
        self.poll_flags("s58", 8)
        self.lds_signal(W_OR)
        self.stamp(7)
        p.label(N1)
        p("s_waitcnt lgkmcnt(0)")
        self.stamp_flush(8)
        p("s_branch L_end")

    def compute_path(self):
        p = self.p; cfg = self.cfg
        p("s_cmp_eq_u32 s25, 0"); p("s_cbranch_scc0 L_c_n0")
        p("v_lshlrev_b32 v3, 2, v1"); p(f"v_add_u32 v3, {SY}, v3"); p("v_mov_b32 v4, 0")
        p("s_mov_b64 exec, -2")
        p("ds_write_b32 v3, v4")
        p("s_mov_b64 exec, -1")
        p("s_cmp_eq_u32 s2, 0"); p("s_cbranch_scc0 L_c_n0")
        p("s_memrealtime s[44:45]")
        p("s_mov_b32 s96, s20"); p("s_mov_b32 s97, s21"); p("s_movk_i32 s98, 256"); p("s_mov_b32 s99, 0x20000")
        p("s_waitcnt lgkmcnt(0)")
        p("s_or_b32 s44, s44, 1")
        p("v_mov_b32 v3, s44"); p("v_mov_b32 v4, 0")
        p("s_mov_b64 exec, 1")
        p("buffer_store_dword v3, v4, s[96:99], 0 offen sc1")
        p("s_mov_b64 exec, -1")
        p.label("L_c_n0")
        p("s_cmp_eq_u32 s25, 3"); p("s_cbranch_scc0 L_c_n3")
        p("s_mov_b64 exec, 0xff")
        p("s_lshl_b32 s44, s31, 10")
        p("v_lshlrev_b32 v3, 7, v1"); p("v_add_u32 v3, s44, v3")
        p(f"v_min_u32 v3, CODE_BYTES_M, v3")
        p(f"global_load_dword v31, v3, s[74:75]")
        p("s_mov_b64 exec, -1")
        p("s_mov_b32 s96, s20"); p("s_mov_b32 s97, s21"); p("s_movk_i32 s98, 256"); p("s_mov_b32 s99, 0x20000")
        p("v_mov_b32 v4, 0")
        p(f"s_mov_b32 s47, {POLL_MAX*4}")
        p.label("L_c_tag")
        p("buffer_load_dword v3, v4, s[96:99], 0 offen sc1")
        p("s_waitcnt vmcnt(0)")
        p("v_readfirstlane_b32 s44, v3")
        p("s_cmp_lg_u32 s44, 0"); p("s_cbranch_scc1 L_c_tagd")
        p("s_sub_u32 s47, s47, 1"); p("s_cmp_lg_u32 s47, 0"); p("s_cbranch_scc1 L_c_tag")
        p.label("L_c_tagd")
        p(f"v_mov_b32 v2, {SY}")
        p(f"ds_write_b32 v2, v3 offset:{W_TAG}")
        p("s_getreg_b32 s45, hwreg(HW_REG_XCC_ID)")
        p("s_and_b32 s45, s45, 7")
        p("s_and_b32 s44, s44, 0xfffffff0"); p("s_or_b32 s44, s44, 8"); p("s_or_b32 s44, s44, s45")
        p("s_lshl_b32 s45, s26, 7"); p("s_lshl_b32 s46, s28, 5"); p("s_add_u32 s45, s45, s46")
        p("s_lshl_b32 s46, s27, 2"); p("s_add_u32 s45, s45, s46"); p(f"s_add_u32 s45, s45, {F_X}")
        p("v_mov_b32 v4, s45"); p("v_mov_b32 v5, s44")
        p("s_mov_b64 exec, 1")
        p("buffer_store_dword v5, v4, s[40:43], 0 offen sc1")
        p("s_mov_b64 exec, -1")
        p.label("L_c_n3")
        if cfg.kt: self.touch_setup()
        p("s_cmp_eq_u32 s28, 0")
        p("s_cbranch_scc0 L_c_h")
        self.t12_compute('kv')
        p("s_branch L_c_t4")
        p.label("L_c_h")
        self.t12_compute('h')
        p.label("L_c_t4")
        self.t4()
        p("s_branch L_end")

    def touch_setup(self):
        p = self.p; D = self.cfg.kt
        L1, L2, LX, LD = [p.newlabel("L_tc") for _ in range(4)]
        p("s_mov_b32 s67, 0x20000"); p("s_and_b32 s47, s2, 1")
        p("s_cmp_eq_u32 s25, 1"); p(f"s_cbranch_scc1 {L1}")
        p("s_cmp_eq_u32 s25, 2"); p(f"s_cbranch_scc1 {L2}")
        p("s_mov_b32 s64, s4"); p("s_mov_b32 s65, s5"); p("s_mov_b32 s66, 2621440"); p("s_mov_b32 s68, 0")
        p("s_cmp_eq_u32 s25, 0"); p(f"s_cbranch_scc0 {LX}")
        p("s_lshl_b32 s44, s73, 9"); p("s_lshl_b32 s45, s31, 4"); p("s_add_u32 s44, s44, s45"); p("s_mul_i32 s44, s44, 1280")
        p("v_lshlrev_b32 v28, 7, v1"); p("v_add_u32 v28, s44, v28")
        p("buffer_load_dword v29, v28, s[64:67], 0 offen")
        p("v_add_u32 v28, 8192, v28"); p("buffer_load_dword v30, v28, s[64:67], 0 offen")
        p("v_add_u32 v28, 8192, v28"); p("s_mov_b32 exec_hi, 0"); p("buffer_load_dword v31, v28, s[64:67], 0 offen"); p("s_mov_b64 exec, -1")
        p.label(LX)
        p(f"v_mov_b32 v28, {OOB}")
        p(f"s_branch {LD}")
        p.label(L1)
        p("s_mov_b32 s64, s6"); p("s_mov_b32 s65, s7"); p("s_mov_b32 s66, 2457600"); p("s_mov_b32 s68, 245760")
        p("""
        v_min_u32 v2, 29, v1
        v_cmp_le_u32 vcc, 15, v2
        v_cndmask_b32 v3, 0, 1, vcc
        v_mul_u32_u24 v4, 15, v3
        v_sub_u32 v4, v2, v4
        v_mul_u32_u24 v5, 13, v4
        v_lshrrev_b32 v5, 6, v5
        v_mul_u32_u24 v6, 5, v5
        v_sub_u32 v6, v4, v6
        s_lshl_b32 s44, s31, 1
        v_add_u32 v3, s44, v3
        v_mul_u32_u24 v3, 3840, v3
        v_mul_u32_u24 v5, 1280, v5
        v_lshl_add_u32 v3, v6, 7, v3
        s_mul_i32 s44, s47, 640
        v_add3_u32 v28, v3, v5, s44
        """)
        p(f"s_branch {LD + 'i'}")
        p.label(L2)
        p("s_mov_b32 s64, s12"); p("s_mov_b32 s65, s13"); p("s_mov_b32 s66, 1966080"); p("s_mov_b32 s68, 196608")
        p("""
        v_min_u32 v2, 23, v1
        v_cmp_le_u32 vcc, 12, v2
        v_cndmask_b32 v3, 0, 1, vcc
        v_mul_u32_u24 v4, 12, v3
        v_sub_u32 v4, v2, v4
        s_lshl_b32 s44, s31, 1
        v_add_u32 v3, s44, v3
        v_mul_u32_u24 v3, 3072, v3
        v_lshl_add_u32 v3, v4, 7, v3
        s_mul_i32 s44, s47, 1536
        v_add_u32 v28, s44, v3
        """)
        p.label(LD + 'i')
        for st in range(D):
            p(f"buffer_load_dword v29, v28, s[64:67], 0 offen")
            p("v_add_u32 v28, s68, v28")
        p.label(LD)

    def t12_compute(self, kind):
        p = self.p
        typ = 0 if kind == 'kv' else 1
        NT = 5 if kind == 'kv' else 6
        SETSZ = 16 + 4 * NT
        ACC = 32
        def xf(s, st): return SETSZ * s + 4 * st
        def wf(s, t): return SETSZ * s + 16 + 4 * t
        def acc(t, st): return ACC + (t * 4 + st) * 4
        if kind == 'kv':
            QACC = lambda i, st: 112 + (i*4 + st)*4
            QXACC = lambda k: 144 + 4*k
            GACC = 152
            QF = [72, 76, 80]; GF = 84
            NACC = 124
        else:
            GACC = 128; GF = 80; NACC = 100
        p("""
        s_lshr_b32 s48, s25, 1
        s_and_b32 s49, s25, 1
        v_lshrrev_b32 v2, 4, v1
        v_bfe_u32 v3, v1, 2, 2
        v_and_b32 v4, 3, v1
        v_bfe_u32 v5, v1, 3, 1
        s_lshl_b32 s44, s48, 3
        v_add_u32 v5, s44, v5
        v_lshlrev_b32 v5, 10, v5
        v_and_b32 v6, 7, v1
        v_lshl_add_u32 v5, v6, 7, v5
        v_xor_b32 v7, v2, v6
        v_lshl_add_u32 v8, v7, 4, v5
        v_xor_b32 v7, 4, v7
        v_lshl_add_u32 v9, v7, 4, v5
        v_lshrrev_b32 v5, 1, v2
        v_lshlrev_b32 v5, 4, v5
        v_and_b32 v6, 1, v2
        v_lshl_add_u32 v5, v6, 2, v5
        v_add_u32 v5, v5, v3
        """)
        self.rot10("s53")
        p("s_lshl_b32 s44, s53, 7"); p(f"s_add_u32 s44, s44, {GW}")
        p("v_lshlrev_b32 v19, 4, v2"); p("v_add_u32 v19, s44, v19")
        if kind == 'kv':
            p(f"""
            v_mul_u32_u24 v6, 160, v5
            v_add_u32 v7, {QOFF}, v6
            s_mul_i32 s44, s49, 80
            v_lshlrev_b32 v16, 3, v4
            v_add3_u32 v16, v16, v7, s44
            v_mul_u32_u24 v17, 40, v4
            v_add3_u32 v17, v17, v7, 32
            v_add_u32 v6, 16384, v6
            v_lshlrev_b32 v7, 3, v4
            v_add3_u32 v10, v6, v7, s44
            v_lshrrev_b32 v7, 1, v4
            v_xor_b32 v7, s49, v7
            v_mul_u32_u24 v7, {SEG}, v7
            v_and_b32 v13, 1, v4
            v_mul_u32_u24 v13, 40, v13
            v_add3_u32 v13, v13, v6, s44
            v_add3_u32 v11, v13, v7, 32
            """)
            def wread(t, s, b2):
                ro = (32 * s + 8 * b2) * 160
                if t in (0, 1): return ("v10", 40 * t + ro)
                if t in (2, 3): return ("v10", SEG + 40 * (t - 2) + ro)
                return ("v11", ro)
            addr_regs = [8, 9, 10, 11, 16, 17]
            transposed = lambda t: False
        else:
            p(f"""
            v_mul_u32_u24 v6, 384, v5
            v_add_u32 v6, 16384, v6
            v_and_b32 v7, 1, v4
            v_lshl_add_u32 v6, v7, 3, v6
            v_and_b32 v7, 6, v5
            v_lshrrev_b32 v20, 1, v4
            s_mul_i32 s44, s49, 12
            v_add_u32 v20, s44, v20
            """)
            for t in range(6):
                p(f"""
                v_add_u32 v21, {2*t}, v20
                v_xor_b32 v21, v21, v7
                v_lshl_add_u32 v{10+t}, v21, 4, v6
                """)
            def wread(t, s, b2): return (f"v{10+t}", (32 * s + 8 * b2) * 384)
            addr_regs = [8, 9, 10, 11, 12, 13, 14, 15]
            transposed = lambda t: True
        def base_reads(s_dst, s_k):
            vx = "v8" if s_k == 0 else "v9"
            xs = [f"ds_read_b128 {ar(xf(s_dst, st), 4)}, {vx} offset:{st*2048}" for st in range(4)]
            ws = []
            for t in range(NT):
                for b2 in range(2):
                    a, off = wread(t, s_k, b2)
                    ws.append(f"ds_read_b64_tr_b16 {ar(wf(s_dst, t) + 2*b2, 2)}, {a} offset:{off}")
            return [xs[0]] + ws[:4] + [xs[1]] + ws[4:8] + [xs[2]] + ws[8:10] + [xs[3]] + ws[10:]
        def q_reads(s_k):
            L = []
            if kind == 'kv' and not self.cfg.noqread:
                for b2 in range(2):
                    ro = (32 * s_k + 8 * b2) * 160
                    L.append(f"ds_read_b64_tr_b16 {ar(QF[0]+2*b2, 2)}, v16 offset:{ro}")
                    L.append(f"ds_read_b64_tr_b16 {ar(QF[1]+2*b2, 2)}, v16 offset:{ro + 40}")
                    L.append(f"ds_read_b64_tr_b16 {ar(QF[2]+2*b2, 2)}, v17 offset:{ro}")
            L.append(f"ds_read_b128 {ar(GF, 4)}, v19 offset:{64*s_k}")
            return L
        def base_mfmas(s):
            L = []
            for st in range(4):
                for t in range(NT):
                    A, B = (ar(wf(s, t), 4), ar(xf(s, st), 4)) if transposed(t) else (ar(xf(s, st), 4), ar(wf(s, t), 4))
                    c = vr(acc(t, st), 4)
                    L.append(f"v_mfma_f32_16x16x32_bf16 {c}, {A}, {B}, {c}")
            return L
        def q_mfmas(s):
            if self.cfg.noqread: return
            if kind == 'kv':
                for st in range(4):
                    for i in range(2):
                        c = vr(QACC(i, st), 4)
                        p(f"v_mfma_f32_16x16x32_bf16 {c}, {ar(QF[i],4)}, {ar(xf(s, st),4)}, {c}")
            LA, LB = p.newlabel("L_qm"), p.newlabel("L_qm")
            p("s_cmp_eq_u32 s49, 0"); p(f"s_cbranch_scc0 {LA}")
            for ch in range(2):
                if ch == 1: p.label(LA)
                if kind == 'kv':
                    for k in range(2):
                        c = vr(QXACC(k), 4)
                        p(f"v_mfma_f32_16x16x32_bf16 {c}, {ar(QF[2],4)}, {ar(xf(s, 2*ch + k),4)}, {c}")
                c = vr(GACC, 4)
                p(f"v_mfma_f32_16x16x32_bf16 {c}, {ar(GF,4)}, {ar(xf(s, 2*typ + ch),4)}, {c}")
                if ch == 0: p(f"s_branch {LB}")
            p.label(LB)
        def phase(s, rd, extra=()):
            q_mfmas(s)
            M = base_mfmas(s); other = list(rd) + list(extra)
            k = 0
            for i, m in enumerate(M):
                if not self.cfg.nomfma: p(m)
                for _ in range(2):
                    if k < len(other): p(other[k]); k += 1
            while k < len(other): p(other[k]); k += 1
        for i in range(NACC): p(f"v_mov_b32 v{ACC+i}, 0")
        p("s_mov_b32 s50, 0"); p("s_mov_b32 s51, 10"); p(f"s_mov_b32 s55, {STG}"); p("s_movk_i32 s54, 128")
        p("s_waitcnt lgkmcnt(0)")
        self.stamp(1)
        p("s_barrier")
        p(f"v_mov_b32 v2, {SY}")
        p(f"ds_read_b32 v3, v2 offset:{W_TAG}")
        for r in base_reads(0, 0) + q_reads(0): p(r)
        p("s_waitcnt lgkmcnt(0)")
        p("v_readfirstlane_b32 s30, v3")
        self.stamp(2)
        if self.cfg.span: self.span_mark(2)
        L = f"L_t12_loop_{kind}"
        p.label(L)
        upd = ["s_add_u32 s50, s50, 1", "s_cmp_eq_u32 s50, 3",
               f"s_cselect_b32 s52, {(-2*STG) & 0xffffffff}, s55", "s_cselect_b32 s50, 0, s50"] + \
              [f"v_add_u32 v{r}, s52, v{r}" for r in addr_regs] + \
              ["s_add_u32 s53, s53, 1", "s_cmp_eq_u32 s53, 10", f"s_cselect_b32 s52, {(-1152) & 0xffffffff}, s54", "s_cselect_b32 s53, 0, s53",
               "v_add_u32 v19, s52, v19"]
        phase(0, q_reads(1) + base_reads(1, 1), upd)
        p("s_waitcnt lgkmcnt(0)")
        p("s_barrier")
        tch = ["buffer_load_dword v29, v28, s[64:67], 0 offen", "v_add_u32 v28, s68, v28"] if self.cfg.kt else []
        phase(1, q_reads(0) + base_reads(0, 0), tch)
        p("s_waitcnt lgkmcnt(0)")
        p("s_sub_u32 s51, s51, 1"); p("s_cmp_lg_u32 s51, 0"); p(f"s_cbranch_scc1 {L}")
        self.stamp(3)
        self.stamp2(1)
        if self.cfg.span: self.span_mark(3)
        if self.cfg.t12only:
            for k in range(4, 10): self.stamp(k)
            self.stamp_flush(10)
            p("s_branch L_end")
        p("s_waitcnt vmcnt(0)")
        p("v_lshlrev_b32 v18, 4, v1")
        if kind == 'h':
            self.epilogue_h(acc, last=True)
            self.epilogue_gate(GACC)
        else:
            self.epilogue_kv(acc)
            self.stamp3(6)
            self.epilogue_gate(GACC)
            self.epilogue_q(QACC, QXACC)
            self.stamp3(7)
        p("s_waitcnt vmcnt(0)")
        self.stamp3(8)
        if kind == 'h':
            p("s_lshl_b32 s44, s26, 10"); p("s_lshl_b32 s45, s27, 7"); p("s_add_u32 s44, s44, s45"); p(f"s_add_u32 s44, s44, {F_H}")
        else:
            p("s_lshl_b32 s44, s27, 11"); p("s_lshl_b32 s45, s26, 7"); p("s_add_u32 s44, s44, s45"); p(f"s_add_u32 s44, s44, {F_KV}")
        self.publish_last(W_PUB1, 4, "s44")
        self.stamp3(9)
        self.stamp(4)
        self.stamp2(2)
        if self.cfg.span: self.span_mark(4)

    def epilogue_gate(self, GACC):
        p = self.p
        p(f"s_mov_b32 s58, {LOG2E}")
        p(f"v_mul_f32 v6, s58, v{GACC}")
        p("v_sub_f32 v6, 0, v6")
        p("s_mov_b32 s59, 0x42700000")
        p("v_min_f32 v6, s59, v6")
        p("v_exp_f32 v6, v6")
        p("v_add_f32 v7, 1.0, v6"); p("v_rcp_f32 v7, v7")
        p("s_lshl_b32 s44, s25, 6")
        p("v_and_b32 v5, 15, v1"); p("v_lshlrev_b32 v5, 2, v5"); p("v_add_u32 v5, s44, v5")
        p(f"v_add_u32 v5, {GL}, v5")
        p("ds_write_b32 v5, v7")
        p(f"ds_write_b32 v5, v6 offset:{GR-GL}")
        p("s_waitcnt lgkmcnt(0)")
        self.lds_signal(W_GT)

    def epilogue_q(self, QACC, QXACC):
        p = self.p
        regs = [QACC(i, st) + e for i in range(2) for st in range(4) for e in range(4)] + [QXACC(k) + e for k in range(2) for e in range(4)]
        tmp = [32 + (t*4 + st)*4 + e for t in range(5) for st in (0, 2) for e in range(4)]
        p(f"s_mov_b32 s58, {LOG2E}"); p(f"s_mov_b32 s59, {LOG2E}"); p(f"s_mov_b32 s66, {EPS6}"); p(f"s_mov_b32 s67, {EPS6}")
        n = len(regs)
        for i in range(0, n, 2): p(f"v_pk_mul_f32 v[{tmp[i]}:{tmp[i]+1}], v[{regs[i]}:{regs[i]+1}], s[58:59]")
        for a, t in zip(regs, tmp): p(f"v_exp_f32 v{t}, v{t} clamp")
        for a in regs: p(f"v_max_f32 v{a}, 0, v{a}")
        for i in range(0, n, 2): p(f"v_pk_add_f32 v[{tmp[i]}:{tmp[i]+1}], v[{tmp[i]}:{tmp[i]+1}], s[66:67]")
        for i in range(0, n, 2): p(f"v_pk_add_f32 v[{regs[i]}:{regs[i]+1}], v[{regs[i]}:{regs[i]+1}], v[{tmp[i]}:{tmp[i]+1}]")
        p(f"s_mov_b32 s44, {BQL1}"); p("s_cmp_eq_u32 s48, 0"); p(f"s_cselect_b32 s44, {BQL0}, s44")
        p("s_lshl_b32 s45, s49, 10"); p("s_add_u32 s45, s45, s44")
        p("v_lshlrev_b32 v5, 3, v1"); p("v_add_u32 v6, s45, v5")
        for i in range(2):
            for st in range(4):
                a = QACC(i, st)
                p(f"v_cvt_pk_bf16_f32 v{a}, v{a}, v{a+1}"); p(f"v_cvt_pk_bf16_f32 v{a+1}, v{a+2}, v{a+3}")
                p(f"ds_write_b64 v6, v[{a}:{a+1}] offset:{st*2560 + i*512}")
        p("s_mul_i32 s45, s49, 5120"); p("s_add_u32 s45, s45, s44"); p("v_add_u32 v6, s45, v5")
        for k in range(2):
            a = QXACC(k)
            p(f"v_cvt_pk_bf16_f32 v{a}, v{a}, v{a+1}"); p(f"v_cvt_pk_bf16_f32 v{a+1}, v{a+2}, v{a+3}")
            p(f"ds_write_b64 v6, v[{a}:{a+1}] offset:{k*2560 + 2048}")
        p("s_waitcnt lgkmcnt(0)")
        self.lds_signal(W_BQ)

    def epilogue_h(self, acc, last):
        p = self.p
        p(f"""
        s_lshl_b32 s44, s26, 3
        s_lshl_b32 s45, s48, 2
        s_add_u32 s44, s44, s45
        s_mul_i32 s44, s44, {AP_ST}
        s_mul_i32 s45, s27, 6
        s_mul_i32 s46, s49, 3
        s_add_u32 s45, s45, s46
        s_lshl_b32 s45, s45, 10
        s_add_u32 s44, s44, s45
        s_add_u32 s44, s44, {WS_AP}
        v_add_u32 v5, s44, v18
        """)
        self.read_loc()
        for st in range(4):
            for pp in range(3):
                a0, a1 = acc(2*pp, st), acc(2*pp+1, st)
                p(f"v_cvt_pk_bf16_f32 v{a0}, v{a0}, v{a0+1}")
                p(f"v_cvt_pk_bf16_f32 v{a0+1}, v{a0+2}, v{a0+3}")
                p(f"v_cvt_pk_bf16_f32 v{a0+2}, v{a1}, v{a1+1}")
                p(f"v_cvt_pk_bf16_f32 v{a0+3}, v{a1+2}, v{a1+3}")
                for i in range(4): p(f"v_pk_max_i16 v{a0+i}, v{a0+i}, 0")
        for st in range(1, 4): p(f"v_add_u32 v{7+st}, {AP_ST*st}, v5")
        p("v_mov_b32 v7, v5")
        def stores(sc):
            for st in range(4):
                for pp in range(3):
                    a0 = acc(2*pp, st)
                    p(f"buffer_store_dwordx4 v[{a0}:{a0+3}], v{7+st}, s[40:43], 0 offen offset:{pp*1024}{sc}")
        self.dual(stores)

    def epilogue_kv(self, acc):
        p = self.p
        K0, K1, V0, V1, X = range(5)
        p(f"s_mov_b32 s53, {LOG2E}"); p(f"s_mov_b32 s54, {EPS6}")
        p("v_lshrrev_b32 v2, 4, v1"); p("v_and_b32 v3, 15, v1")
        p("v_lshrrev_b32 v4, 3, v3"); p("v_cmp_eq_u32 s[56:57], s49, v4")
        p("v_lshrrev_b32 v7, 1, v2"); p("v_cmp_eq_u32 s[58:59], s49, v7")
        T0 = 20
        p(f"s_mov_b32 s52, {LOG2E}"); p(f"s_mov_b32 s66, {EPS6}"); p(f"s_mov_b32 s67, {EPS6}")
        def phi_group(regs, tm, dst=None):
            n = len(regs); dst = dst or regs
            for i in range(0, n, 2): p(f"v_pk_mul_f32 v[{tm+i}:{tm+i+1}], v[{regs[i]}:{regs[i]+1}], s[52:53]")
            for i in range(n): p(f"v_exp_f32 v{tm+i}, v{tm+i} clamp")
            for i in range(n): p(f"v_max_f32 v{dst[i]}, 0, v{regs[i]}")
            for i in range(0, n, 2): p(f"v_pk_add_f32 v[{tm+i}:{tm+i+1}], v[{tm+i}:{tm+i+1}], s[66:67]")
            for i in range(0, n, 2): p(f"v_pk_add_f32 v[{dst[i]}:{dst[i]+1}], v[{dst[i]}:{dst[i]+1}], v[{tm+i}:{tm+i+1}]")
        for st in range(4):
            phi_group([acc(K0, st)+i for i in range(4)] + [acc(K1, st)+i for i in range(4)], T0)
            a = acc(X, st)
            phi_group([a+i for i in range(4)], T0, dst=[T0+4+i for i in range(4)])
            for i in range(4): p(f"v_cndmask_b32 v{a+i}, v{a+i}, v{T0+4+i}, s[56:57]")
        self.stamp3(2)
        for t in (K0, K1, V0, V1, X):
            for kk in range(2):
                a, b = acc(t, 2*kk), acc(t, 2*kk+1)
                p(f"v_cvt_pk_bf16_f32 v{a}, v{a}, v{a+1}")
                p(f"v_cvt_pk_bf16_f32 v{a+1}, v{a+2}, v{a+3}")
                p(f"v_cvt_pk_bf16_f32 v{a+2}, v{b}, v{b+1}")
                p(f"v_cvt_pk_bf16_f32 v{a+3}, v{b+2}, v{b+3}")
        fr = lambda t, kk: vr(acc(t, 2*kk), 4)
        free = [acc(t, s) for t in (K0, K1, V0, V1, X) for s in (1, 3)]
        KV0, KV1, KX0, KX1, XV0, XV1, XX, Z0, Z1, ZX = free
        ONES = T0
        for i in range(4): p(f"v_mov_b32 v{ONES+i}, 0x3f803f80")
        ones = vr(ONES, 4)
        for kk in range(2):
            for (d, A, B) in ((KV0, fr(K0,kk), fr(V0,kk)), (KV1, fr(K1,kk), fr(V1,kk)), (KX0, fr(K0,kk), fr(X,kk)),
                              (KX1, fr(K1,kk), fr(X,kk)), (XV0, fr(X,kk), fr(V0,kk)), (XV1, fr(X,kk), fr(V1,kk)),
                              (XX, fr(X,kk), fr(X,kk)), (Z0, fr(K0,kk), ones), (Z1, fr(K1,kk), ones), (ZX, fr(X,kk), ones)):
                c = "0" if kk == 0 else vr(d, 4)
                p(f"v_mfma_f32_16x16x32_bf16 {vr(d,4)}, {A}, {B}, {c}")
        p("v_bfe_u32 v4, v3, 2, 1"); p("v_cmp_eq_u32 s[60:61], 1, v4")
        p("v_and_b32 v4, 1, v2"); p("v_cmp_eq_u32 s[62:63], 1, v4")
        p("v_and_b32 v4, 1, v3"); p("v_cmp_eq_u32 s[64:65], 1, v4")
        for i in range(4): p(f"v_cndmask_b32 v{KX0+i}, v{KX0+i}, v{KX1+i}, s[60:61]")
        for i in range(4): p(f"v_cndmask_b32 v{XV0+i}, v{XV0+i}, v{XV1+i}, s[62:63]")
        for i in range(4): p(f"v_cndmask_b32 v{Z0+i}, v{Z0+i}, v{Z1+i}, s[64:65]")
        p("s_lshl_b32 s44, s49, 2"); p("v_lshrrev_b32 v4, 1, v3"); p("v_cmp_eq_u32 s[60:61], s44, v4")
        p("s_lshl_b32 s44, s49, 3"); p("s_add_u32 s44, s44, 4"); p("v_cmp_eq_u32 s[62:63], s44, v3")
        for i in range(4): p(f"v_cndmask_b32 v{XX+i}, v{XX+i}, v{Z0+i}, s[60:61]")
        for i in range(4): p(f"v_cndmask_b32 v{XX+i}, v{XX+i}, v{ZX+i}, s[62:63]")
        self.stamp3(3)
        tiles = [KV0, KV1, KX0, XV0, XX]
        p("s_mul_i32 s44, s49, 5120"); p(f"s_add_u32 s44, s44, {KVRED}")
        p("v_add_u32 v4, s44, v18")
        R0 = p.newlabel("L_kr")
        p("s_cmp_eq_u32 s48, 0"); p(f"s_cbranch_scc1 {R0}")
        for j, t in enumerate(tiles): p(f"ds_write_b128 v4, {vr(t,4)} offset:{j*1024}")
        p.label(R0)
        self.cbar(vtmp=(5, 6))
        self.stamp3(4)
        TMs = [acc(t, 0) for t in range(5)]
        for j in range(5): p(f"ds_read_b128 {vr(TMs[j],4)}, v4 offset:{j*1024}")
        p("s_waitcnt lgkmcnt(0)")
        for j, t in enumerate(tiles):
            m = TMs[j]
            p(f"v_pk_add_f32 v[{t}:{t+1}], v[{t}:{t+1}], v[{m}:{m+1}]")
            p(f"v_pk_add_f32 v[{t+2}:{t+3}], v[{t+2}:{t+3}], v[{m+2}:{m+3}]")
        for i in range(4): p(f"v_cndmask_b32 v{KX0+i}, v{KX0+i}, 0, s[56:57]")
        for i in range(4): p(f"v_cndmask_b32 v{XV0+i}, 0, v{XV0+i}, s[58:59]")
        self.lds_wait(W_ZOK, 2, vtmp=(5, 6))
        self.stamp3(5)
        p(f"""
        s_lshl_b32 s44, s27, 13
        s_add_u32 s44, s44, {WS_KVS}
        s_cmp_eq_u32 s48, 0
        s_cselect_b32 s44, s44, {OOB}
        v_lshlrev_b32 v4, 2, v1
        v_add_u32 v4, s44, v4
        s_lshl_b32 s45, s49, 11
        v_add_u32 v5, s45, v4
        v_add_u32 v6, 4096, v4
        s_lshl_b32 s45, s49, 10
        v_add_u32 v7, s45, v4
        v_add_u32 v7, 6144, v7
        """)
        for (t, a, off) in ((KV0, "v5", 0), (KV1, "v5", 1024), (KX0, "v6", 0), (XV0, "v6", 1024), (XX, "v7", 0)):
            for e in range(4):
                p(f"buffer_atomic_add_f32 v{t+e}, {a}, s[40:43], 0 offen offset:{off + 256*e}")

    def t4(self):
        p = self.p
        ACC = 32
        acc = lambda sg, t: ACC + (sg*5 + t)*4
        def frag(setn, f):
            idx = setn*9 + f
            return ar(idx*4, 4) if idx < 24 else vr(112 + (idx-24)*4, 4)
        AF = lambda j, t: frag(j % PD, 4 + t)
        BF = lambda j, sg: frag(j % PD, sg)
        VB = 8; VA, VA2 = 6, 7
        def stile(sg, out):
            p(f"s_add_u32 s44, s25, {sg}"); p("s_and_b32 s44, s44, 3")
            p("s_lshr_b32 s45, s44, 1"); p("s_lshl_b32 s45, s45, 2"); p("s_and_b32 s46, s44, 1"); p("s_add_u32 s45, s45, s46")
            p("s_lshl_b32 s46, s28, 1"); p("s_add_u32 s45, s45, s46"); p("s_lshl_b32 s46, s26, 3"); p(f"s_add_u32 {out}, s45, s46")
        for sg in range(4):
            stile(sg, "s47")
            if sg == 0: p("s_mov_b32 s71, s47")
            p(f"s_mul_i32 s47, s47, {AP_ST}"); p(f"s_add_u32 s47, s47, {WS_AP}")
            p(f"v_add_u32 v{VB+sg}, s47, v18")
        p(f"s_mul_i32 s44, s27, {WP_CG}"); p(f"s_add_u32 s44, s44, {WS_WP}")
        p(f"v_add_u32 v{VA}, s44, v18"); p(f"v_add_u32 v{VA2}, 4096, v{VA}")
        p("s_mul_i32 s52, s25, 12"); p("s_mul_i32 s53, s25, 5"); p("s_add_u32 s53, s53, 48")
        self.t4_rot()
        def ks_next(j):
            if j < 12:
                p("s_add_u32 s54, s52, s56")
                p("s_add_u32 s56, s56, 1"); p("s_cmp_eq_u32 s56, 12"); p("s_cselect_b32 s56, 0, s56")
            else:
                p("s_add_u32 s54, s53, s57")
                p("s_add_u32 s57, s57, 1"); p("s_cmp_eq_u32 s57, 5"); p("s_cselect_b32 s57, 0, s57")
            p(f"s_lshl_b32 s{62 + (j % PD)}, s54, 10")
            p("s_mul_i32 s55, s54, 5120")
        def loadA(j):
            for t in range(4): p(f"buffer_load_dwordx4 {AF(j,t)}, v{VA}, s[40:43], s55 offen offset:{t*1024} sc1")
            p(f"buffer_load_dwordx4 {AF(j,4)}, v{VA2}, s[40:43], s55 offen sc1")
        def loadB(j):
            for sg in range(4):
                p(f"buffer_load_dwordx4 {BF(j, sg)}, v{VB+sg}, s[40:43], s{62 + (j % PD)} offen sc1")
        q = []
        def wait_for(tag):
            tags = [t for t, _ in q]
            if tag not in tags: return
            idx = tags.index(tag)
            p(f"s_waitcnt vmcnt({sum(k for _, k in q[idx+1:])})")
            del q[:idx+1]
        self.lds_wait(W_GT, 4)
        p("v_and_b32 v5, 15, v1"); p("v_lshlrev_b32 v5, 2, v5")
        for sg in range(4):
            p(f"s_add_u32 s44, s25, {sg}"); p("s_and_b32 s44, s44, 3"); p("s_lshl_b32 s44, s44, 6"); p(f"s_add_u32 s44, s44, {GL}")
            p("v_add_u32 v16, s44, v5")
            p(f"ds_read_b32 v{12+sg}, v16 offset:{GR-GL}")
            if sg == 0: p("ds_read_b32 v19, v16")
        self.lds_wait(W_JOK, 3)
        for j in range(PD):
            ks_next(j); loadA(j); q.append((f"A{j}", 5))
        self.lds_wait(W_HR, 1)
        self.stamp2(3)
        for j in range(PD):
            loadB(j); q.append((f"B{j}", 4))
        self.stamp(5)
        self.stamp2(4)
        NS = 17
        self.stamp(6)
        for j in range(NS):
            nxt = j + PD
            wait_for(f"A{j}"); wait_for(f"B{j}")
            if j == 1: self.stamp(7); self.stamp2(5)
            if j == 12:
                self.stamp(8)
                for sg in range(4):
                    for t in range(5):
                        for i in range(4): p(f"v_mul_f32 v{acc(sg,t)+i}, v{acc(sg,t)+i}, v{12+sg}")
            for sg in range(4):
                for t in range(5):
                    c = vr(acc(sg, t), 4)
                    p(f"v_mfma_f32_16x16x32_bf16 {c}, {AF(j,t)}, {BF(j,sg)}, {'0' if j == 0 else c}")
            if nxt < NS:
                ks_next(nxt); loadA(nxt); q.append((f"A{nxt}", 5))
                if nxt < 12 or nxt > 11 + PD:
                    loadB(nxt); q.append((f"B{nxt}", 4))
            if j == 11:
                if self.cfg.span: self.span_mark(5)
                self.stamp2(6); self.lds_wait(W_OR, 1); self.stamp2(7)
                if self.cfg.span: self.span_mark(6)
                for jj in range(12, min(NS, 12 + PD)):
                    loadB(jj); q.append((f"B{jj}", 4))
        self.stamp2(8)
        for sg in range(1, 4):
            p(f"s_add_u32 s44, s25, {sg}"); p("s_and_b32 s44, s44, 3"); p("s_mul_i32 s44, s44, 3"); p(f"s_add_u32 s44, s44, {sg-1}")
            p("s_mul_i32 s45, s44, 5120")
            p("v_add_u32 v5, s45, v18")
            for t in range(5): p(f"ds_write_b128 v5, {vr(acc(sg,t),4)} offset:{t*1024}")
        self.cbar()
        p("s_mul_i32 s45, s25, 15360")
        p("v_add_u32 v5, s45, v18")
        for k in range(3):
            for t in range(5): p(f"ds_read_b128 {vr(acc(1+k,t),4)}, v5 offset:{k*5120+t*1024}")
        p("s_waitcnt lgkmcnt(0)")
        for k in range(3):
            for t in range(5):
                a, b = acc(0, t), acc(1+k, t)
                p(f"v_pk_add_f32 v[{a}:{a+1}], v[{a}:{a+1}], v[{b}:{b+1}]")
                p(f"v_pk_add_f32 v[{a+2}:{a+3}], v[{a+2}:{a+3}], v[{b+2}:{b+3}]")
        O = 112
        for t in range(5):
            for i in range(4): p(f"v_mul_f32 v{acc(0,t)+i}, v{acc(0,t)+i}, v19")
        for t in range(5):
            a = acc(0, t)
            p(f"v_cvt_pk_bf16_f32 v{O+2*t}, v{a}, v{a+1}")
            p(f"v_cvt_pk_bf16_f32 v{O+2*t+1}, v{a+2}, v{a+3}")
        p("""
        s_mov_b32 s32, s18
        s_mov_b32 s33, s19
        s_mov_b32 s34, 2621440
        s_mov_b32 s35, 0x20000
        v_lshrrev_b32 v2, 4, v1
        v_and_b32 v3, 15, v1
        s_lshl_b32 s44, s71, 4
        v_add_u32 v3, s44, v3
        v_mul_u32_u24 v3, 1280, v3
        v_mul_u32_u24 v2, 40, v2
        s_mul_i32 s44, s27, 160
        v_add3_u32 v3, v3, v2, s44
        """)
        p(f"buffer_store_dwordx4 v[{O}:{O+3}], v3, s[32:35], 0 offen")
        p(f"buffer_store_dwordx4 v[{O+4}:{O+7}], v3, s[32:35], 0 offen offset:16")
        p(f"buffer_store_dwordx2 v[{O+8}:{O+9}], v3, s[32:35], 0 offen offset:32")
        self.stamp(9)
        self.stamp2(9)
        self.stamp_flush(10)
        if self.cfg.span:
            self.span_mark(1)

    def span_mark(self, word):
        p = self.p
        D = p.newlabel("L_sm")
        p("s_and_b32 s44, s2, 0xf7"); p("s_cmp_eq_u32 s44, 0x21"); p(f"s_cbranch_scc0 {D}")
        p("s_cmp_eq_u32 s24, 0"); p(f"s_cbranch_scc0 {D}")
        p("s_memrealtime s[44:45]"); p("s_waitcnt lgkmcnt(0)")
        p("s_sub_u32 s44, s44, s30")
        p("s_mov_b32 s96, s20"); p("s_mov_b32 s97, s21"); p("s_movk_i32 s98, 256"); p("s_mov_b32 s99, 0x20000")
        p("s_lshl_b32 s45, s28, 5"); p(f"s_add_u32 s45, s45, {4*word}")
        p("v_mov_b32 v2, s44"); p("v_mov_b32 v3, s45")
        p("s_mov_b64 exec, 1")
        p("buffer_store_dword v2, v3, s[96:99], 0 offen sc1")
        p("s_mov_b64 exec, -1")
        p.label(D)

def kd(name, vgpr, accum, sgpr=102):
    return f""".amdhsa_kernel {name}
  .amdhsa_next_free_vgpr {vgpr}
  .amdhsa_next_free_sgpr {sgpr}
  .amdhsa_accum_offset {accum}
  .amdhsa_group_segment_fixed_size 0
  .amdhsa_kernarg_size 80
  .amdhsa_user_sgpr_count 2
  .amdhsa_user_sgpr_kernarg_segment_ptr 1
  .amdhsa_system_sgpr_workgroup_id_x 1
.end_amdhsa_kernel
"""

def head_comment():
    f = "cdna_kernels/" + NAME + ".s.ref"
    return open(f).read().split("; Override launch")[0] if os.path.exists(f) else ""

def build(cfg):
    g = Gen(cfg); g.emit()
    body = g.p.text(verbose=True)
    hdr = head_comment() + f"""; @launch grid=(256,1,1) block=(512,1,1) lds={LDS_BYTES}
.amdgcn_target "amdgcn-amd-amdhsa--gfx950"
.text
.globl {KNAME}
.p2align 8
.type {KNAME},@function
{KNAME}:
"""
    body = body.replace("CODE_BYTES_M", f".Lcode_end-{KNAME}-512")
    tail = ".Lcode_end:\n"
    return hdr + body + tail + '.section .rodata,"a"\n.p2align 6\n' + kd(KNAME, 256, 160)

if __name__ == "__main__":
    cfg = Cfg()
    cfg.stamps = "stamps" in sys.argv
    cfg.dbg2 = "dbg2" in sys.argv
    cfg.rot = "norot" not in sys.argv
    cfg.local = "nolocal" not in sys.argv
    cfg.t12only = "t12only" in sys.argv
    cfg.map81 = "map81" in sys.argv
    cfg.spoll = "vpoll" not in sys.argv
    cfg.kv1 = "kv1" in sys.argv
    for a in sys.argv:
        if a.startswith("kt="): cfg.kt = int(a[3:])
    cfg.hst = "hst" in sys.argv
    if cfg.hst: cfg.dbg2 = True; cfg.dbg3 = True
    cfg.dbg3 = "dbg3" in sys.argv
    if cfg.dbg3: cfg.dbg2 = True
    for a in sys.argv:
        if a.startswith("j="): cfg.jl, cfg.jp, cfg.jf = [int(x) for x in a[2:].split(",")]
    for a in sys.argv:
        if a.startswith("rtab="): cfg.rtab = [int(c, 16) for c in a[5:]]
    cfg.span = "span" in sys.argv
    cfg.noqdma = "noqdma" in sys.argv
    cfg.noqread = "noqread" in sys.argv
    cfg.nomfma = "nomfma" in sys.argv
    cfg.stouch = "stouch" in sys.argv
    for a in sys.argv:
        if a.startswith("wpre="): cfg.wpre = tuple(int(x) for x in a[5:].split(","))
    cfg.w45late = "w45early" not in sys.argv
    for a in sys.argv:
        if a.startswith("or="): cfg.orstep = int(a[3:])
    cfg.early_s1 = "es1" in sys.argv
    if not cfg.map81: cfg.local = False
    out = [a for a in sys.argv[1:] if a.endswith(".s")]
    open(out[0] if out else "x6.s", "w").write(build(cfg))
```

```python
import sys, os
from asmlib import *

NAME = "gated_mix__linear_attn_block__dense_activation_relu__prompt"
KNAME = NAME + "_kernel"

AP_ST = 68 * 1024
WS_AP = 0
WS_WP = 9 << 20
WP_CG = 68 * 5 * 1024
WS_KVP = 13 << 20
WS_KVS = 14 << 20
WS_F = 15 << 20
F_H = WS_F
F_KV = WS_F + 16384
F_O = WS_F + 32768
F_X = WS_F + 65536
F_KS = WS_F + 73728
F_J = WS_F + 98304
WS_TS = 16 << 20
WS_SIZE = 17 << 20
OOB = 0x80000000

STG = 51200
SEG = 10256
QOFF = 40960
WBASE = [51200, 71680, 102400, 122880, 0, 20480]
KVRED = 92160
BQL0, BQL1 = 40960, 143360
KVT = 153600
GW = 159744
GL = 161024
GR = 161280
SY = 161536
LDS_BYTES = 161792
W_TAG, W_KVR, W_HR, W_OR, W_PUB1, W_BQ, W_PUB2, W_KVF, W_LOC, W_P01, W_P23, W_GT, W_KF1, W_ZOK, W_JOK, W_PUB3 = [4*i for i in range(16)]
W_CB = 64
LOG2E = 0x3fb8aa3b
EPS6 = 0x358637bd
POLL_MAX = 1 << 15
PD = 3
for _a in sys.argv:
    if _a.startswith('pd='): PD = int(_a[3:])
JSCR = 51200

class Cfg:
    stamps = False
    dbg2 = False
    rot = True
    local = True
    t12only = False
    map81 = False
    spoll = True
    kv1 = False
    prio = True
    prio0 = 0
    kt = 0
    hst = False
    dbg3 = False
    jl = 1
    jp = 4
    jf = 7
    rtab = None
    span = False
    noqdma = False
    noqread = False
    nomfma = False
    stouch = False
    wpre = (7, 8)
    w45late = True
    orstep = 11
    early_s1 = False

class Gen:
    def __init__(self, cfg):
        self.p = Prog(); self.cfg = cfg; self.ncb = 0
    def stamp(self, idx):
        if self.cfg.stamps and (idx == 0 or not self.cfg.dbg2): self.p(f"s_memtime s[{80+2*idx}:{81+2*idx}]")
    def stamp2(self, idx):
        if self.cfg.stamps and self.cfg.dbg2 and not (self.cfg.dbg3 and idx >= 2) and not self.cfg.hst: self.p(f"s_memtime s[{80+2*idx}:{81+2*idx}]")
    def stamp3(self, idx):
        if self.cfg.stamps and self.cfg.dbg3 and not self.cfg.hst: self.p(f"s_memtime s[{80+2*idx}:{81+2*idx}]")
    def stamp_flush(self, n):
        if not self.cfg.stamps: return
        p = self.p
        p("s_waitcnt lgkmcnt(0)")
        p("s_memrealtime s[78:79]")
        p("s_lshl_b32 s100, s2, 3"); p("s_add_u32 s100, s100, s24")
        p("s_lshl_b32 s100, s100, 7")
        p(f"s_add_u32 s100, s100, {WS_TS}")
        p("v_mov_b32 v4, s100")
        p("s_waitcnt lgkmcnt(0)")
        p("s_mov_b64 exec, 1")
        regs = [80 + 2*i for i in range(n)]
        for i, r in enumerate(regs + [76, 78]):
            off = 8*i if i < n else (112 + 8*(i-n))
            p(f"v_mov_b32 v2, s{r}"); p(f"v_mov_b32 v3, s{r+1}")
            p(f"buffer_store_dwordx2 v[2:3], v4, s[40:43], 0 offen offset:{off}")
            p("s_nop 1")
        p("s_mov_b64 exec, -1")
    def lds_signal(self, word, vtmp=(2, 3)):
        p = self.p; a, b = vtmp
        p(f"v_mov_b32 v{a}, {SY}"); p(f"v_mov_b32 v{b}, 1")
        p("s_mov_b64 exec, 1")
        p(f"ds_add_u32 v{a}, v{b} offset:{word}")
        p("s_mov_b64 exec, -1")
    def lds_wait(self, word, target, vtmp=(2, 3), sleep=False):
        p = self.p; a, b = vtmp
        L = p.newlabel("L_lw"); D = p.newlabel("L_lwd")
        p(f"v_mov_b32 v{a}, {SY}")
        p(f"s_mov_b32 s47, {POLL_MAX*32}")
        p.label(L)
        p(f"ds_read_b32 v{b}, v{a} offset:{word}")
        p("s_waitcnt lgkmcnt(0)")
        p(f"v_readfirstlane_b32 s46, v{b}")
        p(f"s_cmp_ge_u32 s46, {target}")
        p(f"s_cbranch_scc1 {D}")
        if sleep: p("s_sleep 1")
        p("s_sub_u32 s47, s47, 1")
        p("s_cmp_lg_u32 s47, 0")
        p(f"s_cbranch_scc1 {L}")
        p.label(D)
    def cbar(self, vtmp=(2, 3)):
        w = W_CB + 4 * self.ncb; self.ncb += 1
        assert w < 256
        self.p("s_waitcnt lgkmcnt(0)")
        self.lds_signal(w, vtmp)
        self.lds_wait(w, 4, vtmp)
    def poll_flags(self, addr_s, nwords, vt=(2, 3)):
        p = self.p; a, b = vt
        L = p.newlabel("L_pf"); D = p.newlabel("L_pfd")
        if self.cfg.spoll:
            p(f"s_add_u32 s4, s22, {addr_s}"); p("s_addc_u32 s5, s23, 0")
            p(f"s_mov_b32 s47, {POLL_MAX}")
            p.label(L)
            p("s_mov_b32 s46, 0")
            for base in range(0, nwords, 8):
                m = min(8, nwords - base)
                for i in range(m): p(f"s_load_dword s{8+i}, s[4:5], {(base+i)*128} glc")
                p("s_waitcnt lgkmcnt(0)")
                for i in range(m):
                    p(f"s_xor_b32 s{8+i}, s{8+i}, s30"); p(f"s_or_b32 s46, s46, s{8+i}")
            p("s_cmp_eq_u32 s46, 0")
            p(f"s_cbranch_scc1 {D}")
            p("s_sleep 1")
            p("s_sub_u32 s47, s47, 1")
            p("s_cmp_lg_u32 s47, 0")
            p(f"s_cbranch_scc1 {L}")
            p.label(D)
            return
        p(f"v_min_u32 v{a}, {nwords-1}, v1")
        p(f"v_lshlrev_b32 v{a}, 7, v{a}")
        p(f"v_add_u32 v{a}, {addr_s}, v{a}")
        p(f"s_mov_b32 s47, {POLL_MAX}")
        p.label(L)
        p(f"buffer_load_dword v{b}, v{a}, s[40:43], 0 offen sc1")
        p("s_waitcnt vmcnt(0)")
        p(f"v_cmp_eq_u32 vcc, s30, v{b}")
        p("s_nop 1")
        p("s_cmp_eq_u64 vcc, -1")
        p(f"s_cbranch_scc1 {D}")
        p("s_sleep 2")
        p("s_sub_u32 s47, s47, 1")
        p("s_cmp_lg_u32 s47, 0")
        p(f"s_cbranch_scc1 {L}")
        p.label(D)
    def poll_flags_safe(self, addr_s, nwords):
        p = self.p
        L = p.newlabel("L_pf"); D = p.newlabel("L_pfd")
        p(f"s_add_u32 s100, s22, {addr_s}"); p("s_addc_u32 s101, s23, 0")
        p(f"s_mov_b32 s47, {POLL_MAX}")
        p.label(L)
        p("s_mov_b32 s46, 0")
        for half in range(2):
            for i in range(4): p(f"s_load_dword s{76+i}, s[100:101], {(4*half+i)*128} glc")
            p("s_waitcnt lgkmcnt(0)")
            for i in range(4):
                p(f"s_xor_b32 s{76+i}, s{76+i}, s30"); p(f"s_or_b32 s46, s46, s{76+i}")
        p("s_cmp_eq_u32 s46, 0")
        p(f"s_cbranch_scc1 {D}")
        p("s_sleep 1")
        p("s_sub_u32 s47, s47, 1")
        p("s_cmp_lg_u32 s47, 0")
        p(f"s_cbranch_scc1 {L}")
        p.label(D)
    def dual(self, emit):
        p = self.p
        if not self.cfg.local:
            emit(" sc1"); return
        A, B = p.newlabel("L_du"), p.newlabel("L_du")
        p("s_cmp_eq_u32 s72, 1"); p(f"s_cbranch_scc1 {A}")
        emit(" sc1")
        p(f"s_branch {B}")
        p.label(A)
        emit("")
        p.label(B)
    def flag_store(self, addr_s, vt=(2, 3), dual=False):
        p = self.p; a, b = vt
        p(f"v_mov_b32 v{a}, {addr_s}"); p(f"v_mov_b32 v{b}, s30")
        p("s_mov_b64 exec, 1")
        if dual: self.dual(lambda sc: p(f"buffer_store_dword v{b}, v{a}, s[40:43], 0 offen{sc}"))
        else: p(f"buffer_store_dword v{b}, v{a}, s[40:43], 0 offen sc1")
        p("s_mov_b64 exec, -1")
    def publish_last(self, word, target, addr_s, vt=(2, 3), dual=False):
        p = self.p; a, b = vt
        p(f"v_mov_b32 v{a}, {SY}"); p(f"v_mov_b32 v{b}, 1")
        p("s_mov_b64 exec, 1")
        p(f"ds_add_rtn_u32 v{b}, v{a}, v{b} offset:{word}")
        p("s_mov_b64 exec, -1")
        p("s_waitcnt lgkmcnt(0)")
        p(f"v_readfirstlane_b32 s46, v{b}")
        p(f"s_cmp_eq_u32 s46, {target-1}")
        p(f"s_cselect_b32 s47, {addr_s}, {OOB}")
        self.flag_store("s47", vt, dual)
    def read_loc(self, vt=(2, 3)):
        p = self.p; a, b = vt
        p(f"v_mov_b32 v{a}, {SY}"); p(f"ds_read_b32 v{b}, v{a} offset:{W_LOC}"); p("s_waitcnt lgkmcnt(0)")
        p(f"v_readfirstlane_b32 s72, v{b}")
    def rot10(self, dst):
        p = self.p
        if not self.cfg.rot or self.cfg.kt:
            p(f"s_mov_b32 {dst}, 0"); return
        if self.cfg.rtab is not None:
            t = self.cfg.rtab
            w = [sum(t[8*k + i] << (4*i) for i in range(8)) for k in range(4)]
            p(f"s_mov_b32 {dst}, {hex(w[0])}")
            for k in range(1, 4):
                p(f"s_lshr_b32 s45, s31, 3"); p(f"s_cmp_eq_u32 s45, {k}"); p(f"s_cselect_b32 {dst}, {hex(w[k])}, {dst}")
            p("s_and_b32 s45, s31, 7"); p("s_lshl_b32 s45, s45, 2"); p(f"s_lshr_b32 {dst}, {dst}, s45"); p(f"s_and_b32 {dst}, {dst}, 15")
        elif self.cfg.map81:
            p(f"""
            s_and_b32 s45, s26, 1
            s_mul_i32 s45, s45, 5
            s_add_u32 {dst}, s27, s45
            s_add_u32 {dst}, {dst}, s73
            s_cmp_ge_u32 {dst}, 10
            s_cselect_b32 s45, 10, 0
            s_sub_u32 {dst}, {dst}, s45
            s_cmp_ge_u32 {dst}, 10
            s_cselect_b32 s45, 10, 0
            s_sub_u32 {dst}, {dst}, s45
            """)
        else:
            p(f"""
            s_and_b32 s45, s27, 3
            s_lshl_b32 s45, s45, 1
            s_add_u32 {dst}, s45, s28
            s_and_b32 s45, s26, 3
            s_mul_i32 s45, s45, 3
            s_add_u32 {dst}, {dst}, s45
            s_cmp_ge_u32 {dst}, 10
            s_cselect_b32 s45, 10, 0
            s_sub_u32 {dst}, {dst}, s45
            """)
    def wpattern(self, dst, kind, stride, tmp=(2, 3, 4, 5, 6), out=None):
        L = []
        e = L.append
        a, b, c, d, f = tmp
        for u in range(5):
            e(f"v_add_u32 v{a}, {64*u}, v1")
            e(f"v_mul_u32_u24 v{b}, 6554, v{a}")
            e(f"v_lshrrev_b32 v{b}, 16, v{b}")
            e(f"v_mul_u32_u24 v{c}, 10, v{b}")
            e(f"v_sub_u32 v{c}, v{a}, v{c}")
            if kind == 'B':
                e(f"v_lshrrev_b32 v{d}, 4, v{b}"); e(f"v_mul_u32_u24 v{d}, 20, v{d}")
                e(f"v_and_b32 v{b}, 15, v{b}"); e(f"v_add_u32 v{b}, v{b}, v{d}")
            elif kind == 'C':
                e(f"v_lshrrev_b32 v{d}, 4, v{b}"); e(f"v_lshlrev_b32 v{d}, 2, v{d}")
                e(f"v_bfe_u32 v{f}, v{b}, 2, 2"); e(f"v_add_u32 v{f}, 2, v{f}"); e(f"v_and_b32 v{f}, 3, v{f}")
                e(f"v_add_u32 v{d}, v{d}, v{f}"); e(f"v_mul_u32_u24 v{d}, 20, v{d}")
                e(f"v_and_b32 v{b}, 3, v{b}"); e(f"v_add3_u32 v{b}, v{b}, v{d}, 16")
            e(f"v_mul_u32_u24 v{b}, {stride}, v{b}")
            e(f"v_lshl_add_u32 v{b}, v{c}, 4, v{b}")
            if 0 < u < 4: e(f"v_subrev_u32 v{dst+u}, {1024*u}, v{b}")
            else: e(f"v_mov_b32 v{dst+u}, v{b}")
        if out is not None: out += L
        else:
            for x in L: self.p(x)
    def wdma(self, pat, srd, soff, m0_s):
        p = self.p
        p(f"s_mov_b32 m0, {m0_s}")
        for u in range(4):
            p(f"buffer_load_dwordx4 v{pat+u}, {srd}, {soff} offen offset:{1024*u} lds")
        p(f"s_add_u32 m0, {m0_s}, 4096")
        p(f"buffer_load_dwordx4 v{pat+4}, {srd}, {soff} offen lds")
    def t4_rot(self, rb="s56", ro="s57"):
        p = self.p
        if self.cfg.rot and not self.cfg.map81:
            p("s_and_b32 s44, s29, 7"); p("s_and_b32 s45, s27, 3")
            p("s_mul_i32 s46, s45, 3"); p(f"s_add_u32 {rb}, s44, s46")
            p(f"s_cmp_ge_u32 {rb}, 12"); p("s_cselect_b32 s46, 12, 0"); p(f"s_sub_u32 {rb}, {rb}, s46")
            p(f"s_add_u32 {ro}, s44, s45")
            p(f"s_cmp_ge_u32 {ro}, 10"); p("s_cselect_b32 s46, 10, 0"); p(f"s_sub_u32 {ro}, {ro}, s46")
            p(f"s_cmp_ge_u32 {ro}, 5"); p("s_cselect_b32 s46, 5, 0"); p(f"s_sub_u32 {ro}, {ro}, s46")
        elif self.cfg.rot:
            p("s_and_b32 s44, s29, 3"); p("s_mul_i32 s45, s44, 3"); p(f"s_add_u32 {rb}, s45, s73")
            p(f"s_cmp_ge_u32 {rb}, 12"); p("s_cselect_b32 s46, 12, 0"); p(f"s_sub_u32 {rb}, {rb}, s46")
            p(f"s_add_u32 {ro}, s44, s73")
            p(f"s_cmp_ge_u32 {ro}, 10"); p("s_cselect_b32 s46, 10, 0"); p(f"s_sub_u32 {ro}, {ro}, s46")
            p(f"s_cmp_ge_u32 {ro}, 5"); p("s_cselect_b32 s46, 5, 0"); p(f"s_sub_u32 {ro}, {ro}, s46")
        else:
            p(f"s_mov_b32 {rb}, 0"); p(f"s_mov_b32 {ro}, 0")

    def emit(self):
        p = self.p; cfg = self.cfg
        if cfg.stamps: p("s_memrealtime s[76:77]")
        if cfg.map81:
            MAP = """s_and_b32 s73, s2, 7
        s_lshr_b32 s31, s2, 3
        s_and_b32 s44, s31, 1
        s_lshl_b32 s26, s73, 1
        s_add_u32 s26, s26, s44
        s_bfe_u32 s28, s31, 0x10001
        s_lshr_b32 s27, s31, 2
        s_lshl_b32 s29, s26, 1
        s_add_u32 s29, s29, s28"""
        else:
            MAP = """s_and_b32 s44, s2, 7
        s_lshr_b32 s31, s2, 3
        s_lshr_b32 s73, s44, 1
        s_and_b32 s3, s44, 1
        s_and_b32 s28, s31, 1
        s_lshr_b32 s45, s31, 1
        s_and_b32 s26, s45, 3
        s_lshl_b32 s46, s73, 2
        s_add_u32 s26, s26, s46
        s_lshr_b32 s27, s45, 2
        s_lshl_b32 s46, s3, 2
        s_add_u32 s27, s27, s46
        s_lshl_b32 s29, s26, 1
        s_add_u32 s29, s29, s28"""
        p(f"""
        s_cmp_ge_u32 s2, 256
        s_cbranch_scc1 L_end
        s_load_dwordx16 s[4:19], s[0:1], 0
        s_load_dwordx4 s[20:23], s[0:1], 64
        s_getpc_b64 s[74:75]
        v_and_b32 v1, 63, v0
        v_lshrrev_b32 v2, 6, v0
        v_readfirstlane_b32 s24, v2
        {MAP}
        s_and_b32 s25, s24, 3
        s_mov_b32 s72, 0
        s_waitcnt lgkmcnt(0)
        """)
        self.stamp(0)
        p(f"""
        s_mov_b32 s40, s22
        s_mov_b32 s41, s23
        s_mov_b32 s42, {WS_SIZE}
        s_mov_b32 s43, 0x20000
        s_cmp_ge_u32 s24, 4
        s_cbranch_scc0 L_compute
        s_cmp_eq_u32 s28, 0
        s_cbranch_scc0 L_helper_h
        """)
        self.helper_t12('kv')
        p("s_branch L_hp_post")
        p.label("L_helper_h")
        self.helper_t12('h')
        p.label("L_hp_post")
        self.helper_post()
        p.label("L_compute")
        self.compute_path()
        p.label("L_end")
        p("s_endpgm")

    def helper_t12(self, kind):
        p = self.p; cfg = self.cfg
        VO = 8; SD = 48
        NW = 5 if kind == 'kv' else 6
        n = 4 + NW + (3 if kind == 'kv' and not cfg.noqdma else 0)
        wstep = 245760 if kind == 'kv' else 196608
        p(f"""
        s_mul_i32 s44, s26, 163840
        s_add_u32 s32, s4, s44
        s_addc_u32 s33, s5, 0
        s_sub_u32 s34, 2621440, s44
        s_mov_b32 s35, 0x20000
        v_lshrrev_b32 v2, 3, v1
        v_and_b32 v3, 7, v1
        v_xor_b32 v4, v3, v2
        v_lshlrev_b32 v4, 4, v4
        s_lshl_b32 s44, s25, 5
        v_add_u32 v5, s44, v2
        v_mul_u32_u24 v5, 1280, v5
        v_add_u32 v8, v5, v4
        v_add_u32 v9, 10240, v8
        v_add_u32 v10, 20480, v8
        v_add_u32 v11, 30720, v8
        s_lshl_b32 s48, s25, 12
        s_add_u32 s49, s48, 1024
        s_add_u32 s50, s48, 2048
        s_add_u32 s51, s48, 3072
        s_mov_b32 s60, 0
        """)
        if cfg.prio and cfg.prio0: p(f"s_setprio {cfg.prio0}")
        self.rot10("s59")
        p("s_lshl_b32 s61, s59, 7")
        p(f"s_mul_i32 s62, s59, {wstep}")
        p("s_mul_i32 s66, s59, 245760")
        for b in range(4):
            p(f"s_mov_b32 m0, s{SD+b}")
            p(f"buffer_load_dwordx4 v{VO+b}, s[32:35], s61 offen lds")
        if kind == 'kv':
            p("s_mul_i32 s44, s27, 160"); p("s_add_u32 s44, s44, 1280")
            p("s_add_u32 s36, s6, s44"); p("s_addc_u32 s37, s7, 0"); p("s_sub_u32 s38, 2457600, s44")
        else:
            p("s_mul_i32 s44, s27, 384")
            p("s_add_u32 s36, s12, s44"); p("s_addc_u32 s37, s13, 0"); p("s_sub_u32 s38, 1966080, s44")
        p("s_mov_b32 s39, 0x20000")
        def seg_pattern(dst):
            p(f"""
            v_mul_u32_u24 v3, 6554, v2
            v_lshrrev_b32 v3, 16, v3
            v_mul_u32_u24 v4, 10, v3
            v_sub_u32 v4, v2, v4
            v_and_b32 v5, 0x33, v3
            v_and_b32 v6, 4, v3
            v_lshl_or_b32 v5, v6, 1, v5
            v_and_b32 v6, 8, v3
            v_lshrrev_b32 v6, 1, v6
            v_or_b32 v5, v5, v6
            v_mul_u32_u24 v5, 3840, v5
            v_lshl_add_u32 v{dst}, v4, 4, v5
            """)
        if kind == 'kv':
            for a in range(5):
                p(f"""
                s_add_u32 s44, s25, {4*a}
                s_cmp_ge_u32 s44, 10
                s_cselect_b32 s45, 1, 0
                s_mul_i32 s46, s45, 10
                s_sub_u32 s46, s44, s46
                s_lshl_b32 s47, s46, 6
                v_add_u32 v2, s47, v1
                """)
                seg_pattern(VO+4+a)
                p(f"""
                s_mul_i32 s47, s45, 1280
                v_add_u32 v{VO+4+a}, s47, v{VO+4+a}
                s_mul_i32 s47, s45, {SEG}
                s_lshl_b32 s46, s46, 10
                s_add_u32 s47, s47, s46
                s_add_u32 s{SD+4+a}, s47, 16384
                s_mov_b32 m0, s{SD+4+a}
                buffer_load_dwordx4 v{VO+4+a}, s[36:39], s62 offen lds
                """)
        else:
            for a in range(6):
                pat = a % 3
                p(f"""
                v_add_u32 v2, {64*pat}, v1
                v_mul_u32_u24 v3, 2731, v2
                v_lshrrev_b32 v3, 16, v3
                v_mul_u32_u24 v4, 24, v3
                v_sub_u32 v4, v2, v4
                v_and_b32 v5, 6, v3
                v_xor_b32 v4, v4, v5
                v_lshrrev_b32 v5, 2, v3
                v_lshlrev_b32 v5, 3, v5
                v_and_b32 v6, 3, v3
                v_add_u32 v5, v5, v6
                s_lshl_b32 s44, s25, 4
                s_add_u32 s44, s44, {4*(a//3)}
                v_add_u32 v5, s44, v5
                v_mul_u32_u24 v5, 3072, v5
                v_lshl_add_u32 v{VO+4+a}, v4, 4, v5
                s_mul_i32 s44, s25, 6144
                s_add_u32 s{SD+4+a}, s44, {16384 + a*1024}
                s_mov_b32 m0, s{SD+4+a}
                buffer_load_dwordx4 v{VO+4+a}, s[36:39], s62 offen lds
                """)
        if kind == 'kv':
            p("s_mul_i32 s44, s27, 160")
            p("s_add_u32 s68, s6, s44"); p("s_addc_u32 s69, s7, 0"); p("s_sub_u32 s70, 2457600, s44"); p("s_mov_b32 s71, 0x20000")
            p("s_mul_i32 s44, s25, 160"); p("s_mul_i32 s67, s25, 2560"); p(f"s_add_u32 s67, s67, {QOFF}")
            for a in range(3):
                p(f"v_add_u32 v2, s44, v1")
                if a: p(f"v_add_u32 v2, {64*a}, v2")
                p("v_min_u32 v2, 639, v2")
                seg_pattern(20 + a)
        def issue_q(buf):
            if kind != 'kv' or cfg.noqdma: return
            for a in range(3):
                p(f"s_add_u32 m0, {buf}, s67") if a == 0 else p(f"s_add_u32 m0, m0, 1024")
                if a == 2: p("s_mov_b32 exec_hi, 0")
                p(f"buffer_load_dwordx4 v{20+a}, s[68:71], s66 offen lds")
                if a == 2: p("s_mov_b64 exec, -1")
        issue_q("s60")
        def advance():
            p(f"s_add_u32 s60, s60, {STG}")
            p(f"s_cmp_eq_u32 s60, {3*STG}")
            p("s_cselect_b32 s60, 0, s60")
            p("s_add_u32 s61, s61, 128")
            p(f"s_add_u32 s62, s62, {wstep}")
            p("s_add_u32 s66, s66, 245760")
            p("s_add_u32 s59, s59, 1")
            p("s_cmp_eq_u32 s59, 10")
            p("s_cselect_b32 s59, 0, s59")
            p("s_cselect_b32 s61, 0, s61")
            p("s_cselect_b32 s62, 0, s62")
            p("s_cselect_b32 s66, 0, s66")
        def issue():
            for i in range(4 + NW):
                p(f"s_add_u32 m0, s60, s{SD+i}")
                srd, so = ("s[32:35]", "s61") if i < 4 else ("s[36:39]", "s62")
                p(f"buffer_load_dwordx4 v{VO+i}, {srd}, {so} offen lds")
            issue_q("s60")
            advance()
        p("s_mov_b32 s96, s16"); p("s_mov_b32 s97, s17"); p("s_movk_i32 s98, 1280"); p("s_mov_b32 s99, 0x20000")
        p("v_lshlrev_b32 v2, 4, v1")
        p(f"s_mov_b32 m0, {GW}")
        p("buffer_load_dwordx4 v2, s[96:99], 0 offen lds")
        p("s_mov_b32 exec_lo, 0xffff"); p("s_mov_b32 exec_hi, 0")
        p("buffer_load_dwordx4 v2, s[96:99], 0 offen offset:1024 lds")
        p("s_mov_b64 exec, -1")
        advance()
        self.stamp(1)
        q = [("s0", n), ("gw", 2)]
        def push(tag, k): q.append((tag, k))
        def wait_for(tag):
            tags = [t for t, _ in q]
            if tag not in tags: return
            idx = tags.index(tag)
            p(f"s_waitcnt vmcnt({sum(k for _, k in q[idx+1:])})")
            del q[:idx+1]
        if cfg.early_s1:
            issue(); push("s1", n)
        wait_for("gw")
        self.stamp(2)
        p("s_barrier")
        if not cfg.early_s1:
            issue(); push("s1", n)
        issue(); push("s2", n)
        p(f"v_mov_b32 v2, {SY}")
        p(f"ds_read_b32 v3, v2 offset:{W_TAG}")
        p("s_waitcnt lgkmcnt(0)")
        p("v_readfirstlane_b32 s30, v3")
        for i in range(10):
            if i <= 8: wait_for(f"s{i+1}")
            p("s_barrier")
            if i == 0: self.stamp(3)
            if cfg.hst and cfg.stamps and i in (0, 1, 2, 4, 6, 8, 9): p(f"s_memtime s[{80+2*(1+(0,1,2,4,6,8,9).index(i))}:{81+2*(1+(0,1,2,4,6,8,9).index(i))}]")
            if i <= 6: issue(); push(f"s{i+3}", n)
            if i == 0 and kind == 'h':
                p("s_lshl_b32 s44, s27, 13"); p("s_lshl_b32 s45, s26, 9"); p("s_add_u32 s44, s44, s45"); p(f"s_add_u32 s44, s44, {WS_KVS}")
                p("s_cmp_eq_u32 s25, 0"); p(f"s_cselect_b32 s44, s44, {OOB}")
                p("v_and_b32 v2, 31, v1"); p("v_lshlrev_b32 v2, 4, v2"); p("v_add_u32 v2, s44, v2")
                for e in range(4): p(f"v_mov_b32 v{32+e}, 0")
                p("s_mov_b32 exec_hi, 0")
                p("buffer_store_dwordx4 v[32:35], v2, s[40:43], 0 offen sc1")
                p("s_mov_b64 exec, -1")
                push("zs", 1)
            if i == 3 and kind == 'h':
                wait_for("zs")
                p("s_lshl_b32 s44, s27, 11"); p("s_lshl_b32 s45, s26, 7"); p("s_add_u32 s44, s44, s45"); p(f"s_add_u32 s58, s44, {F_KS}")
                p("s_cmp_eq_u32 s25, 0"); p(f"s_cselect_b32 s58, s58, {OOB}")
                self.flag_store("s58"); push("zf", 1)
            if cfg.stouch and i in (2, 4, 6):
                if i == 2 or i == 4:
                    k0 = 0 if i == 2 else 8
                    p("s_mul_i32 s44, s2, 7680"); p("s_mul_i32 s45, s25, 1920"); p("s_add_u32 s44, s44, s45")
                    p("s_add_u32 s46, s14, s44"); p("s_addc_u32 s47, s15, 0")
                    for k in range(k0, min(15, k0 + 8)): p(f"s_load_dword s3, s[46:47], {128*k}")
                else:
                    p("s_mul_i32 s44, s2, 3200"); p("s_mul_i32 s45, s25, 800"); p("s_add_u32 s44, s44, s45")
                    p(f"s_min_u32 s44, s44, {819200 - 7*128}")
                    p("s_add_u32 s46, s8, s44"); p("s_addc_u32 s47, s9, 0")
                    for k in range(7): p(f"s_load_dword s3, s[46:47], {128*k}")
            if i == 5 and cfg.local:
                p("v_min_u32 v2, 15, v1"); p("v_lshlrev_b32 v2, 2, v2")
                p("s_lshl_b32 s44, s26, 7"); p(f"s_add_u32 s44, s44, {F_X}")
                p("buffer_load_dword v31, v2, s[40:43], s44 offen sc1")
                push("xc", 1)
            if i == 6 and kind == 'kv':
                NZ = p.newlabel("L_nz")
                p("s_sub_u32 s3, s25, 1"); p("s_cmp_lt_u32 s3, 2"); p(f"s_cbranch_scc0 {NZ}")
                p("s_lshl_b32 s58, s27, 11"); p("s_lshl_b32 s44, s3, 10"); p("s_add_u32 s58, s58, s44"); p(f"s_add_u32 s58, s58, {F_KS}")
                self.poll_flags_safe("s58", 8)
                self.lds_signal(W_ZOK)
                p.label(NZ)
            if i == 7 and cfg.local:
                wait_for("xc")
                p("s_getreg_b32 s45, hwreg(HW_REG_XCC_ID)"); p("s_and_b32 s45, s45, 7")
                p("s_and_b32 s44, s30, 0xfffffff0"); p("s_or_b32 s44, s44, 8"); p("s_or_b32 s44, s44, s45")
                p("v_cmp_eq_u32 vcc, s44, v31")
                p("s_nop 1")
                p("s_cmp_eq_u64 vcc, -1")
                p("s_cselect_b32 s72, 1, 2")
                p(f"v_mov_b32 v2, {SY}"); p("v_mov_b32 v3, s72")
                p(f"ds_write_b32 v2, v3 offset:{W_LOC}")
                p("s_waitcnt lgkmcnt(0)")
            if kind == 'h' and not cfg.t12only:
                if i == cfg.jl: self.job_load(); push("jl", 10)
                if i == cfg.jp:
                    wait_for("jl"); self.job_proc(); push("js", 10)
                if i == cfg.jf:
                    wait_for("js"); self.flag_store("s65"); push("jf", 1)

    def job_load(self):
        p = self.p
        p(f"""
        s_and_b32 s44, s2, 7
        s_lshl_b32 s44, s44, 4
        s_lshr_b32 s45, s31, 1
        s_add_u32 s64, s44, s45
        s_lshl_b32 s44, s25, 7
        s_add_u32 s64, s64, s44
        s_mul_i32 s70, s64, 964
        s_lshr_b32 s70, s70, 16
        s_mul_i32 s44, s70, 68
        s_sub_u32 s71, s64, s44
        s_mul_i32 s68, s25, {STG}
        s_add_u32 s68, s68, 40960
        s_cmp_eq_u32 s25, 3
        s_cselect_b32 s68, {KVT}, s68
        s_cselect_b32 s67, 0, 1024
        s_lshl_b32 s44, s70, 12
        s_lshr_b32 s45, s71, 2
        s_lshl_b32 s45, s45, 7
        s_add_u32 s44, s44, s45
        s_and_b32 s45, s71, 3
        s_lshl_b32 s45, s45, 2
        s_add_u32 s44, s44, s45
        s_add_u32 s65, s44, {F_J}
        s_cmp_ge_u32 s64, 272
        s_cselect_b32 s65, {OOB}, s65
        """)
        for u in range(10):
            p(f"""
            v_add_u32 v2, {64*u}, v1
            v_mul_u32_u24 v3, 3277, v2
            v_lshrrev_b32 v{32+u}, 16, v3
            v_mul_u32_u24 v4, 20, v{32+u}
            v_sub_u32 v4, v2, v4
            v_lshlrev_b32 v{44+u}, 4, v4
            """)
        B, C, Dn = [p.newlabel("L_jr") for _ in range(3)]
        p("s_cmp_lt_u32 s71, 48")
        p("s_cselect_b32 s96, s14, s8"); p("s_cselect_b32 s97, s15, s9")
        p("s_mov_b32 s98, 819200"); p("s_cselect_b32 s98, 1966080, s98")
        p(f"s_cbranch_scc0 {B}")
        p("s_lshl_b32 s44, s71, 5")
        for u in range(10): p(f"v_add_u32 v{32+u}, s44, v{32+u}")
        p(f"s_branch {Dn}")
        p.label(B)
        p("s_cmp_lt_u32 s71, 64"); p(f"s_cbranch_scc0 {C}")
        p("s_sub_u32 s44, s71, 48"); p("s_mul_i32 s44, s44, 40")
        for u in range(10):
            p(f"""
            v_lshrrev_b32 v2, 4, v{32+u}
            v_mul_u32_u24 v2, 20, v2
            v_and_b32 v3, 15, v{32+u}
            v_add3_u32 v{32+u}, v2, v3, s44
            """)
        p(f"s_branch {Dn}")
        p.label(C)
        p("s_sub_u32 s44, s71, 64"); p("s_lshl_b32 s44, s44, 3")
        for u in range(10):
            p(f"""
            v_lshrrev_b32 v2, 4, v{32+u}
            v_lshlrev_b32 v2, 2, v2
            v_bfe_u32 v3, v{32+u}, 2, 2
            v_add_u32 v3, 2, v3
            v_and_b32 v3, 3, v3
            v_add3_u32 v2, v2, v3, s44
            v_mul_u32_u24 v2, 20, v2
            v_and_b32 v3, 3, v{32+u}
            v_add3_u32 v{32+u}, v2, v3, 16
            """)
        p.label(Dn)
        p("s_mov_b32 s99, 0x20000")
        p("s_mul_i32 s44, s70, 320")
        p("s_cmp_ge_u32 s64, 272")
        p(f"s_cselect_b32 s44, {OOB}, s44")
        for u in range(10):
            p(f"v_mul_u32_u24 v2, 1280, v{32+u}")
            p(f"v_add3_u32 v{32+u}, v2, v{44+u}, s44")
        p("s_mov_b32 s44, s68")
        for u in range(10):
            p("s_mov_b32 m0, s44")
            p(f"buffer_load_dwordx4 v{32+u}, s[96:99], 0 offen lds")
            p("s_add_u32 s44, s44, s67")

    def job_proc(self):
        p = self.p
        p("""
        v_lshrrev_b32 v2, 4, v1
        v_bfe_u32 v3, v1, 2, 2
        v_and_b32 v4, 3, v1
        v_lshl_add_u32 v5, v2, 2, v3
        v_mul_u32_u24 v5, 320, v5
        v_mul_u32_u24 v6, 40, v4
        v_add3_u32 v5, v5, v6, s68
        """)
        for hf in range(2):
            for t in range(5):
                for b2 in range(2):
                    r = 32 + (hf*5 + t)*4 + 2*b2
                    p(f"ds_read_b64_tr_b16 v[{r}:{r+1}], v5 offset:{16*b2*320 + hf*160 + 8*t}")
        p(f"s_mul_i32 s44, s70, {2*WP_CG}"); p("s_mul_i32 s45, s71, 5120"); p("s_add_u32 s44, s44, s45"); p(f"s_add_u32 s44, s44, {WS_WP}")
        p("s_cmp_ge_u32 s64, 272"); p(f"s_cselect_b32 s44, {OOB}, s44")
        p("v_lshlrev_b32 v3, 4, v1"); p("v_add_u32 v3, s44, v3")
        p("v_add_u32 v4, 4096, v3"); p(f"v_add_u32 v6, {WP_CG}, v3"); p(f"v_add_u32 v7, {WP_CG+4096}, v3")
        p("s_waitcnt lgkmcnt(0)")
        for hf in range(2):
            for t in range(5):
                r = 32 + (hf*5 + t)*4
                a = ("v3" if t < 4 else "v4") if hf == 0 else ("v6" if t < 4 else "v7")
                off = (t*1024) if t < 4 else 0
                p(f"buffer_store_dwordx4 v[{r}:{r+3}], {a}, s[40:43], 0 offen offset:{off} sc1")

    def helper_post(self):
        p = self.p
        if self.cfg.t12only:
            p("s_waitcnt vmcnt(0)"); self.stamp_flush(8); p("s_branch L_end"); return
        self.stamp(4)
        if self.cfg.prio: p("s_setprio 3")
        NJ = p.newlabel("L_nj")
        p("s_cmp_eq_u32 s25, 0"); p(f"s_cbranch_scc1 {NJ}")
        p("s_lshr_b32 s58, s27, 1"); p("s_lshl_b32 s58, s58, 12")
        p("s_sub_u32 s44, s25, 1"); p("s_mul_i32 s44, s44, 6"); p("s_min_u32 s44, s44, 11"); p("s_lshl_b32 s44, s44, 7")
        p("s_add_u32 s58, s58, s44"); p(f"s_add_u32 s58, s58, {F_J}")
        Lp, Dp = p.newlabel("L_jp"), p.newlabel("L_jpd")
        p("s_add_u32 s4, s22, s58"); p("s_addc_u32 s5, s23, 0")
        p(f"s_mov_b32 s47, {POLL_MAX}")
        p.label(Lp)
        p("s_mov_b32 s46, 0")
        for b in range(2):
            for i in range(3): p(f"s_load_dwordx4 s[{8+4*i}:{11+4*i}], s[4:5], {(3*b+i)*128} glc")
            p("s_waitcnt lgkmcnt(0)")
            for i in range(12):
                p(f"s_xor_b32 s{8+i}, s{8+i}, s30"); p(f"s_or_b32 s46, s46, s{8+i}")
        p("s_cmp_eq_u32 s46, 0"); p(f"s_cbranch_scc1 {Dp}")
        p("s_sleep 1")
        p("s_sub_u32 s47, s47, 1"); p("s_cmp_lg_u32 s47, 0"); p(f"s_cbranch_scc1 {Lp}")
        p.label(Dp)
        self.lds_signal(W_JOK)
        p.label(NJ)
        N0 = p.newlabel("L_n0")
        p("s_cmp_eq_u32 s25, 0"); p(f"s_cbranch_scc0 {N0}")
        p(f"s_lshl_b32 s58, s26, 10"); p(f"s_add_u32 s58, s58, {F_H}")
        self.poll_flags("s58", 8)
        self.lds_signal(W_HR)
        self.stamp(5)
        p.label(N0)
        p("s_cmp_eq_u32 s28, 0"); p("s_cbranch_scc1 L_hp_kvcu")
        p("s_branch L_hp_or")
        p.label("L_hp_kvcu")
        N3x = p.newlabel("L_n3x")
        p("s_sub_u32 s59, s25, 1"); p("s_cmp_lt_u32 s59, 2"); p(f"s_cbranch_scc0 {N3x}")
        p("s_lshl_b32 s58, s27, 11"); p("s_lshl_b32 s44, s59, 10"); p("s_add_u32 s58, s58, s44"); p(f"s_add_u32 s58, s58, {F_KV}")
        self.poll_flags("s58", 8)
        self.lds_signal(W_KVF)
        p.label(N3x)
        self.lds_wait(W_KVF, 2)
        self.stamp2(4)
        p("v_lshrrev_b32 v2, 4, v1"); p("v_and_b32 v3, 15, v1")
        p(f"v_mov_b32 v7, {OOB}")
        p("v_add_u32 v4, 2, v2"); p("v_and_b32 v4, 3, v4"); p("v_lshrrev_b32 v5, 2, v3")
        p("v_cmp_eq_u32 s[56:57], v4, v5")
        VT = 8
        LA, LB, LE = [p.newlabel("L_kt") for _ in range(3)]
        p("v_lshlrev_b32 v4, 2, v1"); p("v_lshrrev_b32 v5, 1, v2"); p("v_lshlrev_b32 v6, 6, v2")
        p("s_cmp_ge_u32 s25, 2"); p(f"s_cbranch_scc1 {LA}")
        p("s_mul_i32 s44, s25, 3072")
        for i in range(3):
            p(f"v_add_u32 v{VT+i}, s44, v4")
            if i: p(f"v_add_u32 v{VT+i}, {1024*i}, v{VT+i}")
        p(f"s_branch {LE}")
        p.label(LA)
        p("s_cmp_eq_u32 s25, 2"); p(f"s_cbranch_scc0 {LB}")
        p("v_lshlrev_b32 v11, 10, v5"); p("v_add3_u32 v11, v11, v4, 0"); p("v_add_u32 v11, 6144, v11")
        p(f"v_cndmask_b32 v{VT}, v7, v11, s[56:57]")
        p(f"v_add_u32 v{VT+1}, {6144}, v6")
        p(f"v_add_u32 v{VT+2}, {6144+4}, v6")
        p(f"s_branch {LE}")
        p.label(LB)
        p(f"v_add_u32 v{VT}, {7168+32}, v6")
        p(f"v_add_u32 v{VT+1}, {7168+36}, v6")
        p(f"v_mul_u32_u24 v11, {1024+32}, v5")
        p(f"v_add3_u32 v{VT+2}, v11, v6, 0"); p(f"v_add_u32 v{VT+2}, {6144+16}, v{VT+2}")
        p.label(LE)
        SUM = 16
        p(f"s_lshl_b32 s48, s27, 13"); p(f"s_add_u32 s48, s48, {WS_KVS}")
        for i in range(3):
            for e in range(4):
                p(f"buffer_load_dword v{SUM+4*i+e}, v{VT+i}, s[40:43], s48 offen offset:{256*e} sc1")
        p("s_waitcnt vmcnt(0)")
        self.stamp2(5)
        p("s_mul_i32 s44, s25, 1536"); p(f"s_add_u32 s44, s44, {KVT}")
        p("v_lshlrev_b32 v4, 3, v1"); p("v_add_u32 v5, s44, v4")
        for i in range(3):
            p(f"v_cvt_pk_bf16_f32 v{SUM+4*i}, v{SUM+4*i}, v{SUM+4*i+1}")
            p(f"v_cvt_pk_bf16_f32 v{SUM+4*i+1}, v{SUM+4*i+2}, v{SUM+4*i+3}")
            p(f"ds_write_b64 v5, v[{SUM+4*i}:{SUM+4*i+1}] offset:{i*512}")
        p("s_waitcnt lgkmcnt(0)")
        self.lds_signal(W_KVR)
        self.lds_wait(W_KVR, 4)
        self.stamp(6)
        self.stamp2(6)
        TT = 68
        p("v_lshlrev_b32 v5, 3, v1"); p(f"v_add_u32 v5, {KVT}, v5")
        for tau in range(12): p(f"ds_read_b64 v[{TT+2*tau}:{TT+2*tau+1}], v5 offset:{tau*512}")
        p("v_lshrrev_b32 v2, 4, v1"); p("v_and_b32 v3, 15, v1"); p("v_lshrrev_b32 v5, 2, v3")
        for h in range(4):
            p(f"v_cmp_eq_u32 s[{56+2*h}:{57+2*h}], {h}, v2")
            p(f"v_cmp_eq_u32 s[{64+2*h}:{65+2*h}], {(h+2)&3}, v5")
        p("s_waitcnt lgkmcnt(0)")
        KVt = lambda h: TT + 2*h
        EXL, E0H, XXt = TT + 8, TT + 10, TT + 12
        ZL = lambda h: TT + 14 + 2*h
        ZH = TT + 22
        FR = 96
        for h in range(4):
            e0 = FR + 12*h; ex = e0 + 4; dn = e0 + 8
            mg, mr = f"s[{56+2*h}:{57+2*h}]", f"s[{64+2*h}:{65+2*h}]"
            p(f"v_mov_b32 v{e0}, v{KVt(h)}"); p(f"v_mov_b32 v{e0+1}, v{KVt(h)+1}")
            p(f"v_cndmask_b32 v{e0+2}, 0, v{E0H}, {mg}"); p(f"v_cndmask_b32 v{e0+3}, 0, v{E0H+1}, {mg}")
            p(f"v_cndmask_b32 v{ex}, 0, v{EXL}, {mr}"); p(f"v_cndmask_b32 v{ex+1}, 0, v{EXL+1}, {mr}")
            p(f"v_cndmask_b32 v{ex+2}, 0, v{XXt}, {mr}"); p(f"v_cndmask_b32 v{ex+3}, 0, v{XXt+1}, {mr}")
            p(f"v_mov_b32 v{dn}, v{ZL(h)}"); p(f"v_mov_b32 v{dn+1}, v{ZL(h)+1}")
            p(f"v_cndmask_b32 v{dn+2}, 0, v{ZH}, {mg}"); p(f"v_cndmask_b32 v{dn+3}, 0, v{ZH+1}, {mg}")
        self.lds_wait(W_BQ, 4, vtmp=(6, 7))
        for k in range(2):
            BQ = 16 if k == 0 else 32
            p(f"s_lshl_b32 s44, s25, 1"); p(f"s_add_u32 s44, s44, {k}")
            p("s_and_b32 s45, s44, 3"); p("s_mul_i32 s45, s45, 2560")
            p(f"s_mov_b32 s46, {BQL1}"); p("s_cmp_lt_u32 s44, 4"); p(f"s_cselect_b32 s46, {BQL0}, s46"); p("s_add_u32 s45, s45, s46")
            p("v_lshlrev_b32 v4, 3, v1"); p("v_add_u32 v5, s45, v4")
            for h in range(4):
                p(f"ds_read_b64 v[{BQ+4*h}:{BQ+4*h+1}], v5 offset:{h*512}")
                p(f"ds_read_b64 v[{BQ+4*h+2}:{BQ+4*h+3}], v5 offset:2048")
        p("v_lshlrev_b32 v4, 4, v1")
        p("s_waitcnt lgkmcnt(0)")
        NUM = 48; DN = 64; EXO = 80; RR = 144; OO = 84
        for k in range(2):
            BQ = 16 if k == 0 else 32
            bq = lambda h: vr(BQ + 4*h, 4)
            for h in range(4):
                e0 = FR + 12*h
                p(f"v_mfma_f32_16x16x32_bf16 {vr(NUM+4*h,4)}, {vr(e0,4)}, {bq(h)}, 0")
                p(f"v_mfma_f32_16x16x32_bf16 {vr(DN+4*h,4)}, {vr(e0+8,4)}, {bq(h)}, 0")
                c = "0" if h == 0 else vr(EXO, 4)
                p(f"v_mfma_f32_16x16x32_bf16 {vr(EXO,4)}, {vr(e0+4,4)}, {bq(h)}, {c}")
            p(f"s_mov_b32 s44, {EPS6}")
            for h in range(4): p(f"v_add_f32 v{RR+h}, s44, v{DN+4*h}")
            for h in range(4): p(f"v_rcp_f32 v{RR+h}, v{RR+h}")
            p(f"v_cndmask_b32 v{RR+4}, v{RR}, v{RR+2}, s[56:57]")
            p(f"v_cndmask_b32 v{RR+4}, v{RR+4}, v{RR+3}, s[58:59]")
            p(f"v_cndmask_b32 v{RR+4}, v{RR+4}, v{RR+1}, s[62:63]")
            for h in range(4):
                for i in range(4): p(f"v_mul_f32 v{NUM+4*h+i}, v{NUM+4*h+i}, v{RR+h}")
            for i in range(4): p(f"v_mul_f32 v{EXO+i}, v{EXO+i}, v{RR+4}")
            O_ = OO if k == 0 else 148
            for h in range(4):
                p(f"v_cvt_pk_bf16_f32 v{O_+2*h}, v{NUM+4*h}, v{NUM+4*h+1}")
                p(f"v_cvt_pk_bf16_f32 v{O_+2*h+1}, v{NUM+4*h+2}, v{NUM+4*h+3}")
            p(f"v_cvt_pk_bf16_f32 v{O_+8}, v{EXO}, v{EXO+1}")
            p(f"v_cvt_pk_bf16_f32 v{O_+9}, v{EXO+2}, v{EXO+3}")
            p("s_lshl_b32 s50, s26, 3"); p("s_lshl_b32 s44, s25, 1"); p("s_add_u32 s50, s50, s44"); p(f"s_add_u32 s50, s50, {k}")
            p(f"""
            s_mul_i32 s44, s50, {AP_ST}
            s_add_u32 s44, s44, {WS_AP}
            s_lshl_b32 s45, s27, 11
            s_add_u32 s45, s45, s44
            s_add_u32 s45, s45, {48*1024}
            v_add_u32 v5, s45, v4
            s_lshr_b32 s45, s27, 1
            s_lshl_b32 s45, s45, 10
            s_and_b32 s46, s27, 1
            s_lshl_b32 s46, s46, 3
            s_add_u32 s45, s45, s46
            s_add_u32 s45, s45, s44
            s_add_u32 s45, s45, {64*1024}
            v_add_u32 v6, s45, v4
            """)
            p(f"buffer_store_dwordx4 v[{O_}:{O_+3}], v5, s[40:43], 0 offen sc1")
            p(f"buffer_store_dwordx4 v[{O_+4}:{O_+7}], v5, s[40:43], 0 offen offset:1024 sc1")
            p(f"buffer_store_dwordx2 v[{O_+8}:{O_+9}], v6, s[40:43], 0 offen sc1")
        p("s_waitcnt vmcnt(0)")
        p("s_lshl_b32 s44, s26, 10"); p("s_lshl_b32 s45, s27, 7"); p("s_add_u32 s44, s44, s45"); p(f"s_add_u32 s58, s44, {F_O}")
        self.publish_last(W_PUB2, 4, "s58")
        self.stamp2(7)
        p.label("L_hp_or")
        N1 = p.newlabel("L_n1")
        p("s_cmp_eq_u32 s25, 0"); p(f"s_cbranch_scc0 {N1}")
        p(f"s_lshl_b32 s58, s26, 10"); p(f"s_add_u32 s58, s58, {F_O}")
        self.poll_flags("s58", 8)
        self.lds_signal(W_OR)
        self.stamp(7)
        p.label(N1)
        p("s_waitcnt lgkmcnt(0)")
        self.stamp_flush(8)
        p("s_branch L_end")

    def compute_path(self):
        p = self.p; cfg = self.cfg
        p("s_cmp_eq_u32 s25, 0"); p("s_cbranch_scc0 L_c_n0")
        p("v_lshlrev_b32 v3, 2, v1"); p(f"v_add_u32 v3, {SY}, v3"); p("v_mov_b32 v4, 0")
        p("s_mov_b64 exec, -2")
        p("ds_write_b32 v3, v4")
        p("s_mov_b64 exec, -1")
        p("s_cmp_eq_u32 s2, 0"); p("s_cbranch_scc0 L_c_n0")
        p("s_memrealtime s[44:45]")
        p("s_mov_b32 s96, s20"); p("s_mov_b32 s97, s21"); p("s_movk_i32 s98, 256"); p("s_mov_b32 s99, 0x20000")
        p("s_waitcnt lgkmcnt(0)")
        p("s_or_b32 s44, s44, 1")
        p("v_mov_b32 v3, s44"); p("v_mov_b32 v4, 0")
        p("s_mov_b64 exec, 1")
        p("buffer_store_dword v3, v4, s[96:99], 0 offen sc1")
        p("s_mov_b64 exec, -1")
        p.label("L_c_n0")
        p("s_cmp_eq_u32 s25, 3"); p("s_cbranch_scc0 L_c_n3")
        p("s_mov_b64 exec, 0xff")
        p("s_lshl_b32 s44, s31, 10")
        p("v_lshlrev_b32 v3, 7, v1"); p("v_add_u32 v3, s44, v3")
        p(f"v_min_u32 v3, CODE_BYTES_M, v3")
        p(f"global_load_dword v31, v3, s[74:75]")
        p("s_mov_b64 exec, -1")
        p("s_mov_b32 s96, s20"); p("s_mov_b32 s97, s21"); p("s_movk_i32 s98, 256"); p("s_mov_b32 s99, 0x20000")
        p("v_mov_b32 v4, 0")
        p(f"s_mov_b32 s47, {POLL_MAX*4}")
        p.label("L_c_tag")
        p("buffer_load_dword v3, v4, s[96:99], 0 offen sc1")
        p("s_waitcnt vmcnt(0)")
        p("v_readfirstlane_b32 s44, v3")
        p("s_cmp_lg_u32 s44, 0"); p("s_cbranch_scc1 L_c_tagd")
        p("s_sub_u32 s47, s47, 1"); p("s_cmp_lg_u32 s47, 0"); p("s_cbranch_scc1 L_c_tag")
        p.label("L_c_tagd")
        p(f"v_mov_b32 v2, {SY}")
        p(f"ds_write_b32 v2, v3 offset:{W_TAG}")
        if cfg.local:
            p("s_getreg_b32 s45, hwreg(HW_REG_XCC_ID)")
            p("s_and_b32 s45, s45, 7")
            p("s_and_b32 s44, s44, 0xfffffff0"); p("s_or_b32 s44, s44, 8"); p("s_or_b32 s44, s44, s45")
            p("s_lshl_b32 s45, s26, 7"); p("s_lshl_b32 s46, s28, 5"); p("s_add_u32 s45, s45, s46")
            p("s_lshl_b32 s46, s27, 2"); p("s_add_u32 s45, s45, s46"); p(f"s_add_u32 s45, s45, {F_X}")
            p("v_mov_b32 v4, s45"); p("v_mov_b32 v5, s44")
            p("s_mov_b64 exec, 1")
            p("buffer_store_dword v5, v4, s[40:43], 0 offen sc1")
            p("s_mov_b64 exec, -1")
        p.label("L_c_n3")
        if cfg.kt: self.touch_setup()
        p("s_cmp_eq_u32 s28, 0")
        p("s_cbranch_scc0 L_c_h")
        self.t12_compute('kv')
        p("s_branch L_c_t4")
        p.label("L_c_h")
        self.t12_compute('h')
        p.label("L_c_t4")
        self.t4()
        p("s_branch L_end")

    def touch_setup(self):
        p = self.p; D = self.cfg.kt
        L1, L2, LX, LD = [p.newlabel("L_tc") for _ in range(4)]
        p("s_mov_b32 s67, 0x20000"); p("s_and_b32 s47, s2, 1")
        p("s_cmp_eq_u32 s25, 1"); p(f"s_cbranch_scc1 {L1}")
        p("s_cmp_eq_u32 s25, 2"); p(f"s_cbranch_scc1 {L2}")
        p("s_mov_b32 s64, s4"); p("s_mov_b32 s65, s5"); p("s_mov_b32 s66, 2621440"); p("s_mov_b32 s68, 0")
        p("s_cmp_eq_u32 s25, 0"); p(f"s_cbranch_scc0 {LX}")
        p("s_lshl_b32 s44, s73, 9"); p("s_lshl_b32 s45, s31, 4"); p("s_add_u32 s44, s44, s45"); p("s_mul_i32 s44, s44, 1280")
        p("v_lshlrev_b32 v28, 7, v1"); p("v_add_u32 v28, s44, v28")
        p("buffer_load_dword v29, v28, s[64:67], 0 offen")
        p("v_add_u32 v28, 8192, v28"); p("buffer_load_dword v30, v28, s[64:67], 0 offen")
        p("v_add_u32 v28, 8192, v28"); p("s_mov_b32 exec_hi, 0"); p("buffer_load_dword v31, v28, s[64:67], 0 offen"); p("s_mov_b64 exec, -1")
        p.label(LX)
        p(f"v_mov_b32 v28, {OOB}")
        p(f"s_branch {LD}")
        p.label(L1)
        p("s_mov_b32 s64, s6"); p("s_mov_b32 s65, s7"); p("s_mov_b32 s66, 2457600"); p("s_mov_b32 s68, 245760")
        p("""
        v_min_u32 v2, 29, v1
        v_cmp_le_u32 vcc, 15, v2
        v_cndmask_b32 v3, 0, 1, vcc
        v_mul_u32_u24 v4, 15, v3
        v_sub_u32 v4, v2, v4
        v_mul_u32_u24 v5, 13, v4
        v_lshrrev_b32 v5, 6, v5
        v_mul_u32_u24 v6, 5, v5
        v_sub_u32 v6, v4, v6
        s_lshl_b32 s44, s31, 1
        v_add_u32 v3, s44, v3
        v_mul_u32_u24 v3, 3840, v3
        v_mul_u32_u24 v5, 1280, v5
        v_lshl_add_u32 v3, v6, 7, v3
        s_mul_i32 s44, s47, 640
        v_add3_u32 v28, v3, v5, s44
        """)
        p(f"s_branch {LD + 'i'}")
        p.label(L2)
        p("s_mov_b32 s64, s12"); p("s_mov_b32 s65, s13"); p("s_mov_b32 s66, 1966080"); p("s_mov_b32 s68, 196608")
        p("""
        v_min_u32 v2, 23, v1
        v_cmp_le_u32 vcc, 12, v2
        v_cndmask_b32 v3, 0, 1, vcc
        v_mul_u32_u24 v4, 12, v3
        v_sub_u32 v4, v2, v4
        s_lshl_b32 s44, s31, 1
        v_add_u32 v3, s44, v3
        v_mul_u32_u24 v3, 3072, v3
        v_lshl_add_u32 v3, v4, 7, v3
        s_mul_i32 s44, s47, 1536
        v_add_u32 v28, s44, v3
        """)
        p.label(LD + 'i')
        for st in range(D):
            p(f"buffer_load_dword v29, v28, s[64:67], 0 offen")
            p("v_add_u32 v28, s68, v28")
        p.label(LD)

    def t12_compute(self, kind):
        p = self.p
        typ = 0 if kind == 'kv' else 1
        NT = 5 if kind == 'kv' else 6
        SETSZ = 16 + 4 * NT
        ACC = 32
        def xf(s, st): return SETSZ * s + 4 * st
        def wf(s, t): return SETSZ * s + 16 + 4 * t
        def acc(t, st): return ACC + (t * 4 + st) * 4
        if kind == 'kv':
            QACC = lambda i, st: 112 + (i*4 + st)*4
            QXACC = lambda k: 144 + 4*k
            GACC = 152
            QF = [72, 76, 80]; GF = 84
            NACC = 124
        else:
            GACC = 128; GF = 80; NACC = 100
        p("""
        s_lshr_b32 s48, s25, 1
        s_and_b32 s49, s25, 1
        v_lshrrev_b32 v2, 4, v1
        v_bfe_u32 v3, v1, 2, 2
        v_and_b32 v4, 3, v1
        v_bfe_u32 v5, v1, 3, 1
        s_lshl_b32 s44, s48, 3
        v_add_u32 v5, s44, v5
        v_lshlrev_b32 v5, 10, v5
        v_and_b32 v6, 7, v1
        v_lshl_add_u32 v5, v6, 7, v5
        v_xor_b32 v7, v2, v6
        v_lshl_add_u32 v8, v7, 4, v5
        v_xor_b32 v7, 4, v7
        v_lshl_add_u32 v9, v7, 4, v5
        v_lshrrev_b32 v5, 1, v2
        v_lshlrev_b32 v5, 4, v5
        v_and_b32 v6, 1, v2
        v_lshl_add_u32 v5, v6, 2, v5
        v_add_u32 v5, v5, v3
        """)
        self.rot10("s53")
        p("s_lshl_b32 s44, s53, 7"); p(f"s_add_u32 s44, s44, {GW}")
        p("v_lshlrev_b32 v19, 4, v2"); p("v_add_u32 v19, s44, v19")
        if kind == 'kv':
            p(f"""
            v_mul_u32_u24 v6, 160, v5
            v_add_u32 v7, {QOFF}, v6
            s_mul_i32 s44, s49, 80
            v_lshlrev_b32 v16, 3, v4
            v_add3_u32 v16, v16, v7, s44
            v_mul_u32_u24 v17, 40, v4
            v_add3_u32 v17, v17, v7, 32
            v_add_u32 v6, 16384, v6
            v_lshlrev_b32 v7, 3, v4
            v_add3_u32 v10, v6, v7, s44
            v_lshrrev_b32 v7, 1, v4
            v_xor_b32 v7, s49, v7
            v_mul_u32_u24 v7, {SEG}, v7
            v_and_b32 v13, 1, v4
            v_mul_u32_u24 v13, 40, v13
            v_add3_u32 v13, v13, v6, s44
            v_add3_u32 v11, v13, v7, 32
            """)
            def wread(t, s, b2):
                ro = (32 * s + 8 * b2) * 160
                if t in (0, 1): return ("v10", 40 * t + ro)
                if t in (2, 3): return ("v10", SEG + 40 * (t - 2) + ro)
                return ("v11", ro)
            addr_regs = [8, 9, 10, 11, 16, 17]
            transposed = lambda t: False
        else:
            p(f"""
            v_mul_u32_u24 v6, 384, v5
            v_add_u32 v6, 16384, v6
            v_and_b32 v7, 1, v4
            v_lshl_add_u32 v6, v7, 3, v6
            v_and_b32 v7, 6, v5
            v_lshrrev_b32 v20, 1, v4
            s_mul_i32 s44, s49, 12
            v_add_u32 v20, s44, v20
            """)
            for t in range(6):
                p(f"""
                v_add_u32 v21, {2*t}, v20
                v_xor_b32 v21, v21, v7
                v_lshl_add_u32 v{10+t}, v21, 4, v6
                """)
            def wread(t, s, b2): return (f"v{10+t}", (32 * s + 8 * b2) * 384)
            addr_regs = [8, 9, 10, 11, 12, 13, 14, 15]
            transposed = lambda t: True
        def base_reads(s_dst, s_k):
            vx = "v8" if s_k == 0 else "v9"
            xs = [f"ds_read_b128 {ar(xf(s_dst, st), 4)}, {vx} offset:{st*2048}" for st in range(4)]
            ws = []
            for t in range(NT):
                for b2 in range(2):
                    a, off = wread(t, s_k, b2)
                    ws.append(f"ds_read_b64_tr_b16 {ar(wf(s_dst, t) + 2*b2, 2)}, {a} offset:{off}")
            return [xs[0]] + ws[:4] + [xs[1]] + ws[4:8] + [xs[2]] + ws[8:10] + [xs[3]] + ws[10:]
        def q_reads(s_k):
            L = []
            if kind == 'kv' and not self.cfg.noqread:
                for b2 in range(2):
                    ro = (32 * s_k + 8 * b2) * 160
                    L.append(f"ds_read_b64_tr_b16 {ar(QF[0]+2*b2, 2)}, v16 offset:{ro}")
                    L.append(f"ds_read_b64_tr_b16 {ar(QF[1]+2*b2, 2)}, v16 offset:{ro + 40}")
                    L.append(f"ds_read_b64_tr_b16 {ar(QF[2]+2*b2, 2)}, v17 offset:{ro}")
            L.append(f"ds_read_b128 {ar(GF, 4)}, v19 offset:{64*s_k}")
            return L
        def base_mfmas(s):
            L = []
            for st in range(4):
                for t in range(NT):
                    A, B = (ar(wf(s, t), 4), ar(xf(s, st), 4)) if transposed(t) else (ar(xf(s, st), 4), ar(wf(s, t), 4))
                    c = vr(acc(t, st), 4)
                    L.append(f"v_mfma_f32_16x16x32_bf16 {c}, {A}, {B}, {c}")
            return L
        def q_mfmas(s):
            if self.cfg.noqread: return
            if kind == 'kv':
                for st in range(4):
                    for i in range(2):
                        c = vr(QACC(i, st), 4)
                        p(f"v_mfma_f32_16x16x32_bf16 {c}, {ar(QF[i],4)}, {ar(xf(s, st),4)}, {c}")
            LA, LB = p.newlabel("L_qm"), p.newlabel("L_qm")
            p("s_cmp_eq_u32 s49, 0"); p(f"s_cbranch_scc0 {LA}")
            for ch in range(2):
                if ch == 1: p.label(LA)
                if kind == 'kv':
                    for k in range(2):
                        c = vr(QXACC(k), 4)
                        p(f"v_mfma_f32_16x16x32_bf16 {c}, {ar(QF[2],4)}, {ar(xf(s, 2*ch + k),4)}, {c}")
                c = vr(GACC, 4)
                p(f"v_mfma_f32_16x16x32_bf16 {c}, {ar(GF,4)}, {ar(xf(s, 2*typ + ch),4)}, {c}")
                if ch == 0: p(f"s_branch {LB}")
            p.label(LB)
        def phase(s, rd, extra=()):
            q_mfmas(s)
            M = base_mfmas(s); other = list(rd) + list(extra)
            k = 0
            for i, m in enumerate(M):
                if not self.cfg.nomfma: p(m)
                for _ in range(2):
                    if k < len(other): p(other[k]); k += 1
            while k < len(other): p(other[k]); k += 1
        for i in range(NACC): p(f"v_mov_b32 v{ACC+i}, 0")
        p("s_mov_b32 s50, 0"); p("s_mov_b32 s51, 10"); p(f"s_mov_b32 s55, {STG}"); p("s_movk_i32 s54, 128")
        p("s_waitcnt lgkmcnt(0)")
        self.stamp(1)
        p("s_barrier")
        p(f"v_mov_b32 v2, {SY}")
        p(f"ds_read_b32 v3, v2 offset:{W_TAG}")
        for r in base_reads(0, 0) + q_reads(0): p(r)
        p("s_waitcnt lgkmcnt(0)")
        p("v_readfirstlane_b32 s30, v3")
        self.stamp(2)
        if self.cfg.span: self.span_mark(2)
        L = f"L_t12_loop_{kind}"
        p.label(L)
        upd = ["s_add_u32 s50, s50, 1", "s_cmp_eq_u32 s50, 3",
               f"s_cselect_b32 s52, {(-2*STG) & 0xffffffff}, s55", "s_cselect_b32 s50, 0, s50"] + \
              [f"v_add_u32 v{r}, s52, v{r}" for r in addr_regs] + \
              ["s_add_u32 s53, s53, 1", "s_cmp_eq_u32 s53, 10", f"s_cselect_b32 s52, {(-1152) & 0xffffffff}, s54", "s_cselect_b32 s53, 0, s53",
               "v_add_u32 v19, s52, v19"]
        phase(0, q_reads(1) + base_reads(1, 1), upd)
        p("s_waitcnt lgkmcnt(0)")
        p("s_barrier")
        tch = ["buffer_load_dword v29, v28, s[64:67], 0 offen", "v_add_u32 v28, s68, v28"] if self.cfg.kt else []
        phase(1, q_reads(0) + base_reads(0, 0), tch)
        p("s_waitcnt lgkmcnt(0)")
        p("s_sub_u32 s51, s51, 1"); p("s_cmp_lg_u32 s51, 0"); p(f"s_cbranch_scc1 {L}")
        self.stamp(3)
        self.stamp2(1)
        if self.cfg.span: self.span_mark(3)
        if self.cfg.t12only:
            for k in range(4, 10): self.stamp(k)
            self.stamp_flush(10)
            p("s_branch L_end")
        p("s_waitcnt vmcnt(0)")
        p("v_lshlrev_b32 v18, 4, v1")
        if kind == 'h':
            self.epilogue_h(acc, last=True)
            self.epilogue_gate(GACC)
        else:
            self.epilogue_kv(acc)
            self.stamp3(6)
            self.epilogue_gate(GACC)
            self.epilogue_q(QACC, QXACC)
            self.stamp3(7)
        p("s_waitcnt vmcnt(0)")
        self.stamp3(8)
        if kind == 'h':
            p("s_lshl_b32 s44, s26, 10"); p("s_lshl_b32 s45, s27, 7"); p("s_add_u32 s44, s44, s45"); p(f"s_add_u32 s44, s44, {F_H}")
        else:
            p("s_lshl_b32 s44, s27, 11"); p("s_lshl_b32 s45, s26, 7"); p("s_add_u32 s44, s44, s45"); p(f"s_add_u32 s44, s44, {F_KV}")
        self.publish_last(W_PUB1, 4, "s44")
        self.stamp3(9)
        self.stamp(4)
        self.stamp2(2)
        if self.cfg.span: self.span_mark(4)

    def epilogue_gate(self, GACC):
        p = self.p
        p(f"s_mov_b32 s58, {LOG2E}")
        p(f"v_mul_f32 v6, s58, v{GACC}")
        p("v_sub_f32 v6, 0, v6")
        p("s_mov_b32 s59, 0x42700000")
        p("v_min_f32 v6, s59, v6")
        p("v_exp_f32 v6, v6")
        p("v_add_f32 v7, 1.0, v6"); p("v_rcp_f32 v7, v7")
        p("s_lshl_b32 s44, s25, 6")
        p("v_and_b32 v5, 15, v1"); p("v_lshlrev_b32 v5, 2, v5"); p("v_add_u32 v5, s44, v5")
        p(f"v_add_u32 v5, {GL}, v5")
        p("ds_write_b32 v5, v7")
        p(f"ds_write_b32 v5, v6 offset:{GR-GL}")
        p("s_waitcnt lgkmcnt(0)")
        self.lds_signal(W_GT)

    def epilogue_q(self, QACC, QXACC):
        p = self.p
        regs = [QACC(i, st) + e for i in range(2) for st in range(4) for e in range(4)] + [QXACC(k) + e for k in range(2) for e in range(4)]
        tmp = [32 + (t*4 + st)*4 + e for t in range(5) for st in (0, 2) for e in range(4)]
        p(f"s_mov_b32 s58, {LOG2E}"); p(f"s_mov_b32 s59, {LOG2E}"); p(f"s_mov_b32 s66, {EPS6}"); p(f"s_mov_b32 s67, {EPS6}")
        n = len(regs)
        for i in range(0, n, 2): p(f"v_pk_mul_f32 v[{tmp[i]}:{tmp[i]+1}], v[{regs[i]}:{regs[i]+1}], s[58:59]")
        for a, t in zip(regs, tmp): p(f"v_exp_f32 v{t}, v{t} clamp")
        for a in regs: p(f"v_max_f32 v{a}, 0, v{a}")
        for i in range(0, n, 2): p(f"v_pk_add_f32 v[{tmp[i]}:{tmp[i]+1}], v[{tmp[i]}:{tmp[i]+1}], s[66:67]")
        for i in range(0, n, 2): p(f"v_pk_add_f32 v[{regs[i]}:{regs[i]+1}], v[{regs[i]}:{regs[i]+1}], v[{tmp[i]}:{tmp[i]+1}]")
        p(f"s_mov_b32 s44, {BQL1}"); p("s_cmp_eq_u32 s48, 0"); p(f"s_cselect_b32 s44, {BQL0}, s44")
        p("s_lshl_b32 s45, s49, 10"); p("s_add_u32 s45, s45, s44")
        p("v_lshlrev_b32 v5, 3, v1"); p("v_add_u32 v6, s45, v5")
        for i in range(2):
            for st in range(4):
                a = QACC(i, st)
                p(f"v_cvt_pk_bf16_f32 v{a}, v{a}, v{a+1}"); p(f"v_cvt_pk_bf16_f32 v{a+1}, v{a+2}, v{a+3}")
                p(f"ds_write_b64 v6, v[{a}:{a+1}] offset:{st*2560 + i*512}")
        p("s_mul_i32 s45, s49, 5120"); p("s_add_u32 s45, s45, s44"); p("v_add_u32 v6, s45, v5")
        for k in range(2):
            a = QXACC(k)
            p(f"v_cvt_pk_bf16_f32 v{a}, v{a}, v{a+1}"); p(f"v_cvt_pk_bf16_f32 v{a+1}, v{a+2}, v{a+3}")
            p(f"ds_write_b64 v6, v[{a}:{a+1}] offset:{k*2560 + 2048}")
        p("s_waitcnt lgkmcnt(0)")
        self.lds_signal(W_BQ)

    def epilogue_h(self, acc, last):
        p = self.p
        p(f"""
        s_lshl_b32 s44, s26, 3
        s_lshl_b32 s45, s48, 2
        s_add_u32 s44, s44, s45
        s_mul_i32 s44, s44, {AP_ST}
        s_mul_i32 s45, s27, 6
        s_mul_i32 s46, s49, 3
        s_add_u32 s45, s45, s46
        s_lshl_b32 s45, s45, 10
        s_add_u32 s44, s44, s45
        s_add_u32 s44, s44, {WS_AP}
        v_add_u32 v5, s44, v18
        """)
        if self.cfg.local: self.read_loc()
        for st in range(4):
            for pp in range(3):
                a0, a1 = acc(2*pp, st), acc(2*pp+1, st)
                p(f"v_cvt_pk_bf16_f32 v{a0}, v{a0}, v{a0+1}")
                p(f"v_cvt_pk_bf16_f32 v{a0+1}, v{a0+2}, v{a0+3}")
                p(f"v_cvt_pk_bf16_f32 v{a0+2}, v{a1}, v{a1+1}")
                p(f"v_cvt_pk_bf16_f32 v{a0+3}, v{a1+2}, v{a1+3}")
                for i in range(4): p(f"v_pk_max_i16 v{a0+i}, v{a0+i}, 0")
        for st in range(1, 4): p(f"v_add_u32 v{7+st}, {AP_ST*st}, v5")
        p("v_mov_b32 v7, v5")
        def stores(sc):
            for st in range(4):
                for pp in range(3):
                    a0 = acc(2*pp, st)
                    p(f"buffer_store_dwordx4 v[{a0}:{a0+3}], v{7+st}, s[40:43], 0 offen offset:{pp*1024}{sc}")
        self.dual(stores)

    def epilogue_kv(self, acc):
        p = self.p
        K0, K1, V0, V1, X = range(5)
        p(f"s_mov_b32 s53, {LOG2E}"); p(f"s_mov_b32 s54, {EPS6}")
        p("v_lshrrev_b32 v2, 4, v1"); p("v_and_b32 v3, 15, v1")
        p("v_lshrrev_b32 v4, 3, v3"); p("v_cmp_eq_u32 s[56:57], s49, v4")
        p("v_lshrrev_b32 v7, 1, v2"); p("v_cmp_eq_u32 s[58:59], s49, v7")
        T0 = 20
        p(f"s_mov_b32 s52, {LOG2E}"); p(f"s_mov_b32 s66, {EPS6}"); p(f"s_mov_b32 s67, {EPS6}")
        def phi_group(regs, tm, dst=None):
            n = len(regs); dst = dst or regs
            for i in range(0, n, 2): p(f"v_pk_mul_f32 v[{tm+i}:{tm+i+1}], v[{regs[i]}:{regs[i]+1}], s[52:53]")
            for i in range(n): p(f"v_exp_f32 v{tm+i}, v{tm+i} clamp")
            for i in range(n): p(f"v_max_f32 v{dst[i]}, 0, v{regs[i]}")
            for i in range(0, n, 2): p(f"v_pk_add_f32 v[{tm+i}:{tm+i+1}], v[{tm+i}:{tm+i+1}], s[66:67]")
            for i in range(0, n, 2): p(f"v_pk_add_f32 v[{dst[i]}:{dst[i]+1}], v[{dst[i]}:{dst[i]+1}], v[{tm+i}:{tm+i+1}]")
        for st in range(4):
            phi_group([acc(K0, st)+i for i in range(4)] + [acc(K1, st)+i for i in range(4)], T0)
            a = acc(X, st)
            phi_group([a+i for i in range(4)], T0, dst=[T0+4+i for i in range(4)])
            for i in range(4): p(f"v_cndmask_b32 v{a+i}, v{a+i}, v{T0+4+i}, s[56:57]")
        self.stamp3(2)
        for t in (K0, K1, V0, V1, X):
            for kk in range(2):
                a, b = acc(t, 2*kk), acc(t, 2*kk+1)
                p(f"v_cvt_pk_bf16_f32 v{a}, v{a}, v{a+1}")
                p(f"v_cvt_pk_bf16_f32 v{a+1}, v{a+2}, v{a+3}")
                p(f"v_cvt_pk_bf16_f32 v{a+2}, v{b}, v{b+1}")
                p(f"v_cvt_pk_bf16_f32 v{a+3}, v{b+2}, v{b+3}")
        fr = lambda t, kk: vr(acc(t, 2*kk), 4)
        free = [acc(t, s) for t in (K0, K1, V0, V1, X) for s in (1, 3)]
        KV0, KV1, KX0, KX1, XV0, XV1, XX, Z0, Z1, ZX = free
        ONES = T0
        for i in range(4): p(f"v_mov_b32 v{ONES+i}, 0x3f803f80")
        ones = vr(ONES, 4)
        for kk in range(2):
            for (d, A, B) in ((KV0, fr(K0,kk), fr(V0,kk)), (KV1, fr(K1,kk), fr(V1,kk)), (KX0, fr(K0,kk), fr(X,kk)),
                              (KX1, fr(K1,kk), fr(X,kk)), (XV0, fr(X,kk), fr(V0,kk)), (XV1, fr(X,kk), fr(V1,kk)),
                              (XX, fr(X,kk), fr(X,kk)), (Z0, fr(K0,kk), ones), (Z1, fr(K1,kk), ones), (ZX, fr(X,kk), ones)):
                c = "0" if kk == 0 else vr(d, 4)
                p(f"v_mfma_f32_16x16x32_bf16 {vr(d,4)}, {A}, {B}, {c}")
        p("v_bfe_u32 v4, v3, 2, 1"); p("v_cmp_eq_u32 s[60:61], 1, v4")
        p("v_and_b32 v4, 1, v2"); p("v_cmp_eq_u32 s[62:63], 1, v4")
        p("v_and_b32 v4, 1, v3"); p("v_cmp_eq_u32 s[64:65], 1, v4")
        for i in range(4): p(f"v_cndmask_b32 v{KX0+i}, v{KX0+i}, v{KX1+i}, s[60:61]")
        for i in range(4): p(f"v_cndmask_b32 v{XV0+i}, v{XV0+i}, v{XV1+i}, s[62:63]")
        for i in range(4): p(f"v_cndmask_b32 v{Z0+i}, v{Z0+i}, v{Z1+i}, s[64:65]")
        p("s_lshl_b32 s44, s49, 2"); p("v_lshrrev_b32 v4, 1, v3"); p("v_cmp_eq_u32 s[60:61], s44, v4")
        p("s_lshl_b32 s44, s49, 3"); p("s_add_u32 s44, s44, 4"); p("v_cmp_eq_u32 s[62:63], s44, v3")
        for i in range(4): p(f"v_cndmask_b32 v{XX+i}, v{XX+i}, v{Z0+i}, s[60:61]")
        for i in range(4): p(f"v_cndmask_b32 v{XX+i}, v{XX+i}, v{ZX+i}, s[62:63]")
        self.stamp3(3)
        tiles = [KV0, KV1, KX0, XV0, XX]
        p("s_mul_i32 s44, s49, 5120"); p(f"s_add_u32 s44, s44, {KVRED}")
        p("v_add_u32 v4, s44, v18")
        R0 = p.newlabel("L_kr")
        p("s_cmp_eq_u32 s48, 0"); p(f"s_cbranch_scc1 {R0}")
        for j, t in enumerate(tiles): p(f"ds_write_b128 v4, {vr(t,4)} offset:{j*1024}")
        p.label(R0)
        self.cbar(vtmp=(5, 6))
        self.stamp3(4)
        TMs = [acc(t, 0) for t in range(5)]
        for j in range(5): p(f"ds_read_b128 {vr(TMs[j],4)}, v4 offset:{j*1024}")
        p("s_waitcnt lgkmcnt(0)")
        for j, t in enumerate(tiles):
            m = TMs[j]
            p(f"v_pk_add_f32 v[{t}:{t+1}], v[{t}:{t+1}], v[{m}:{m+1}]")
            p(f"v_pk_add_f32 v[{t+2}:{t+3}], v[{t+2}:{t+3}], v[{m+2}:{m+3}]")
        for i in range(4): p(f"v_cndmask_b32 v{KX0+i}, v{KX0+i}, 0, s[56:57]")
        for i in range(4): p(f"v_cndmask_b32 v{XV0+i}, 0, v{XV0+i}, s[58:59]")
        self.lds_wait(W_ZOK, 2, vtmp=(5, 6))
        self.stamp3(5)
        p(f"""
        s_lshl_b32 s44, s27, 13
        s_add_u32 s44, s44, {WS_KVS}
        s_cmp_eq_u32 s48, 0
        s_cselect_b32 s44, s44, {OOB}
        v_lshlrev_b32 v4, 2, v1
        v_add_u32 v4, s44, v4
        s_lshl_b32 s45, s49, 11
        v_add_u32 v5, s45, v4
        v_add_u32 v6, 4096, v4
        s_lshl_b32 s45, s49, 10
        v_add_u32 v7, s45, v4
        v_add_u32 v7, 6144, v7
        """)
        for (t, a, off) in ((KV0, "v5", 0), (KV1, "v5", 1024), (KX0, "v6", 0), (XV0, "v6", 1024), (XX, "v7", 0)):
            for e in range(4):
                p(f"buffer_atomic_add_f32 v{t+e}, {a}, s[40:43], 0 offen offset:{off + 256*e}")

    def t4(self):
        p = self.p
        ACC = 32
        acc = lambda sg, t: ACC + (sg*5 + t)*4
        def frag(setn, f):
            idx = setn*9 + f
            return ar(idx*4, 4) if idx < 24 else vr(112 + (idx-24)*4, 4)
        AF = lambda j, t: frag(j % PD, 4 + t)
        BF = lambda j, sg: frag(j % PD, sg)
        VB = 8; VA, VA2 = 6, 7
        def stile(sg, out):
            p(f"s_add_u32 s44, s25, {sg}"); p("s_and_b32 s44, s44, 3")
            p("s_lshr_b32 s45, s44, 1"); p("s_lshl_b32 s45, s45, 2"); p("s_and_b32 s46, s44, 1"); p("s_add_u32 s45, s45, s46")
            p("s_lshl_b32 s46, s28, 1"); p("s_add_u32 s45, s45, s46"); p("s_lshl_b32 s46, s26, 3"); p(f"s_add_u32 {out}, s45, s46")
        for sg in range(4):
            stile(sg, "s47")
            if sg == 0: p("s_mov_b32 s71, s47")
            p(f"s_mul_i32 s47, s47, {AP_ST}"); p(f"s_add_u32 s47, s47, {WS_AP}")
            p(f"v_add_u32 v{VB+sg}, s47, v18")
        p(f"s_mul_i32 s44, s27, {WP_CG}"); p(f"s_add_u32 s44, s44, {WS_WP}")
        p(f"v_add_u32 v{VA}, s44, v18"); p(f"v_add_u32 v{VA2}, 4096, v{VA}")
        p("s_mul_i32 s52, s25, 12"); p("s_mul_i32 s53, s25, 5"); p("s_add_u32 s53, s53, 48")
        self.t4_rot()
        def ks_next(j):
            if j < 12:
                p("s_add_u32 s54, s52, s56")
                p("s_add_u32 s56, s56, 1"); p("s_cmp_eq_u32 s56, 12"); p("s_cselect_b32 s56, 0, s56")
            else:
                p("s_add_u32 s54, s53, s57")
                p("s_add_u32 s57, s57, 1"); p("s_cmp_eq_u32 s57, 5"); p("s_cselect_b32 s57, 0, s57")
            p(f"s_lshl_b32 s{62 + (j % PD)}, s54, 10")
            p("s_mul_i32 s55, s54, 5120")
        def loadA(j):
            for t in range(4): p(f"buffer_load_dwordx4 {AF(j,t)}, v{VA}, s[40:43], s55 offen offset:{t*1024} sc1")
            p(f"buffer_load_dwordx4 {AF(j,4)}, v{VA2}, s[40:43], s55 offen sc1")
        def loadB(j):
            for sg in range(4):
                p(f"buffer_load_dwordx4 {BF(j, sg)}, v{VB+sg}, s[40:43], s{62 + (j % PD)} offen sc1")
        q = []
        def wait_for(tag):
            tags = [t for t, _ in q]
            if tag not in tags: return
            idx = tags.index(tag)
            p(f"s_waitcnt vmcnt({sum(k for _, k in q[idx+1:])})")
            del q[:idx+1]
        self.lds_wait(W_GT, 4)
        p("v_and_b32 v5, 15, v1"); p("v_lshlrev_b32 v5, 2, v5")
        for sg in range(4):
            p(f"s_add_u32 s44, s25, {sg}"); p("s_and_b32 s44, s44, 3"); p("s_lshl_b32 s44, s44, 6"); p(f"s_add_u32 s44, s44, {GL}")
            p("v_add_u32 v16, s44, v5")
            p(f"ds_read_b32 v{12+sg}, v16 offset:{GR-GL}")
            if sg == 0: p("ds_read_b32 v19, v16")
        self.lds_wait(W_JOK, 3)
        for j in range(PD):
            ks_next(j); loadA(j); q.append((f"A{j}", 5))
        self.lds_wait(W_HR, 1)
        self.stamp2(3)
        for j in range(PD):
            loadB(j); q.append((f"B{j}", 4))
        self.stamp(5)
        self.stamp2(4)
        NS = 17
        self.stamp(6)
        for j in range(NS):
            nxt = j + PD
            wait_for(f"A{j}"); wait_for(f"B{j}")
            if j == 1: self.stamp(7); self.stamp2(5)
            if j == 12:
                self.stamp(8)
                for sg in range(4):
                    for t in range(5):
                        for i in range(4): p(f"v_mul_f32 v{acc(sg,t)+i}, v{acc(sg,t)+i}, v{12+sg}")
            for sg in range(4):
                for t in range(5):
                    c = vr(acc(sg, t), 4)
                    p(f"v_mfma_f32_16x16x32_bf16 {c}, {AF(j,t)}, {BF(j,sg)}, {'0' if j == 0 else c}")
            if nxt < NS:
                ks_next(nxt); loadA(nxt); q.append((f"A{nxt}", 5))
                if nxt < 12 or nxt > 11 + PD:
                    loadB(nxt); q.append((f"B{nxt}", 4))
            if j == 11:
                if self.cfg.span: self.span_mark(5)
                self.stamp2(6); self.lds_wait(W_OR, 1); self.stamp2(7)
                if self.cfg.span: self.span_mark(6)
                for jj in range(12, min(NS, 12 + PD)):
                    loadB(jj); q.append((f"B{jj}", 4))
        self.stamp2(8)
        for sg in range(1, 4):
            p(f"s_add_u32 s44, s25, {sg}"); p("s_and_b32 s44, s44, 3"); p("s_mul_i32 s44, s44, 3"); p(f"s_add_u32 s44, s44, {sg-1}")
            p("s_mul_i32 s45, s44, 5120")
            p("v_add_u32 v5, s45, v18")
            for t in range(5): p(f"ds_write_b128 v5, {vr(acc(sg,t),4)} offset:{t*1024}")
        self.cbar()
        p("s_mul_i32 s45, s25, 15360")
        p("v_add_u32 v5, s45, v18")
        for k in range(3):
            for t in range(5): p(f"ds_read_b128 {vr(acc(1+k,t),4)}, v5 offset:{k*5120+t*1024}")
        p("s_waitcnt lgkmcnt(0)")
        for k in range(3):
            for t in range(5):
                a, b = acc(0, t), acc(1+k, t)
                p(f"v_pk_add_f32 v[{a}:{a+1}], v[{a}:{a+1}], v[{b}:{b+1}]")
                p(f"v_pk_add_f32 v[{a+2}:{a+3}], v[{a+2}:{a+3}], v[{b+2}:{b+3}]")
        O = 112
        for t in range(5):
            for i in range(4): p(f"v_mul_f32 v{acc(0,t)+i}, v{acc(0,t)+i}, v19")
        for t in range(5):
            a = acc(0, t)
            p(f"v_cvt_pk_bf16_f32 v{O+2*t}, v{a}, v{a+1}")
            p(f"v_cvt_pk_bf16_f32 v{O+2*t+1}, v{a+2}, v{a+3}")
        p("""
        s_mov_b32 s32, s18
        s_mov_b32 s33, s19
        s_mov_b32 s34, 2621440
        s_mov_b32 s35, 0x20000
        v_lshrrev_b32 v2, 4, v1
        v_and_b32 v3, 15, v1
        s_lshl_b32 s44, s71, 4
        v_add_u32 v3, s44, v3
        v_mul_u32_u24 v3, 1280, v3
        v_mul_u32_u24 v2, 40, v2
        s_mul_i32 s44, s27, 160
        v_add3_u32 v3, v3, v2, s44
        """)
        p(f"buffer_store_dwordx4 v[{O}:{O+3}], v3, s[32:35], 0 offen")
        p(f"buffer_store_dwordx4 v[{O+4}:{O+7}], v3, s[32:35], 0 offen offset:16")
        p(f"buffer_store_dwordx2 v[{O+8}:{O+9}], v3, s[32:35], 0 offen offset:32")
        self.stamp(9)
        self.stamp2(9)
        self.stamp_flush(10)
        if self.cfg.span:
            self.span_mark(1)

    def span_mark(self, word):
        p = self.p
        D = p.newlabel("L_sm")
        p("s_and_b32 s44, s2, 0xf7"); p("s_cmp_eq_u32 s44, 0x21"); p(f"s_cbranch_scc0 {D}")
        p("s_cmp_eq_u32 s24, 0"); p(f"s_cbranch_scc0 {D}")
        p("s_memrealtime s[44:45]"); p("s_waitcnt lgkmcnt(0)")
        p("s_sub_u32 s44, s44, s30")
        p("s_mov_b32 s96, s20"); p("s_mov_b32 s97, s21"); p("s_movk_i32 s98, 256"); p("s_mov_b32 s99, 0x20000")
        p("s_lshl_b32 s45, s28, 5"); p(f"s_add_u32 s45, s45, {4*word}")
        p("v_mov_b32 v2, s44"); p("v_mov_b32 v3, s45")
        p("s_mov_b64 exec, 1")
        p("buffer_store_dword v2, v3, s[96:99], 0 offen sc1")
        p("s_mov_b64 exec, -1")
        p.label(D)

def kd(name, vgpr, accum, sgpr=102):
    return f""".amdhsa_kernel {name}
  .amdhsa_next_free_vgpr {vgpr}
  .amdhsa_next_free_sgpr {sgpr}
  .amdhsa_accum_offset {accum}
  .amdhsa_group_segment_fixed_size 0
  .amdhsa_kernarg_size 80
  .amdhsa_user_sgpr_count 2
  .amdhsa_user_sgpr_kernarg_segment_ptr 1
  .amdhsa_system_sgpr_workgroup_id_x 1
.end_amdhsa_kernel
"""

def head_comment():
    f = "cdna_kernels/" + NAME + ".s.ref"
    return open(f).read().split("; Override launch")[0] if os.path.exists(f) else ""

def build(cfg):
    g = Gen(cfg); g.emit()
    body = g.p.text(verbose=True)
    hdr = head_comment() + f"""; @launch grid=(256,1,1) block=(512,1,1) lds={LDS_BYTES}
.amdgcn_target "amdgcn-amd-amdhsa--gfx950"
.text
.globl {KNAME}
.p2align 8
.type {KNAME},@function
{KNAME}:
"""
    body = body.replace("CODE_BYTES_M", f".Lcode_end-{KNAME}-512")
    tail = ".Lcode_end:\n"
    return hdr + body + tail + '.section .rodata,"a"\n.p2align 6\n' + kd(KNAME, 256, 160)

if __name__ == "__main__":
    cfg = Cfg()
    cfg.stamps = "stamps" in sys.argv
    cfg.dbg2 = "dbg2" in sys.argv
    cfg.rot = "norot" not in sys.argv
    cfg.local = "nolocal" not in sys.argv
    cfg.t12only = "t12only" in sys.argv
    cfg.map81 = "map81" in sys.argv
    cfg.spoll = "vpoll" not in sys.argv
    cfg.kv1 = "kv1" in sys.argv
    cfg.prio = "noprio" not in sys.argv
    for a in sys.argv:
        if a.startswith("prio0="): cfg.prio0 = int(a[6:])
    for a in sys.argv:
        if a.startswith("kt="): cfg.kt = int(a[3:])
    cfg.hst = "hst" in sys.argv
    if cfg.hst: cfg.dbg2 = True; cfg.dbg3 = True
    cfg.dbg3 = "dbg3" in sys.argv
    if cfg.dbg3: cfg.dbg2 = True
    for a in sys.argv:
        if a.startswith("j="): cfg.jl, cfg.jp, cfg.jf = [int(x) for x in a[2:].split(",")]
    for a in sys.argv:
        if a.startswith("rtab="): cfg.rtab = [int(c, 16) for c in a[5:]]
    cfg.span = "span" in sys.argv
    cfg.noqdma = "noqdma" in sys.argv
    cfg.noqread = "noqread" in sys.argv
    cfg.nomfma = "nomfma" in sys.argv
    cfg.stouch = "stouch" in sys.argv
    for a in sys.argv:
        if a.startswith("wpre="): cfg.wpre = tuple(int(x) for x in a[5:].split(","))
    cfg.w45late = "w45early" not in sys.argv
    for a in sys.argv:
        if a.startswith("or="): cfg.orstep = int(a[3:])
    cfg.early_s1 = "es1" in sys.argv
    if not cfg.map81: cfg.local = False
    out = [a for a in sys.argv[1:] if a.endswith(".s")]
    open(out[0] if out else "x6.s", "w").write(build(cfg))
```

```python
import sys, os
from asmlib import *

NAME = "gated_mix__linear_attn_block__dense_activation_relu__prompt"
KNAME = NAME + "_kernel"

AP_ST = 68 * 1024
WS_AP = 0
WS_WP = 9 << 20
WP_CG = 68 * 5 * 1024
WS_KVP = 13 << 20
WS_KVS = 14 << 20
WS_F = 15 << 20
F_H = WS_F
F_KV = WS_F + 16384
F_O = WS_F + 32768
F_X = WS_F + 65536
F_KS = WS_F + 73728
F_J = WS_F + 98304
WS_TS = 16 << 20
WS_SIZE = 17 << 20
OOB = 0x80000000

STG = 51200
SEG = 10256
QOFF = 40960
WBASE = [51200, 71680, 102400, 122880, 0, 20480]
KVRED = 92160
BQL0, BQL1 = 40960, 143360
KVT = 153600
GW = 159744
GL = 161024
GR = 161280
SY = 161536
LDS_BYTES = 161792
W_TAG, W_KVR, W_HR, W_OR, W_PUB1, W_BQ, W_PUB2, W_KVF, W_LOC, W_P01, W_P23, W_GT, W_KF1, W_ZOK, W_JOK, W_PUB3 = [4*i for i in range(16)]
W_CB = 64
LOG2E = 0x3fb8aa3b
EPS6 = 0x358637bd
POLL_MAX = 1 << 15
PD = 3
for _a in sys.argv:
    if _a.startswith('pd='): PD = int(_a[3:])
JSCR = 51200

class Cfg:
    stamps = False
    dbg2 = False
    rot = True
    local = True
    t12only = False
    map81 = False
    spoll = True
    kv1 = False
    prio = True
    prio0 = 0
    edge = False
    edge2 = False
    csleep = False
    kt = 0
    hst = False
    dbg3 = False
    jl = 1
    jp = 4
    jf = 7
    rtab = None
    span = False
    noqdma = False
    noqread = False
    nomfma = False
    stouch = False
    wpre = (7, 8)
    w45late = True
    orstep = 11
    early_s1 = False

class Gen:
    def __init__(self, cfg):
        self.p = Prog(); self.cfg = cfg; self.ncb = 0
    def stamp(self, idx):
        if self.cfg.stamps and (idx == 0 or not self.cfg.dbg2): self.p(f"s_memtime s[{80+2*idx}:{81+2*idx}]")
    def stamp2(self, idx):
        if self.cfg.stamps and self.cfg.dbg2 and not (self.cfg.dbg3 and idx >= 2) and not self.cfg.hst: self.p(f"s_memtime s[{80+2*idx}:{81+2*idx}]")
    def stamp3(self, idx):
        if self.cfg.stamps and self.cfg.dbg3 and not self.cfg.hst: self.p(f"s_memtime s[{80+2*idx}:{81+2*idx}]")
    def stamp_flush(self, n):
        if not self.cfg.stamps: return
        p = self.p
        p("s_waitcnt lgkmcnt(0)")
        p("s_memrealtime s[78:79]")
        p("s_lshl_b32 s100, s2, 3"); p("s_add_u32 s100, s100, s24")
        p("s_lshl_b32 s100, s100, 7")
        p(f"s_add_u32 s100, s100, {WS_TS}")
        p("v_mov_b32 v4, s100")
        p("s_waitcnt lgkmcnt(0)")
        p("s_mov_b64 exec, 1")
        regs = [80 + 2*i for i in range(n)]
        for i, r in enumerate(regs + [76, 78]):
            off = 8*i if i < n else (112 + 8*(i-n))
            p(f"v_mov_b32 v2, s{r}"); p(f"v_mov_b32 v3, s{r+1}")
            p(f"buffer_store_dwordx2 v[2:3], v4, s[40:43], 0 offen offset:{off}")
            p("s_nop 1")
        p("s_mov_b64 exec, -1")
    def lds_signal(self, word, vtmp=(2, 3)):
        p = self.p; a, b = vtmp
        p(f"v_mov_b32 v{a}, {SY}"); p(f"v_mov_b32 v{b}, 1")
        p("s_mov_b64 exec, 1")
        p(f"ds_add_u32 v{a}, v{b} offset:{word}")
        p("s_mov_b64 exec, -1")
    def lds_wait(self, word, target, vtmp=(2, 3), sleep=False):
        p = self.p; a, b = vtmp
        L = p.newlabel("L_lw"); D = p.newlabel("L_lwd")
        p(f"v_mov_b32 v{a}, {SY}")
        p(f"s_mov_b32 s47, {POLL_MAX*32}")
        p.label(L)
        p(f"ds_read_b32 v{b}, v{a} offset:{word}")
        p("s_waitcnt lgkmcnt(0)")
        p(f"v_readfirstlane_b32 s46, v{b}")
        p(f"s_cmp_ge_u32 s46, {target}")
        p(f"s_cbranch_scc1 {D}")
        if sleep: p("s_sleep 1")
        p("s_sub_u32 s47, s47, 1")
        p("s_cmp_lg_u32 s47, 0")
        p(f"s_cbranch_scc1 {L}")
        p.label(D)
    def cbar(self, vtmp=(2, 3)):
        w = W_CB + 4 * self.ncb; self.ncb += 1
        assert w < 256
        self.p("s_waitcnt lgkmcnt(0)")
        self.lds_signal(w, vtmp)
        self.lds_wait(w, 4, vtmp)
    def poll_flags(self, addr_s, nwords, vt=(2, 3)):
        p = self.p; a, b = vt
        L = p.newlabel("L_pf"); D = p.newlabel("L_pfd")
        if self.cfg.spoll:
            p(f"s_add_u32 s4, s22, {addr_s}"); p("s_addc_u32 s5, s23, 0")
            p(f"s_mov_b32 s47, {POLL_MAX}")
            p.label(L)
            p("s_mov_b32 s46, 0")
            for base in range(0, nwords, 8):
                m = min(8, nwords - base)
                for i in range(m): p(f"s_load_dword s{8+i}, s[4:5], {(base+i)*128} glc")
                p("s_waitcnt lgkmcnt(0)")
                for i in range(m):
                    p(f"s_xor_b32 s{8+i}, s{8+i}, s30"); p(f"s_or_b32 s46, s46, s{8+i}")
            p("s_cmp_eq_u32 s46, 0")
            p(f"s_cbranch_scc1 {D}")
            p("s_sleep 1")
            p("s_sub_u32 s47, s47, 1")
            p("s_cmp_lg_u32 s47, 0")
            p(f"s_cbranch_scc1 {L}")
            p.label(D)
            return
        p(f"v_min_u32 v{a}, {nwords-1}, v1")
        p(f"v_lshlrev_b32 v{a}, 7, v{a}")
        p(f"v_add_u32 v{a}, {addr_s}, v{a}")
        p(f"s_mov_b32 s47, {POLL_MAX}")
        p.label(L)
        p(f"buffer_load_dword v{b}, v{a}, s[40:43], 0 offen sc1")
        p("s_waitcnt vmcnt(0)")
        p(f"v_cmp_eq_u32 vcc, s30, v{b}")
        p("s_nop 1")
        p("s_cmp_eq_u64 vcc, -1")
        p(f"s_cbranch_scc1 {D}")
        p("s_sleep 2")
        p("s_sub_u32 s47, s47, 1")
        p("s_cmp_lg_u32 s47, 0")
        p(f"s_cbranch_scc1 {L}")
        p.label(D)
    def poll_flags_safe(self, addr_s, nwords):
        p = self.p
        L = p.newlabel("L_pf"); D = p.newlabel("L_pfd")
        p(f"s_add_u32 s100, s22, {addr_s}"); p("s_addc_u32 s101, s23, 0")
        p(f"s_mov_b32 s47, {POLL_MAX}")
        p.label(L)
        p("s_mov_b32 s46, 0")
        for half in range(2):
            for i in range(4): p(f"s_load_dword s{76+i}, s[100:101], {(4*half+i)*128} glc")
            p("s_waitcnt lgkmcnt(0)")
            for i in range(4):
                p(f"s_xor_b32 s{76+i}, s{76+i}, s30"); p(f"s_or_b32 s46, s46, s{76+i}")
        p("s_cmp_eq_u32 s46, 0")
        p(f"s_cbranch_scc1 {D}")
        p("s_sleep 1")
        p("s_sub_u32 s47, s47, 1")
        p("s_cmp_lg_u32 s47, 0")
        p(f"s_cbranch_scc1 {L}")
        p.label(D)
    def dual(self, emit):
        p = self.p
        if not self.cfg.local:
            emit(" sc1"); return
        A, B = p.newlabel("L_du"), p.newlabel("L_du")
        p("s_cmp_eq_u32 s72, 1"); p(f"s_cbranch_scc1 {A}")
        emit(" sc1")
        p(f"s_branch {B}")
        p.label(A)
        emit("")
        p.label(B)
    def flag_store(self, addr_s, vt=(2, 3), dual=False):
        p = self.p; a, b = vt
        p(f"v_mov_b32 v{a}, {addr_s}"); p(f"v_mov_b32 v{b}, s30")
        p("s_mov_b64 exec, 1")
        if dual: self.dual(lambda sc: p(f"buffer_store_dword v{b}, v{a}, s[40:43], 0 offen{sc}"))
        else: p(f"buffer_store_dword v{b}, v{a}, s[40:43], 0 offen sc1")
        p("s_mov_b64 exec, -1")
    def publish_last(self, word, target, addr_s, vt=(2, 3), dual=False):
        p = self.p; a, b = vt
        p(f"v_mov_b32 v{a}, {SY}"); p(f"v_mov_b32 v{b}, 1")
        p("s_mov_b64 exec, 1")
        p(f"ds_add_rtn_u32 v{b}, v{a}, v{b} offset:{word}")
        p("s_mov_b64 exec, -1")
        p("s_waitcnt lgkmcnt(0)")
        p(f"v_readfirstlane_b32 s46, v{b}")
        p(f"s_cmp_eq_u32 s46, {target-1}")
        p(f"s_cselect_b32 s47, {addr_s}, {OOB}")
        self.flag_store("s47", vt, dual)
    def read_loc(self, vt=(2, 3)):
        p = self.p; a, b = vt
        p(f"v_mov_b32 v{a}, {SY}"); p(f"ds_read_b32 v{b}, v{a} offset:{W_LOC}"); p("s_waitcnt lgkmcnt(0)")
        p(f"v_readfirstlane_b32 s72, v{b}")
    def rot10(self, dst):
        p = self.p
        if not self.cfg.rot or self.cfg.kt:
            p(f"s_mov_b32 {dst}, 0"); return
        if self.cfg.rtab is not None:
            t = self.cfg.rtab
            w = [sum(t[8*k + i] << (4*i) for i in range(8)) for k in range(4)]
            p(f"s_mov_b32 {dst}, {hex(w[0])}")
            for k in range(1, 4):
                p(f"s_lshr_b32 s45, s31, 3"); p(f"s_cmp_eq_u32 s45, {k}"); p(f"s_cselect_b32 {dst}, {hex(w[k])}, {dst}")
            p("s_and_b32 s45, s31, 7"); p("s_lshl_b32 s45, s45, 2"); p(f"s_lshr_b32 {dst}, {dst}, s45"); p(f"s_and_b32 {dst}, {dst}, 15")
        elif self.cfg.map81:
            p(f"""
            s_and_b32 s45, s26, 1
            s_mul_i32 s45, s45, 5
            s_add_u32 {dst}, s27, s45
            s_add_u32 {dst}, {dst}, s73
            s_cmp_ge_u32 {dst}, 10
            s_cselect_b32 s45, 10, 0
            s_sub_u32 {dst}, {dst}, s45
            s_cmp_ge_u32 {dst}, 10
            s_cselect_b32 s45, 10, 0
            s_sub_u32 {dst}, {dst}, s45
            """)
        else:
            p(f"""
            s_and_b32 s45, s27, 3
            s_lshl_b32 s45, s45, 1
            s_add_u32 {dst}, s45, s28
            s_and_b32 s45, s26, 3
            s_mul_i32 s45, s45, 3
            s_add_u32 {dst}, {dst}, s45
            s_cmp_ge_u32 {dst}, 10
            s_cselect_b32 s45, 10, 0
            s_sub_u32 {dst}, {dst}, s45
            """)
    def wpattern(self, dst, kind, stride, tmp=(2, 3, 4, 5, 6), out=None):
        L = []
        e = L.append
        a, b, c, d, f = tmp
        for u in range(5):
            e(f"v_add_u32 v{a}, {64*u}, v1")
            e(f"v_mul_u32_u24 v{b}, 6554, v{a}")
            e(f"v_lshrrev_b32 v{b}, 16, v{b}")
            e(f"v_mul_u32_u24 v{c}, 10, v{b}")
            e(f"v_sub_u32 v{c}, v{a}, v{c}")
            if kind == 'B':
                e(f"v_lshrrev_b32 v{d}, 4, v{b}"); e(f"v_mul_u32_u24 v{d}, 20, v{d}")
                e(f"v_and_b32 v{b}, 15, v{b}"); e(f"v_add_u32 v{b}, v{b}, v{d}")
            elif kind == 'C':
                e(f"v_lshrrev_b32 v{d}, 4, v{b}"); e(f"v_lshlrev_b32 v{d}, 2, v{d}")
                e(f"v_bfe_u32 v{f}, v{b}, 2, 2"); e(f"v_add_u32 v{f}, 2, v{f}"); e(f"v_and_b32 v{f}, 3, v{f}")
                e(f"v_add_u32 v{d}, v{d}, v{f}"); e(f"v_mul_u32_u24 v{d}, 20, v{d}")
                e(f"v_and_b32 v{b}, 3, v{b}"); e(f"v_add3_u32 v{b}, v{b}, v{d}, 16")
            e(f"v_mul_u32_u24 v{b}, {stride}, v{b}")
            e(f"v_lshl_add_u32 v{b}, v{c}, 4, v{b}")
            if 0 < u < 4: e(f"v_subrev_u32 v{dst+u}, {1024*u}, v{b}")
            else: e(f"v_mov_b32 v{dst+u}, v{b}")
        if out is not None: out += L
        else:
            for x in L: self.p(x)
    def wdma(self, pat, srd, soff, m0_s):
        p = self.p
        p(f"s_mov_b32 m0, {m0_s}")
        for u in range(4):
            p(f"buffer_load_dwordx4 v{pat+u}, {srd}, {soff} offen offset:{1024*u} lds")
        p(f"s_add_u32 m0, {m0_s}, 4096")
        p(f"buffer_load_dwordx4 v{pat+4}, {srd}, {soff} offen lds")
    def t4_rot(self, rb="s56", ro="s57"):
        p = self.p
        if self.cfg.rot and not self.cfg.map81:
            p("s_and_b32 s44, s29, 7"); p("s_and_b32 s45, s27, 3")
            p("s_mul_i32 s46, s45, 3"); p(f"s_add_u32 {rb}, s44, s46")
            p(f"s_cmp_ge_u32 {rb}, 12"); p("s_cselect_b32 s46, 12, 0"); p(f"s_sub_u32 {rb}, {rb}, s46")
            p(f"s_add_u32 {ro}, s44, s45")
            p(f"s_cmp_ge_u32 {ro}, 10"); p("s_cselect_b32 s46, 10, 0"); p(f"s_sub_u32 {ro}, {ro}, s46")
            p(f"s_cmp_ge_u32 {ro}, 5"); p("s_cselect_b32 s46, 5, 0"); p(f"s_sub_u32 {ro}, {ro}, s46")
        elif self.cfg.rot:
            p("s_and_b32 s44, s29, 3"); p("s_mul_i32 s45, s44, 3"); p(f"s_add_u32 {rb}, s45, s73")
            p(f"s_cmp_ge_u32 {rb}, 12"); p("s_cselect_b32 s46, 12, 0"); p(f"s_sub_u32 {rb}, {rb}, s46")
            p(f"s_add_u32 {ro}, s44, s73")
            p(f"s_cmp_ge_u32 {ro}, 10"); p("s_cselect_b32 s46, 10, 0"); p(f"s_sub_u32 {ro}, {ro}, s46")
            p(f"s_cmp_ge_u32 {ro}, 5"); p("s_cselect_b32 s46, 5, 0"); p(f"s_sub_u32 {ro}, {ro}, s46")
        else:
            p(f"s_mov_b32 {rb}, 0"); p(f"s_mov_b32 {ro}, 0")

    def emit(self):
        p = self.p; cfg = self.cfg
        if cfg.stamps: p("s_memrealtime s[76:77]")
        if cfg.map81:
            MAP = """s_and_b32 s73, s2, 7
        s_lshr_b32 s31, s2, 3
        s_and_b32 s44, s31, 1
        s_lshl_b32 s26, s73, 1
        s_add_u32 s26, s26, s44
        s_bfe_u32 s28, s31, 0x10001
        s_lshr_b32 s27, s31, 2
        s_lshl_b32 s29, s26, 1
        s_add_u32 s29, s29, s28"""
        else:
            MAP = """s_and_b32 s44, s2, 7
        s_lshr_b32 s31, s2, 3
        s_lshr_b32 s73, s44, 1
        s_and_b32 s3, s44, 1
        s_and_b32 s28, s31, 1
        s_lshr_b32 s45, s31, 1
        s_and_b32 s26, s45, 3
        s_lshl_b32 s46, s73, 2
        s_add_u32 s26, s26, s46
        s_lshr_b32 s27, s45, 2
        s_lshl_b32 s46, s3, 2
        s_add_u32 s27, s27, s46
        s_lshl_b32 s29, s26, 1
        s_add_u32 s29, s29, s28"""
        p(f"""
        s_cmp_ge_u32 s2, 256
        s_cbranch_scc1 L_end
        s_load_dwordx16 s[4:19], s[0:1], 0
        s_load_dwordx4 s[20:23], s[0:1], 64
        s_getpc_b64 s[74:75]
        v_and_b32 v1, 63, v0
        v_lshrrev_b32 v2, 6, v0
        v_readfirstlane_b32 s24, v2
        {MAP}
        s_and_b32 s25, s24, 3
        s_mov_b32 s72, 0
        s_waitcnt lgkmcnt(0)
        """)
        self.stamp(0)
        p(f"""
        s_mov_b32 s40, s22
        s_mov_b32 s41, s23
        s_mov_b32 s42, {WS_SIZE}
        s_mov_b32 s43, 0x20000
        s_cmp_ge_u32 s24, 4
        s_cbranch_scc0 L_compute
        s_cmp_eq_u32 s28, 0
        s_cbranch_scc0 L_helper_h
        """)
        self.helper_t12('kv')
        p("s_branch L_hp_post")
        p.label("L_helper_h")
        self.helper_t12('h')
        p.label("L_hp_post")
        self.helper_post()
        p.label("L_compute")
        self.compute_path()
        p.label("L_end")
        p("s_endpgm")

    def helper_t12(self, kind):
        p = self.p; cfg = self.cfg
        VO = 8; SD = 48
        NW = 5 if kind == 'kv' else 6
        n = 4 + NW + (3 if kind == 'kv' and not cfg.noqdma else 0)
        wstep = 245760 if kind == 'kv' else 196608
        p(f"""
        s_mul_i32 s44, s26, 163840
        s_add_u32 s32, s4, s44
        s_addc_u32 s33, s5, 0
        s_sub_u32 s34, 2621440, s44
        s_mov_b32 s35, 0x20000
        v_lshrrev_b32 v2, 3, v1
        v_and_b32 v3, 7, v1
        v_xor_b32 v4, v3, v2
        v_lshlrev_b32 v4, 4, v4
        s_lshl_b32 s44, s25, 5
        v_add_u32 v5, s44, v2
        v_mul_u32_u24 v5, 1280, v5
        v_add_u32 v8, v5, v4
        v_add_u32 v9, 10240, v8
        v_add_u32 v10, 20480, v8
        v_add_u32 v11, 30720, v8
        s_lshl_b32 s48, s25, 12
        s_add_u32 s49, s48, 1024
        s_add_u32 s50, s48, 2048
        s_add_u32 s51, s48, 3072
        s_mov_b32 s60, 0
        """)
        if cfg.prio and cfg.prio0: p(f"s_setprio {cfg.prio0}")
        self.rot10("s59")
        p("s_lshl_b32 s61, s59, 7")
        p(f"s_mul_i32 s62, s59, {wstep}")
        p("s_mul_i32 s66, s59, 245760")
        for b in range(4):
            p(f"s_mov_b32 m0, s{SD+b}")
            p(f"buffer_load_dwordx4 v{VO+b}, s[32:35], s61 offen lds")
        if kind == 'kv':
            p("s_mul_i32 s44, s27, 160"); p("s_add_u32 s44, s44, 1280")
            p("s_add_u32 s36, s6, s44"); p("s_addc_u32 s37, s7, 0"); p("s_sub_u32 s38, 2457600, s44")
        else:
            p("s_mul_i32 s44, s27, 384")
            p("s_add_u32 s36, s12, s44"); p("s_addc_u32 s37, s13, 0"); p("s_sub_u32 s38, 1966080, s44")
        p("s_mov_b32 s39, 0x20000")
        def seg_pattern(dst):
            p(f"""
            v_mul_u32_u24 v3, 6554, v2
            v_lshrrev_b32 v3, 16, v3
            v_mul_u32_u24 v4, 10, v3
            v_sub_u32 v4, v2, v4
            v_and_b32 v5, 0x33, v3
            v_and_b32 v6, 4, v3
            v_lshl_or_b32 v5, v6, 1, v5
            v_and_b32 v6, 8, v3
            v_lshrrev_b32 v6, 1, v6
            v_or_b32 v5, v5, v6
            v_mul_u32_u24 v5, 3840, v5
            v_lshl_add_u32 v{dst}, v4, 4, v5
            """)
        if kind == 'kv':
            for a in range(5):
                p(f"""
                s_add_u32 s44, s25, {4*a}
                s_cmp_ge_u32 s44, 10
                s_cselect_b32 s45, 1, 0
                s_mul_i32 s46, s45, 10
                s_sub_u32 s46, s44, s46
                s_lshl_b32 s47, s46, 6
                v_add_u32 v2, s47, v1
                """)
                seg_pattern(VO+4+a)
                p(f"""
                s_mul_i32 s47, s45, 1280
                v_add_u32 v{VO+4+a}, s47, v{VO+4+a}
                s_mul_i32 s47, s45, {SEG}
                s_lshl_b32 s46, s46, 10
                s_add_u32 s47, s47, s46
                s_add_u32 s{SD+4+a}, s47, 16384
                s_mov_b32 m0, s{SD+4+a}
                buffer_load_dwordx4 v{VO+4+a}, s[36:39], s62 offen lds
                """)
        else:
            for a in range(6):
                pat = a % 3
                p(f"""
                v_add_u32 v2, {64*pat}, v1
                v_mul_u32_u24 v3, 2731, v2
                v_lshrrev_b32 v3, 16, v3
                v_mul_u32_u24 v4, 24, v3
                v_sub_u32 v4, v2, v4
                v_and_b32 v5, 6, v3
                v_xor_b32 v4, v4, v5
                v_lshrrev_b32 v5, 2, v3
                v_lshlrev_b32 v5, 3, v5
                v_and_b32 v6, 3, v3
                v_add_u32 v5, v5, v6
                s_lshl_b32 s44, s25, 4
                s_add_u32 s44, s44, {4*(a//3)}
                v_add_u32 v5, s44, v5
                v_mul_u32_u24 v5, 3072, v5
                v_lshl_add_u32 v{VO+4+a}, v4, 4, v5
                s_mul_i32 s44, s25, 6144
                s_add_u32 s{SD+4+a}, s44, {16384 + a*1024}
                s_mov_b32 m0, s{SD+4+a}
                buffer_load_dwordx4 v{VO+4+a}, s[36:39], s62 offen lds
                """)
        if kind == 'kv':
            p("s_mul_i32 s44, s27, 160")
            p("s_add_u32 s68, s6, s44"); p("s_addc_u32 s69, s7, 0"); p("s_sub_u32 s70, 2457600, s44"); p("s_mov_b32 s71, 0x20000")
            p("s_mul_i32 s44, s25, 160"); p("s_mul_i32 s67, s25, 2560"); p(f"s_add_u32 s67, s67, {QOFF}")
            for a in range(3):
                p(f"v_add_u32 v2, s44, v1")
                if a: p(f"v_add_u32 v2, {64*a}, v2")
                p("v_min_u32 v2, 639, v2")
                seg_pattern(20 + a)
        def issue_q(buf):
            if kind != 'kv' or cfg.noqdma: return
            for a in range(3):
                p(f"s_add_u32 m0, {buf}, s67") if a == 0 else p(f"s_add_u32 m0, m0, 1024")
                if a == 2: p("s_mov_b32 exec_hi, 0")
                p(f"buffer_load_dwordx4 v{20+a}, s[68:71], s66 offen lds")
                if a == 2: p("s_mov_b64 exec, -1")
        issue_q("s60")
        def advance():
            p(f"s_add_u32 s60, s60, {STG}")
            p(f"s_cmp_eq_u32 s60, {3*STG}")
            p("s_cselect_b32 s60, 0, s60")
            p("s_add_u32 s61, s61, 128")
            p(f"s_add_u32 s62, s62, {wstep}")
            p("s_add_u32 s66, s66, 245760")
            p("s_add_u32 s59, s59, 1")
            p("s_cmp_eq_u32 s59, 10")
            p("s_cselect_b32 s59, 0, s59")
            p("s_cselect_b32 s61, 0, s61")
            p("s_cselect_b32 s62, 0, s62")
            p("s_cselect_b32 s66, 0, s66")
        def issue():
            for i in range(4 + NW):
                p(f"s_add_u32 m0, s60, s{SD+i}")
                srd, so = ("s[32:35]", "s61") if i < 4 else ("s[36:39]", "s62")
                p(f"buffer_load_dwordx4 v{VO+i}, {srd}, {so} offen lds")
            issue_q("s60")
            advance()
        p("s_mov_b32 s96, s16"); p("s_mov_b32 s97, s17"); p("s_movk_i32 s98, 1280"); p("s_mov_b32 s99, 0x20000")
        p("v_lshlrev_b32 v2, 4, v1")
        p(f"s_mov_b32 m0, {GW}")
        p("buffer_load_dwordx4 v2, s[96:99], 0 offen lds")
        p("s_mov_b32 exec_lo, 0xffff"); p("s_mov_b32 exec_hi, 0")
        p("buffer_load_dwordx4 v2, s[96:99], 0 offen offset:1024 lds")
        p("s_mov_b64 exec, -1")
        advance()
        self.stamp(1)
        q = [("s0", n), ("gw", 2)]
        def push(tag, k): q.append((tag, k))
        def wait_for(tag):
            tags = [t for t, _ in q]
            if tag not in tags: return
            idx = tags.index(tag)
            p(f"s_waitcnt vmcnt({sum(k for _, k in q[idx+1:])})")
            del q[:idx+1]
        if cfg.early_s1:
            issue(); push("s1", n)
        wait_for("gw")
        self.stamp(2)
        p("s_barrier")
        if not cfg.early_s1:
            issue(); push("s1", n)
        issue(); push("s2", n)
        p(f"v_mov_b32 v2, {SY}")
        p(f"ds_read_b32 v3, v2 offset:{W_TAG}")
        p("s_waitcnt lgkmcnt(0)")
        p("v_readfirstlane_b32 s30, v3")
        for i in range(10):
            if i <= 8: wait_for(f"s{i+1}")
            p("s_barrier")
            if i == 0: self.stamp(3)
            if cfg.hst and cfg.stamps and i in (0, 1, 2, 4, 6, 8, 9): p(f"s_memtime s[{80+2*(1+(0,1,2,4,6,8,9).index(i))}:{81+2*(1+(0,1,2,4,6,8,9).index(i))}]")
            if i <= 6: issue(); push(f"s{i+3}", n)
            if i == 0 and kind == 'h':
                p("s_lshl_b32 s44, s27, 13"); p("s_lshl_b32 s45, s26, 9"); p("s_add_u32 s44, s44, s45"); p(f"s_add_u32 s44, s44, {WS_KVS}")
                p("s_cmp_eq_u32 s25, 0"); p(f"s_cselect_b32 s44, s44, {OOB}")
                p("v_and_b32 v2, 31, v1"); p("v_lshlrev_b32 v2, 4, v2"); p("v_add_u32 v2, s44, v2")
                for e in range(4): p(f"v_mov_b32 v{32+e}, 0")
                p("s_mov_b32 exec_hi, 0")
                p("buffer_store_dwordx4 v[32:35], v2, s[40:43], 0 offen sc1")
                p("s_mov_b64 exec, -1")
                push("zs", 1)
            if i == 3 and kind == 'h':
                wait_for("zs")
                p("s_lshl_b32 s44, s27, 11"); p("s_lshl_b32 s45, s26, 7"); p("s_add_u32 s44, s44, s45"); p(f"s_add_u32 s58, s44, {F_KS}")
                p("s_cmp_eq_u32 s25, 0"); p(f"s_cselect_b32 s58, s58, {OOB}")
                self.flag_store("s58"); push("zf", 1)
            if cfg.stouch and i in (2, 4, 6):
                if i == 2 or i == 4:
                    k0 = 0 if i == 2 else 8
                    p("s_mul_i32 s44, s2, 7680"); p("s_mul_i32 s45, s25, 1920"); p("s_add_u32 s44, s44, s45")
                    p("s_add_u32 s46, s14, s44"); p("s_addc_u32 s47, s15, 0")
                    for k in range(k0, min(15, k0 + 8)): p(f"s_load_dword s3, s[46:47], {128*k}")
                else:
                    p("s_mul_i32 s44, s2, 3200"); p("s_mul_i32 s45, s25, 800"); p("s_add_u32 s44, s44, s45")
                    p(f"s_min_u32 s44, s44, {819200 - 7*128}")
                    p("s_add_u32 s46, s8, s44"); p("s_addc_u32 s47, s9, 0")
                    for k in range(7): p(f"s_load_dword s3, s[46:47], {128*k}")
            if i == 5 and cfg.local:
                p("v_min_u32 v2, 15, v1"); p("v_lshlrev_b32 v2, 2, v2")
                p("s_lshl_b32 s44, s26, 7"); p(f"s_add_u32 s44, s44, {F_X}")
                p("buffer_load_dword v31, v2, s[40:43], s44 offen sc1")
                push("xc", 1)
            if i == 6 and kind == 'kv':
                NZ = p.newlabel("L_nz")
                p("s_sub_u32 s3, s25, 1"); p("s_cmp_lt_u32 s3, 2"); p(f"s_cbranch_scc0 {NZ}")
                p("s_lshl_b32 s58, s27, 11"); p("s_lshl_b32 s44, s3, 10"); p("s_add_u32 s58, s58, s44"); p(f"s_add_u32 s58, s58, {F_KS}")
                self.poll_flags_safe("s58", 8)
                self.lds_signal(W_ZOK)
                p.label(NZ)
            if i == 7 and cfg.local:
                wait_for("xc")
                p("s_getreg_b32 s45, hwreg(HW_REG_XCC_ID)"); p("s_and_b32 s45, s45, 7")
                p("s_and_b32 s44, s30, 0xfffffff0"); p("s_or_b32 s44, s44, 8"); p("s_or_b32 s44, s44, s45")
                p("v_cmp_eq_u32 vcc, s44, v31")
                p("s_nop 1")
                p("s_cmp_eq_u64 vcc, -1")
                p("s_cselect_b32 s72, 1, 2")
                p(f"v_mov_b32 v2, {SY}"); p("v_mov_b32 v3, s72")
                p(f"ds_write_b32 v2, v3 offset:{W_LOC}")
                p("s_waitcnt lgkmcnt(0)")
            if kind == 'h' and not cfg.t12only:
                if i == cfg.jl: self.job_load(); push("jl", 10)
                if i == cfg.jp:
                    wait_for("jl"); self.job_proc(); push("js", 10)
                if i == cfg.jf:
                    wait_for("js"); self.flag_store("s65"); push("jf", 1)

    def job_load(self):
        p = self.p
        p(f"""
        s_and_b32 s44, s2, 7
        s_lshl_b32 s44, s44, 4
        s_lshr_b32 s45, s31, 1
        s_add_u32 s64, s44, s45
        s_lshl_b32 s44, s25, 7
        s_add_u32 s64, s64, s44
        s_mul_i32 s70, s64, 964
        s_lshr_b32 s70, s70, 16
        s_mul_i32 s44, s70, 68
        s_sub_u32 s71, s64, s44
        s_mul_i32 s68, s25, {STG}
        s_add_u32 s68, s68, 40960
        s_cmp_eq_u32 s25, 3
        s_cselect_b32 s68, {KVT}, s68
        s_cselect_b32 s67, 0, 1024
        s_lshl_b32 s44, s70, 12
        s_lshr_b32 s45, s71, 2
        s_lshl_b32 s45, s45, 7
        s_add_u32 s44, s44, s45
        s_and_b32 s45, s71, 3
        s_lshl_b32 s45, s45, 2
        s_add_u32 s44, s44, s45
        s_add_u32 s65, s44, {F_J}
        s_cmp_ge_u32 s64, 272
        s_cselect_b32 s65, {OOB}, s65
        """)
        for u in range(10):
            p(f"""
            v_add_u32 v2, {64*u}, v1
            v_mul_u32_u24 v3, 3277, v2
            v_lshrrev_b32 v{32+u}, 16, v3
            v_mul_u32_u24 v4, 20, v{32+u}
            v_sub_u32 v4, v2, v4
            v_lshlrev_b32 v{44+u}, 4, v4
            """)
        B, C, Dn = [p.newlabel("L_jr") for _ in range(3)]
        p("s_cmp_lt_u32 s71, 48")
        p("s_cselect_b32 s96, s14, s8"); p("s_cselect_b32 s97, s15, s9")
        p("s_mov_b32 s98, 819200"); p("s_cselect_b32 s98, 1966080, s98")
        p(f"s_cbranch_scc0 {B}")
        p("s_lshl_b32 s44, s71, 5")
        for u in range(10): p(f"v_add_u32 v{32+u}, s44, v{32+u}")
        p(f"s_branch {Dn}")
        p.label(B)
        p("s_cmp_lt_u32 s71, 64"); p(f"s_cbranch_scc0 {C}")
        p("s_sub_u32 s44, s71, 48"); p("s_mul_i32 s44, s44, 40")
        for u in range(10):
            p(f"""
            v_lshrrev_b32 v2, 4, v{32+u}
            v_mul_u32_u24 v2, 20, v2
            v_and_b32 v3, 15, v{32+u}
            v_add3_u32 v{32+u}, v2, v3, s44
            """)
        p(f"s_branch {Dn}")
        p.label(C)
        p("s_sub_u32 s44, s71, 64"); p("s_lshl_b32 s44, s44, 3")
        for u in range(10):
            p(f"""
            v_lshrrev_b32 v2, 4, v{32+u}
            v_lshlrev_b32 v2, 2, v2
            v_bfe_u32 v3, v{32+u}, 2, 2
            v_add_u32 v3, 2, v3
            v_and_b32 v3, 3, v3
            v_add3_u32 v2, v2, v3, s44
            v_mul_u32_u24 v2, 20, v2
            v_and_b32 v3, 3, v{32+u}
            v_add3_u32 v{32+u}, v2, v3, 16
            """)
        p.label(Dn)
        p("s_mov_b32 s99, 0x20000")
        p("s_mul_i32 s44, s70, 320")
        p("s_cmp_ge_u32 s64, 272")
        p(f"s_cselect_b32 s44, {OOB}, s44")
        for u in range(10):
            p(f"v_mul_u32_u24 v2, 1280, v{32+u}")
            p(f"v_add3_u32 v{32+u}, v2, v{44+u}, s44")
        p("s_mov_b32 s44, s68")
        for u in range(10):
            p("s_mov_b32 m0, s44")
            p(f"buffer_load_dwordx4 v{32+u}, s[96:99], 0 offen lds")
            p("s_add_u32 s44, s44, s67")

    def job_proc(self):
        p = self.p
        p("""
        v_lshrrev_b32 v2, 4, v1
        v_bfe_u32 v3, v1, 2, 2
        v_and_b32 v4, 3, v1
        v_lshl_add_u32 v5, v2, 2, v3
        v_mul_u32_u24 v5, 320, v5
        v_mul_u32_u24 v6, 40, v4
        v_add3_u32 v5, v5, v6, s68
        """)
        for hf in range(2):
            for t in range(5):
                for b2 in range(2):
                    r = 32 + (hf*5 + t)*4 + 2*b2
                    p(f"ds_read_b64_tr_b16 v[{r}:{r+1}], v5 offset:{16*b2*320 + hf*160 + 8*t}")
        p(f"s_mul_i32 s44, s70, {2*WP_CG}"); p("s_mul_i32 s45, s71, 5120"); p("s_add_u32 s44, s44, s45"); p(f"s_add_u32 s44, s44, {WS_WP}")
        p("s_cmp_ge_u32 s64, 272"); p(f"s_cselect_b32 s44, {OOB}, s44")
        p("v_lshlrev_b32 v3, 4, v1"); p("v_add_u32 v3, s44, v3")
        p("v_add_u32 v4, 4096, v3"); p(f"v_add_u32 v6, {WP_CG}, v3"); p(f"v_add_u32 v7, {WP_CG+4096}, v3")
        p("s_waitcnt lgkmcnt(0)")
        for hf in range(2):
            for t in range(5):
                r = 32 + (hf*5 + t)*4
                a = ("v3" if t < 4 else "v4") if hf == 0 else ("v6" if t < 4 else "v7")
                off = (t*1024) if t < 4 else 0
                p(f"buffer_store_dwordx4 v[{r}:{r+3}], {a}, s[40:43], 0 offen offset:{off} sc1")

    def helper_post(self):
        p = self.p
        if self.cfg.t12only:
            p("s_waitcnt vmcnt(0)"); self.stamp_flush(8); p("s_branch L_end"); return
        self.stamp(4)
        if self.cfg.prio: p("s_setprio 3")
        NJ = p.newlabel("L_nj")
        p("s_cmp_eq_u32 s25, 0"); p(f"s_cbranch_scc1 {NJ}")
        p("s_lshr_b32 s58, s27, 1"); p("s_lshl_b32 s58, s58, 12")
        p("s_sub_u32 s44, s25, 1"); p("s_mul_i32 s44, s44, 6"); p("s_min_u32 s44, s44, 11"); p("s_lshl_b32 s44, s44, 7")
        p("s_add_u32 s58, s58, s44"); p(f"s_add_u32 s58, s58, {F_J}")
        Lp, Dp = p.newlabel("L_jp"), p.newlabel("L_jpd")
        p("s_add_u32 s4, s22, s58"); p("s_addc_u32 s5, s23, 0")
        p(f"s_mov_b32 s47, {POLL_MAX}")
        p.label(Lp)
        p("s_mov_b32 s46, 0")
        for b in range(2):
            for i in range(3): p(f"s_load_dwordx4 s[{8+4*i}:{11+4*i}], s[4:5], {(3*b+i)*128} glc")
            p("s_waitcnt lgkmcnt(0)")
            for i in range(12):
                p(f"s_xor_b32 s{8+i}, s{8+i}, s30"); p(f"s_or_b32 s46, s46, s{8+i}")
        p("s_cmp_eq_u32 s46, 0"); p(f"s_cbranch_scc1 {Dp}")
        p("s_sleep 1")
        p("s_sub_u32 s47, s47, 1"); p("s_cmp_lg_u32 s47, 0"); p(f"s_cbranch_scc1 {Lp}")
        p.label(Dp)
        self.lds_signal(W_JOK)
        p.label(NJ)
        N0 = p.newlabel("L_n0")
        p("s_cmp_eq_u32 s25, 0"); p(f"s_cbranch_scc0 {N0}")
        p(f"s_lshl_b32 s58, s26, 10"); p(f"s_add_u32 s58, s58, {F_H}")
        self.poll_flags("s58", 8)
        self.lds_signal(W_HR)
        self.stamp(5)
        p.label(N0)
        p("s_cmp_eq_u32 s28, 0"); p("s_cbranch_scc1 L_hp_kvcu")
        p("s_branch L_hp_or")
        p.label("L_hp_kvcu")
        N3x = p.newlabel("L_n3x")
        p("s_sub_u32 s59, s25, 1"); p("s_cmp_lt_u32 s59, 2"); p(f"s_cbranch_scc0 {N3x}")
        p("s_lshl_b32 s58, s27, 11"); p("s_lshl_b32 s44, s59, 10"); p("s_add_u32 s58, s58, s44"); p(f"s_add_u32 s58, s58, {F_KV}")
        self.poll_flags("s58", 8)
        self.lds_signal(W_KVF)
        p.label(N3x)
        self.lds_wait(W_KVF, 2)
        self.stamp2(4)
        p("v_lshrrev_b32 v2, 4, v1"); p("v_and_b32 v3, 15, v1")
        p(f"v_mov_b32 v7, {OOB}")
        p("v_add_u32 v4, 2, v2"); p("v_and_b32 v4, 3, v4"); p("v_lshrrev_b32 v5, 2, v3")
        p("v_cmp_eq_u32 s[56:57], v4, v5")
        VT = 8
        LA, LB, LE = [p.newlabel("L_kt") for _ in range(3)]
        p("v_lshlrev_b32 v4, 2, v1"); p("v_lshrrev_b32 v5, 1, v2"); p("v_lshlrev_b32 v6, 6, v2")
        p("s_cmp_ge_u32 s25, 2"); p(f"s_cbranch_scc1 {LA}")
        p("s_mul_i32 s44, s25, 3072")
        for i in range(3):
            p(f"v_add_u32 v{VT+i}, s44, v4")
            if i: p(f"v_add_u32 v{VT+i}, {1024*i}, v{VT+i}")
        p(f"s_branch {LE}")
        p.label(LA)
        p("s_cmp_eq_u32 s25, 2"); p(f"s_cbranch_scc0 {LB}")
        p("v_lshlrev_b32 v11, 10, v5"); p("v_add3_u32 v11, v11, v4, 0"); p("v_add_u32 v11, 6144, v11")
        p(f"v_cndmask_b32 v{VT}, v7, v11, s[56:57]")
        p(f"v_add_u32 v{VT+1}, {6144}, v6")
        p(f"v_add_u32 v{VT+2}, {6144+4}, v6")
        p(f"s_branch {LE}")
        p.label(LB)
        p(f"v_add_u32 v{VT}, {7168+32}, v6")
        p(f"v_add_u32 v{VT+1}, {7168+36}, v6")
        p(f"v_mul_u32_u24 v11, {1024+32}, v5")
        p(f"v_add3_u32 v{VT+2}, v11, v6, 0"); p(f"v_add_u32 v{VT+2}, {6144+16}, v{VT+2}")
        p.label(LE)
        SUM = 16
        p(f"s_lshl_b32 s48, s27, 13"); p(f"s_add_u32 s48, s48, {WS_KVS}")
        for i in range(3):
            for e in range(4):
                p(f"buffer_load_dword v{SUM+4*i+e}, v{VT+i}, s[40:43], s48 offen offset:{256*e} sc1")
        p("s_waitcnt vmcnt(0)")
        self.stamp2(5)
        p("s_mul_i32 s44, s25, 1536"); p(f"s_add_u32 s44, s44, {KVT}")
        p("v_lshlrev_b32 v4, 3, v1"); p("v_add_u32 v5, s44, v4")
        for i in range(3):
            p(f"v_cvt_pk_bf16_f32 v{SUM+4*i}, v{SUM+4*i}, v{SUM+4*i+1}")
            p(f"v_cvt_pk_bf16_f32 v{SUM+4*i+1}, v{SUM+4*i+2}, v{SUM+4*i+3}")
            p(f"ds_write_b64 v5, v[{SUM+4*i}:{SUM+4*i+1}] offset:{i*512}")
        p("s_waitcnt lgkmcnt(0)")
        self.lds_signal(W_KVR)
        self.lds_wait(W_KVR, 4)
        self.stamp(6)
        self.stamp2(6)
        TT = 68
        p("v_lshlrev_b32 v5, 3, v1"); p(f"v_add_u32 v5, {KVT}, v5")
        for tau in range(12): p(f"ds_read_b64 v[{TT+2*tau}:{TT+2*tau+1}], v5 offset:{tau*512}")
        p("v_lshrrev_b32 v2, 4, v1"); p("v_and_b32 v3, 15, v1"); p("v_lshrrev_b32 v5, 2, v3")
        for h in range(4):
            p(f"v_cmp_eq_u32 s[{56+2*h}:{57+2*h}], {h}, v2")
            p(f"v_cmp_eq_u32 s[{64+2*h}:{65+2*h}], {(h+2)&3}, v5")
        p("s_waitcnt lgkmcnt(0)")
        KVt = lambda h: TT + 2*h
        EXL, E0H, XXt = TT + 8, TT + 10, TT + 12
        ZL = lambda h: TT + 14 + 2*h
        ZH = TT + 22
        FR = 96
        for h in range(4):
            e0 = FR + 12*h; ex = e0 + 4; dn = e0 + 8
            mg, mr = f"s[{56+2*h}:{57+2*h}]", f"s[{64+2*h}:{65+2*h}]"
            p(f"v_mov_b32 v{e0}, v{KVt(h)}"); p(f"v_mov_b32 v{e0+1}, v{KVt(h)+1}")
            p(f"v_cndmask_b32 v{e0+2}, 0, v{E0H}, {mg}"); p(f"v_cndmask_b32 v{e0+3}, 0, v{E0H+1}, {mg}")
            p(f"v_cndmask_b32 v{ex}, 0, v{EXL}, {mr}"); p(f"v_cndmask_b32 v{ex+1}, 0, v{EXL+1}, {mr}")
            p(f"v_cndmask_b32 v{ex+2}, 0, v{XXt}, {mr}"); p(f"v_cndmask_b32 v{ex+3}, 0, v{XXt+1}, {mr}")
            p(f"v_mov_b32 v{dn}, v{ZL(h)}"); p(f"v_mov_b32 v{dn+1}, v{ZL(h)+1}")
            p(f"v_cndmask_b32 v{dn+2}, 0, v{ZH}, {mg}"); p(f"v_cndmask_b32 v{dn+3}, 0, v{ZH+1}, {mg}")
        self.lds_wait(W_BQ, 4, vtmp=(6, 7))
        for k in range(2):
            BQ = 16 if k == 0 else 32
            p(f"s_lshl_b32 s44, s25, 1"); p(f"s_add_u32 s44, s44, {k}")
            p("s_and_b32 s45, s44, 3"); p("s_mul_i32 s45, s45, 2560")
            p(f"s_mov_b32 s46, {BQL1}"); p("s_cmp_lt_u32 s44, 4"); p(f"s_cselect_b32 s46, {BQL0}, s46"); p("s_add_u32 s45, s45, s46")
            p("v_lshlrev_b32 v4, 3, v1"); p("v_add_u32 v5, s45, v4")
            for h in range(4):
                p(f"ds_read_b64 v[{BQ+4*h}:{BQ+4*h+1}], v5 offset:{h*512}")
                p(f"ds_read_b64 v[{BQ+4*h+2}:{BQ+4*h+3}], v5 offset:2048")
        p("v_lshlrev_b32 v4, 4, v1")
        p("s_waitcnt lgkmcnt(0)")
        NUM = 48; DN = 64; EXO = 80; RR = 144; OO = 84
        for k in range(2):
            BQ = 16 if k == 0 else 32
            bq = lambda h: vr(BQ + 4*h, 4)
            for h in range(4):
                e0 = FR + 12*h
                p(f"v_mfma_f32_16x16x32_bf16 {vr(NUM+4*h,4)}, {vr(e0,4)}, {bq(h)}, 0")
                p(f"v_mfma_f32_16x16x32_bf16 {vr(DN+4*h,4)}, {vr(e0+8,4)}, {bq(h)}, 0")
                c = "0" if h == 0 else vr(EXO, 4)
                p(f"v_mfma_f32_16x16x32_bf16 {vr(EXO,4)}, {vr(e0+4,4)}, {bq(h)}, {c}")
            p(f"s_mov_b32 s44, {EPS6}")
            for h in range(4): p(f"v_add_f32 v{RR+h}, s44, v{DN+4*h}")
            for h in range(4): p(f"v_rcp_f32 v{RR+h}, v{RR+h}")
            p(f"v_cndmask_b32 v{RR+4}, v{RR}, v{RR+2}, s[56:57]")
            p(f"v_cndmask_b32 v{RR+4}, v{RR+4}, v{RR+3}, s[58:59]")
            p(f"v_cndmask_b32 v{RR+4}, v{RR+4}, v{RR+1}, s[62:63]")
            for h in range(4):
                for i in range(4): p(f"v_mul_f32 v{NUM+4*h+i}, v{NUM+4*h+i}, v{RR+h}")
            for i in range(4): p(f"v_mul_f32 v{EXO+i}, v{EXO+i}, v{RR+4}")
            O_ = OO if k == 0 else 148
            for h in range(4):
                p(f"v_cvt_pk_bf16_f32 v{O_+2*h}, v{NUM+4*h}, v{NUM+4*h+1}")
                p(f"v_cvt_pk_bf16_f32 v{O_+2*h+1}, v{NUM+4*h+2}, v{NUM+4*h+3}")
            p(f"v_cvt_pk_bf16_f32 v{O_+8}, v{EXO}, v{EXO+1}")
            p(f"v_cvt_pk_bf16_f32 v{O_+9}, v{EXO+2}, v{EXO+3}")
            p("s_lshl_b32 s50, s26, 3"); p("s_lshl_b32 s44, s25, 1"); p("s_add_u32 s50, s50, s44"); p(f"s_add_u32 s50, s50, {k}")
            p(f"""
            s_mul_i32 s44, s50, {AP_ST}
            s_add_u32 s44, s44, {WS_AP}
            s_lshl_b32 s45, s27, 11
            s_add_u32 s45, s45, s44
            s_add_u32 s45, s45, {48*1024}
            v_add_u32 v5, s45, v4
            s_lshr_b32 s45, s27, 1
            s_lshl_b32 s45, s45, 10
            s_and_b32 s46, s27, 1
            s_lshl_b32 s46, s46, 3
            s_add_u32 s45, s45, s46
            s_add_u32 s45, s45, s44
            s_add_u32 s45, s45, {64*1024}
            v_add_u32 v6, s45, v4
            """)
            p(f"buffer_store_dwordx4 v[{O_}:{O_+3}], v5, s[40:43], 0 offen sc1")
            p(f"buffer_store_dwordx4 v[{O_+4}:{O_+7}], v5, s[40:43], 0 offen offset:1024 sc1")
            p(f"buffer_store_dwordx2 v[{O_+8}:{O_+9}], v6, s[40:43], 0 offen sc1")
        p("s_waitcnt vmcnt(0)")
        p("s_lshl_b32 s44, s26, 10"); p("s_lshl_b32 s45, s27, 7"); p("s_add_u32 s44, s44, s45"); p(f"s_add_u32 s58, s44, {F_O}")
        self.publish_last(W_PUB2, 4, "s58")
        self.stamp2(7)
        p.label("L_hp_or")
        N1 = p.newlabel("L_n1")
        p("s_cmp_eq_u32 s25, 0"); p(f"s_cbranch_scc0 {N1}")
        p(f"s_lshl_b32 s58, s26, 10"); p(f"s_add_u32 s58, s58, {F_O}")
        self.poll_flags("s58", 8)
        self.lds_signal(W_OR)
        self.stamp(7)
        p.label(N1)
        p("s_waitcnt lgkmcnt(0)")
        self.stamp_flush(8)
        p("s_branch L_end")

    def compute_path(self):
        p = self.p; cfg = self.cfg
        p("s_cmp_eq_u32 s25, 0"); p("s_cbranch_scc0 L_c_n0")
        p("v_lshlrev_b32 v3, 2, v1"); p(f"v_add_u32 v3, {SY}, v3"); p("v_mov_b32 v4, 0")
        p("s_mov_b64 exec, -2")
        p("ds_write_b32 v3, v4")
        p("s_mov_b64 exec, -1")
        p("s_cmp_eq_u32 s2, 0"); p("s_cbranch_scc0 L_c_n0")
        p("s_memrealtime s[44:45]")
        p("s_mov_b32 s96, s20"); p("s_mov_b32 s97, s21"); p("s_movk_i32 s98, 256"); p("s_mov_b32 s99, 0x20000")
        p("s_waitcnt lgkmcnt(0)")
        p("s_or_b32 s44, s44, 1")
        p("v_mov_b32 v3, s44"); p("v_mov_b32 v4, 0")
        p("s_mov_b64 exec, 1")
        p("buffer_store_dword v3, v4, s[96:99], 0 offen sc1")
        p("s_mov_b64 exec, -1")
        p.label("L_c_n0")
        p("s_cmp_eq_u32 s25, 3"); p("s_cbranch_scc0 L_c_n3")
        p("s_mov_b64 exec, 0xff")
        p("s_lshl_b32 s44, s31, 10")
        p("v_lshlrev_b32 v3, 7, v1"); p("v_add_u32 v3, s44, v3")
        p(f"v_min_u32 v3, CODE_BYTES_M, v3")
        p(f"global_load_dword v31, v3, s[74:75]")
        p("s_mov_b64 exec, -1")
        p("s_mov_b32 s96, s20"); p("s_mov_b32 s97, s21"); p("s_movk_i32 s98, 256"); p("s_mov_b32 s99, 0x20000")
        p("v_mov_b32 v4, 0")
        p(f"s_mov_b32 s47, {POLL_MAX*4}")
        p.label("L_c_tag")
        p("buffer_load_dword v3, v4, s[96:99], 0 offen sc1")
        p("s_waitcnt vmcnt(0)")
        p("v_readfirstlane_b32 s44, v3")
        p("s_cmp_lg_u32 s44, 0"); p("s_cbranch_scc1 L_c_tagd")
        p("s_sub_u32 s47, s47, 1"); p("s_cmp_lg_u32 s47, 0"); p("s_cbranch_scc1 L_c_tag")
        p.label("L_c_tagd")
        p(f"v_mov_b32 v2, {SY}")
        p(f"ds_write_b32 v2, v3 offset:{W_TAG}")
        if cfg.local:
            p("s_getreg_b32 s45, hwreg(HW_REG_XCC_ID)")
            p("s_and_b32 s45, s45, 7")
            p("s_and_b32 s44, s44, 0xfffffff0"); p("s_or_b32 s44, s44, 8"); p("s_or_b32 s44, s44, s45")
            p("s_lshl_b32 s45, s26, 7"); p("s_lshl_b32 s46, s28, 5"); p("s_add_u32 s45, s45, s46")
            p("s_lshl_b32 s46, s27, 2"); p("s_add_u32 s45, s45, s46"); p(f"s_add_u32 s45, s45, {F_X}")
            p("v_mov_b32 v4, s45"); p("v_mov_b32 v5, s44")
            p("s_mov_b64 exec, 1")
            p("buffer_store_dword v5, v4, s[40:43], 0 offen sc1")
            p("s_mov_b64 exec, -1")
        p.label("L_c_n3")
        if cfg.edge:
            DE = p.newlabel("L_edge")
            p("s_cmp_eq_u32 s28, 1"); p(f"s_cbranch_scc0 {DE}")
            p("s_cmp_eq_u32 s25, 1"); p(f"s_cbranch_scc0 {DE}")
            p("s_mov_b32 s64, s6"); p("s_mov_b32 s65, s7"); p("s_mov_b32 s66, 2457600"); p("s_mov_b32 s67, 0x20000")
            p("s_lshr_b32 s44, s31, 1"); p("s_mul_i32 s44, s44, 40")
            p("s_and_b32 s45, s2, 1"); p("s_mul_i32 s45, s45, 640")
            for m in range(4):
                p(f"""
                v_add_u32 v2, {64*m}, v1
                v_min_u32 v2, 239, v2
                v_mul_u32_u24 v3, 10923, v2
                v_lshrrev_b32 v3, 16, v3
                v_mul_u32_u24 v4, 6, v3
                v_sub_u32 v4, v2, v4
                v_lshrrev_b32 v5, 1, v4
                v_mul_u32_u24 v5, 1280, v5
                v_and_b32 v4, 1, v4
                v_lshlrev_b32 v4, 9, v4
                v_add_u32 v3, s44, v3
                v_mul_u32_u24 v3, 3840, v3
                v_add3_u32 v3, v3, v4, v5
                v_add_u32 v3, s45, v3
                buffer_load_dword v{28+m}, v3, s[64:67], 0 offen
                """)
            p.label(DE)
        if cfg.edge2:
            DE = p.newlabel("L_edge2")
            p("s_cmp_eq_u32 s28, 0"); p(f"s_cbranch_scc0 {DE}")
            p("s_and_b32 s46, s27, 3"); p("s_sub_u32 s46, s46, 1"); p("s_cmp_lt_u32 s46, 2"); p(f"s_cbranch_scc0 {DE}")
            p("s_sub_u32 s47, s25, 1"); p("s_cmp_lt_u32 s47, 2"); p(f"s_cbranch_scc0 {DE}")
            p("s_mov_b32 s64, s6"); p("s_mov_b32 s65, s7"); p("s_mov_b32 s66, 2457600"); p("s_mov_b32 s67, 0x20000")
            p("s_lshl_b32 s46, s46, 2"); p("s_and_b32 s44, s26, 3"); p("s_add_u32 s44, s44, s46")
            p("s_lshl_b32 s44, s44, 1"); p("s_add_u32 s44, s44, s47"); p("s_mul_i32 s44, s44, 40")
            p("s_and_b32 s45, s2, 1"); p("s_mul_i32 s45, s45, 640")
            for m in range(4):
                p(f"""
                v_add_u32 v2, {64*m}, v1
                v_min_u32 v2, 239, v2
                v_mul_u32_u24 v3, 10923, v2
                v_lshrrev_b32 v3, 16, v3
                v_mul_u32_u24 v4, 6, v3
                v_sub_u32 v4, v2, v4
                v_lshrrev_b32 v5, 1, v4
                v_mul_u32_u24 v5, 1280, v5
                v_and_b32 v4, 1, v4
                v_lshlrev_b32 v4, 9, v4
                v_add_u32 v3, s44, v3
                v_mul_u32_u24 v3, 3840, v3
                v_add3_u32 v3, v3, v4, v5
                v_add_u32 v3, s45, v3
                buffer_load_dword v{28+m}, v3, s[64:67], 0 offen
                """)
            p.label(DE)
        if cfg.kt: self.touch_setup()
        p("s_cmp_eq_u32 s28, 0")
        p("s_cbranch_scc0 L_c_h")
        self.t12_compute('kv')
        p("s_branch L_c_t4")
        p.label("L_c_h")
        self.t12_compute('h')
        p.label("L_c_t4")
        self.t4()
        p("s_branch L_end")

    def touch_setup(self):
        p = self.p; D = self.cfg.kt
        L1, L2, LX, LD = [p.newlabel("L_tc") for _ in range(4)]
        p("s_mov_b32 s67, 0x20000"); p("s_and_b32 s47, s2, 1")
        p("s_cmp_eq_u32 s25, 1"); p(f"s_cbranch_scc1 {L1}")
        p("s_cmp_eq_u32 s25, 2"); p(f"s_cbranch_scc1 {L2}")
        p("s_mov_b32 s64, s4"); p("s_mov_b32 s65, s5"); p("s_mov_b32 s66, 2621440"); p("s_mov_b32 s68, 0")
        p("s_cmp_eq_u32 s25, 0"); p(f"s_cbranch_scc0 {LX}")
        p("s_lshl_b32 s44, s73, 9"); p("s_lshl_b32 s45, s31, 4"); p("s_add_u32 s44, s44, s45"); p("s_mul_i32 s44, s44, 1280")
        p("v_lshlrev_b32 v28, 7, v1"); p("v_add_u32 v28, s44, v28")
        p("buffer_load_dword v29, v28, s[64:67], 0 offen")
        p("v_add_u32 v28, 8192, v28"); p("buffer_load_dword v30, v28, s[64:67], 0 offen")
        p("v_add_u32 v28, 8192, v28"); p("s_mov_b32 exec_hi, 0"); p("buffer_load_dword v31, v28, s[64:67], 0 offen"); p("s_mov_b64 exec, -1")
        p.label(LX)
        p(f"v_mov_b32 v28, {OOB}")
        p(f"s_branch {LD}")
        p.label(L1)
        p("s_mov_b32 s64, s6"); p("s_mov_b32 s65, s7"); p("s_mov_b32 s66, 2457600"); p("s_mov_b32 s68, 245760")
        p("""
        v_min_u32 v2, 29, v1
        v_cmp_le_u32 vcc, 15, v2
        v_cndmask_b32 v3, 0, 1, vcc
        v_mul_u32_u24 v4, 15, v3
        v_sub_u32 v4, v2, v4
        v_mul_u32_u24 v5, 13, v4
        v_lshrrev_b32 v5, 6, v5
        v_mul_u32_u24 v6, 5, v5
        v_sub_u32 v6, v4, v6
        s_lshl_b32 s44, s31, 1
        v_add_u32 v3, s44, v3
        v_mul_u32_u24 v3, 3840, v3
        v_mul_u32_u24 v5, 1280, v5
        v_lshl_add_u32 v3, v6, 7, v3
        s_mul_i32 s44, s47, 640
        v_add3_u32 v28, v3, v5, s44
        """)
        p(f"s_branch {LD + 'i'}")
        p.label(L2)
        p("s_mov_b32 s64, s12"); p("s_mov_b32 s65, s13"); p("s_mov_b32 s66, 1966080"); p("s_mov_b32 s68, 196608")
        p("""
        v_min_u32 v2, 23, v1
        v_cmp_le_u32 vcc, 12, v2
        v_cndmask_b32 v3, 0, 1, vcc
        v_mul_u32_u24 v4, 12, v3
        v_sub_u32 v4, v2, v4
        s_lshl_b32 s44, s31, 1
        v_add_u32 v3, s44, v3
        v_mul_u32_u24 v3, 3072, v3
        v_lshl_add_u32 v3, v4, 7, v3
        s_mul_i32 s44, s47, 1536
        v_add_u32 v28, s44, v3
        """)
        p.label(LD + 'i')
        for st in range(D):
            p(f"buffer_load_dword v29, v28, s[64:67], 0 offen")
            p("v_add_u32 v28, s68, v28")
        p.label(LD)

    def t12_compute(self, kind):
        p = self.p
        typ = 0 if kind == 'kv' else 1
        NT = 5 if kind == 'kv' else 6
        SETSZ = 16 + 4 * NT
        ACC = 32
        def xf(s, st): return SETSZ * s + 4 * st
        def wf(s, t): return SETSZ * s + 16 + 4 * t
        def acc(t, st): return ACC + (t * 4 + st) * 4
        if kind == 'kv':
            QACC = lambda i, st: 112 + (i*4 + st)*4
            QXACC = lambda k: 144 + 4*k
            GACC = 152
            QF = [72, 76, 80]; GF = 84
            NACC = 124
        else:
            GACC = 128; GF = 80; NACC = 100
        p("""
        s_lshr_b32 s48, s25, 1
        s_and_b32 s49, s25, 1
        v_lshrrev_b32 v2, 4, v1
        v_bfe_u32 v3, v1, 2, 2
        v_and_b32 v4, 3, v1
        v_bfe_u32 v5, v1, 3, 1
        s_lshl_b32 s44, s48, 3
        v_add_u32 v5, s44, v5
        v_lshlrev_b32 v5, 10, v5
        v_and_b32 v6, 7, v1
        v_lshl_add_u32 v5, v6, 7, v5
        v_xor_b32 v7, v2, v6
        v_lshl_add_u32 v8, v7, 4, v5
        v_xor_b32 v7, 4, v7
        v_lshl_add_u32 v9, v7, 4, v5
        v_lshrrev_b32 v5, 1, v2
        v_lshlrev_b32 v5, 4, v5
        v_and_b32 v6, 1, v2
        v_lshl_add_u32 v5, v6, 2, v5
        v_add_u32 v5, v5, v3
        """)
        self.rot10("s53")
        p("s_lshl_b32 s44, s53, 7"); p(f"s_add_u32 s44, s44, {GW}")
        p("v_lshlrev_b32 v19, 4, v2"); p("v_add_u32 v19, s44, v19")
        if kind == 'kv':
            p(f"""
            v_mul_u32_u24 v6, 160, v5
            v_add_u32 v7, {QOFF}, v6
            s_mul_i32 s44, s49, 80
            v_lshlrev_b32 v16, 3, v4
            v_add3_u32 v16, v16, v7, s44
            v_mul_u32_u24 v17, 40, v4
            v_add3_u32 v17, v17, v7, 32
            v_add_u32 v6, 16384, v6
            v_lshlrev_b32 v7, 3, v4
            v_add3_u32 v10, v6, v7, s44
            v_lshrrev_b32 v7, 1, v4
            v_xor_b32 v7, s49, v7
            v_mul_u32_u24 v7, {SEG}, v7
            v_and_b32 v13, 1, v4
            v_mul_u32_u24 v13, 40, v13
            v_add3_u32 v13, v13, v6, s44
            v_add3_u32 v11, v13, v7, 32
            """)
            def wread(t, s, b2):
                ro = (32 * s + 8 * b2) * 160
                if t in (0, 1): return ("v10", 40 * t + ro)
                if t in (2, 3): return ("v10", SEG + 40 * (t - 2) + ro)
                return ("v11", ro)
            addr_regs = [8, 9, 10, 11, 16, 17]
            transposed = lambda t: False
        else:
            p(f"""
            v_mul_u32_u24 v6, 384, v5
            v_add_u32 v6, 16384, v6
            v_and_b32 v7, 1, v4
            v_lshl_add_u32 v6, v7, 3, v6
            v_and_b32 v7, 6, v5
            v_lshrrev_b32 v20, 1, v4
            s_mul_i32 s44, s49, 12
            v_add_u32 v20, s44, v20
            """)
            for t in range(6):
                p(f"""
                v_add_u32 v21, {2*t}, v20
                v_xor_b32 v21, v21, v7
                v_lshl_add_u32 v{10+t}, v21, 4, v6
                """)
            def wread(t, s, b2): return (f"v{10+t}", (32 * s + 8 * b2) * 384)
            addr_regs = [8, 9, 10, 11, 12, 13, 14, 15]
            transposed = lambda t: True
        def base_reads(s_dst, s_k):
            vx = "v8" if s_k == 0 else "v9"
            xs = [f"ds_read_b128 {ar(xf(s_dst, st), 4)}, {vx} offset:{st*2048}" for st in range(4)]
            ws = []
            for t in range(NT):
                for b2 in range(2):
                    a, off = wread(t, s_k, b2)
                    ws.append(f"ds_read_b64_tr_b16 {ar(wf(s_dst, t) + 2*b2, 2)}, {a} offset:{off}")
            return [xs[0]] + ws[:4] + [xs[1]] + ws[4:8] + [xs[2]] + ws[8:10] + [xs[3]] + ws[10:]
        def q_reads(s_k):
            L = []
            if kind == 'kv' and not self.cfg.noqread:
                for b2 in range(2):
                    ro = (32 * s_k + 8 * b2) * 160
                    L.append(f"ds_read_b64_tr_b16 {ar(QF[0]+2*b2, 2)}, v16 offset:{ro}")
                    L.append(f"ds_read_b64_tr_b16 {ar(QF[1]+2*b2, 2)}, v16 offset:{ro + 40}")
                    L.append(f"ds_read_b64_tr_b16 {ar(QF[2]+2*b2, 2)}, v17 offset:{ro}")
            L.append(f"ds_read_b128 {ar(GF, 4)}, v19 offset:{64*s_k}")
            return L
        def base_mfmas(s):
            L = []
            for st in range(4):
                for t in range(NT):
                    A, B = (ar(wf(s, t), 4), ar(xf(s, st), 4)) if transposed(t) else (ar(xf(s, st), 4), ar(wf(s, t), 4))
                    c = vr(acc(t, st), 4)
                    L.append(f"v_mfma_f32_16x16x32_bf16 {c}, {A}, {B}, {c}")
            return L
        def q_mfmas(s):
            if self.cfg.noqread: return
            if kind == 'kv':
                for st in range(4):
                    for i in range(2):
                        c = vr(QACC(i, st), 4)
                        p(f"v_mfma_f32_16x16x32_bf16 {c}, {ar(QF[i],4)}, {ar(xf(s, st),4)}, {c}")
            LA, LB = p.newlabel("L_qm"), p.newlabel("L_qm")
            p("s_cmp_eq_u32 s49, 0"); p(f"s_cbranch_scc0 {LA}")
            for ch in range(2):
                if ch == 1: p.label(LA)
                if kind == 'kv':
                    for k in range(2):
                        c = vr(QXACC(k), 4)
                        p(f"v_mfma_f32_16x16x32_bf16 {c}, {ar(QF[2],4)}, {ar(xf(s, 2*ch + k),4)}, {c}")
                c = vr(GACC, 4)
                p(f"v_mfma_f32_16x16x32_bf16 {c}, {ar(GF,4)}, {ar(xf(s, 2*typ + ch),4)}, {c}")
                if ch == 0: p(f"s_branch {LB}")
            p.label(LB)
        def phase(s, rd, extra=()):
            q_mfmas(s)
            M = base_mfmas(s); other = list(rd) + list(extra)
            k = 0
            for i, m in enumerate(M):
                if not self.cfg.nomfma: p(m)
                for _ in range(2):
                    if k < len(other): p(other[k]); k += 1
            while k < len(other): p(other[k]); k += 1
        for i in range(NACC): p(f"v_mov_b32 v{ACC+i}, 0")
        p("s_mov_b32 s50, 0"); p("s_mov_b32 s51, 10"); p(f"s_mov_b32 s55, {STG}"); p("s_movk_i32 s54, 128")
        p("s_waitcnt lgkmcnt(0)")
        self.stamp(1)
        p("s_barrier")
        p(f"v_mov_b32 v2, {SY}")
        p(f"ds_read_b32 v3, v2 offset:{W_TAG}")
        for r in base_reads(0, 0) + q_reads(0): p(r)
        p("s_waitcnt lgkmcnt(0)")
        p("v_readfirstlane_b32 s30, v3")
        self.stamp(2)
        if self.cfg.span: self.span_mark(2)
        L = f"L_t12_loop_{kind}"
        p.label(L)
        upd = ["s_add_u32 s50, s50, 1", "s_cmp_eq_u32 s50, 3",
               f"s_cselect_b32 s52, {(-2*STG) & 0xffffffff}, s55", "s_cselect_b32 s50, 0, s50"] + \
              [f"v_add_u32 v{r}, s52, v{r}" for r in addr_regs] + \
              ["s_add_u32 s53, s53, 1", "s_cmp_eq_u32 s53, 10", f"s_cselect_b32 s52, {(-1152) & 0xffffffff}, s54", "s_cselect_b32 s53, 0, s53",
               "v_add_u32 v19, s52, v19"]
        phase(0, q_reads(1) + base_reads(1, 1), upd)
        p("s_waitcnt lgkmcnt(0)")
        p("s_barrier")
        tch = ["buffer_load_dword v29, v28, s[64:67], 0 offen", "v_add_u32 v28, s68, v28"] if self.cfg.kt else []
        phase(1, q_reads(0) + base_reads(0, 0), tch)
        p("s_waitcnt lgkmcnt(0)")
        p("s_sub_u32 s51, s51, 1"); p("s_cmp_lg_u32 s51, 0"); p(f"s_cbranch_scc1 {L}")
        self.stamp(3)
        self.stamp2(1)
        if self.cfg.span: self.span_mark(3)
        if self.cfg.t12only:
            for k in range(4, 10): self.stamp(k)
            self.stamp_flush(10)
            p("s_branch L_end")
        p("s_waitcnt vmcnt(0)")
        p("v_lshlrev_b32 v18, 4, v1")
        if kind == 'h':
            self.epilogue_h(acc, last=True)
            self.epilogue_gate(GACC)
        else:
            self.epilogue_kv(acc)
            self.stamp3(6)
            self.epilogue_gate(GACC)
            self.epilogue_q(QACC, QXACC)
            self.stamp3(7)
        p("s_waitcnt vmcnt(0)")
        self.stamp3(8)
        if kind == 'h':
            p("s_lshl_b32 s44, s26, 10"); p("s_lshl_b32 s45, s27, 7"); p("s_add_u32 s44, s44, s45"); p(f"s_add_u32 s44, s44, {F_H}")
        else:
            p("s_lshl_b32 s44, s27, 11"); p("s_lshl_b32 s45, s26, 7"); p("s_add_u32 s44, s44, s45"); p(f"s_add_u32 s44, s44, {F_KV}")
        self.publish_last(W_PUB1, 4, "s44")
        self.stamp3(9)
        self.stamp(4)
        self.stamp2(2)
        if self.cfg.span: self.span_mark(4)

    def epilogue_gate(self, GACC):
        p = self.p
        p(f"s_mov_b32 s58, {LOG2E}")
        p(f"v_mul_f32 v6, s58, v{GACC}")
        p("v_sub_f32 v6, 0, v6")
        p("s_mov_b32 s59, 0x42700000")
        p("v_min_f32 v6, s59, v6")
        p("v_exp_f32 v6, v6")
        p("v_add_f32 v7, 1.0, v6"); p("v_rcp_f32 v7, v7")
        p("s_lshl_b32 s44, s25, 6")
        p("v_and_b32 v5, 15, v1"); p("v_lshlrev_b32 v5, 2, v5"); p("v_add_u32 v5, s44, v5")
        p(f"v_add_u32 v5, {GL}, v5")
        p("ds_write_b32 v5, v7")
        p(f"ds_write_b32 v5, v6 offset:{GR-GL}")
        p("s_waitcnt lgkmcnt(0)")
        self.lds_signal(W_GT)

    def epilogue_q(self, QACC, QXACC):
        p = self.p
        regs = [QACC(i, st) + e for i in range(2) for st in range(4) for e in range(4)] + [QXACC(k) + e for k in range(2) for e in range(4)]
        tmp = [32 + (t*4 + st)*4 + e for t in range(5) for st in (0, 2) for e in range(4)]
        p(f"s_mov_b32 s58, {LOG2E}"); p(f"s_mov_b32 s59, {LOG2E}"); p(f"s_mov_b32 s66, {EPS6}"); p(f"s_mov_b32 s67, {EPS6}")
        n = len(regs)
        for i in range(0, n, 2): p(f"v_pk_mul_f32 v[{tmp[i]}:{tmp[i]+1}], v[{regs[i]}:{regs[i]+1}], s[58:59]")
        for a, t in zip(regs, tmp): p(f"v_exp_f32 v{t}, v{t} clamp")
        for a in regs: p(f"v_max_f32 v{a}, 0, v{a}")
        for i in range(0, n, 2): p(f"v_pk_add_f32 v[{tmp[i]}:{tmp[i]+1}], v[{tmp[i]}:{tmp[i]+1}], s[66:67]")
        for i in range(0, n, 2): p(f"v_pk_add_f32 v[{regs[i]}:{regs[i]+1}], v[{regs[i]}:{regs[i]+1}], v[{tmp[i]}:{tmp[i]+1}]")
        p(f"s_mov_b32 s44, {BQL1}"); p("s_cmp_eq_u32 s48, 0"); p(f"s_cselect_b32 s44, {BQL0}, s44")
        p("s_lshl_b32 s45, s49, 10"); p("s_add_u32 s45, s45, s44")
        p("v_lshlrev_b32 v5, 3, v1"); p("v_add_u32 v6, s45, v5")
        for i in range(2):
            for st in range(4):
                a = QACC(i, st)
                p(f"v_cvt_pk_bf16_f32 v{a}, v{a}, v{a+1}"); p(f"v_cvt_pk_bf16_f32 v{a+1}, v{a+2}, v{a+3}")
                p(f"ds_write_b64 v6, v[{a}:{a+1}] offset:{st*2560 + i*512}")
        p("s_mul_i32 s45, s49, 5120"); p("s_add_u32 s45, s45, s44"); p("v_add_u32 v6, s45, v5")
        for k in range(2):
            a = QXACC(k)
            p(f"v_cvt_pk_bf16_f32 v{a}, v{a}, v{a+1}"); p(f"v_cvt_pk_bf16_f32 v{a+1}, v{a+2}, v{a+3}")
            p(f"ds_write_b64 v6, v[{a}:{a+1}] offset:{k*2560 + 2048}")
        p("s_waitcnt lgkmcnt(0)")
        self.lds_signal(W_BQ)

    def epilogue_h(self, acc, last):
        p = self.p
        p(f"""
        s_lshl_b32 s44, s26, 3
        s_lshl_b32 s45, s48, 2
        s_add_u32 s44, s44, s45
        s_mul_i32 s44, s44, {AP_ST}
        s_mul_i32 s45, s27, 6
        s_mul_i32 s46, s49, 3
        s_add_u32 s45, s45, s46
        s_lshl_b32 s45, s45, 10
        s_add_u32 s44, s44, s45
        s_add_u32 s44, s44, {WS_AP}
        v_add_u32 v5, s44, v18
        """)
        if self.cfg.local: self.read_loc()
        for st in range(4):
            for pp in range(3):
                a0, a1 = acc(2*pp, st), acc(2*pp+1, st)
                p(f"v_cvt_pk_bf16_f32 v{a0}, v{a0}, v{a0+1}")
                p(f"v_cvt_pk_bf16_f32 v{a0+1}, v{a0+2}, v{a0+3}")
                p(f"v_cvt_pk_bf16_f32 v{a0+2}, v{a1}, v{a1+1}")
                p(f"v_cvt_pk_bf16_f32 v{a0+3}, v{a1+2}, v{a1+3}")
                for i in range(4): p(f"v_pk_max_i16 v{a0+i}, v{a0+i}, 0")
        for st in range(1, 4): p(f"v_add_u32 v{7+st}, {AP_ST*st}, v5")
        p("v_mov_b32 v7, v5")
        def stores(sc):
            for st in range(4):
                for pp in range(3):
                    a0 = acc(2*pp, st)
                    p(f"buffer_store_dwordx4 v[{a0}:{a0+3}], v{7+st}, s[40:43], 0 offen offset:{pp*1024}{sc}")
        self.dual(stores)

    def epilogue_kv(self, acc):
        p = self.p
        K0, K1, V0, V1, X = range(5)
        p(f"s_mov_b32 s53, {LOG2E}"); p(f"s_mov_b32 s54, {EPS6}")
        p("v_lshrrev_b32 v2, 4, v1"); p("v_and_b32 v3, 15, v1")
        p("v_lshrrev_b32 v4, 3, v3"); p("v_cmp_eq_u32 s[56:57], s49, v4")
        p("v_lshrrev_b32 v7, 1, v2"); p("v_cmp_eq_u32 s[58:59], s49, v7")
        T0 = 20
        p(f"s_mov_b32 s52, {LOG2E}"); p(f"s_mov_b32 s66, {EPS6}"); p(f"s_mov_b32 s67, {EPS6}")
        def phi_group(regs, tm, dst=None):
            n = len(regs); dst = dst or regs
            for i in range(0, n, 2): p(f"v_pk_mul_f32 v[{tm+i}:{tm+i+1}], v[{regs[i]}:{regs[i]+1}], s[52:53]")
            for i in range(n): p(f"v_exp_f32 v{tm+i}, v{tm+i} clamp")
            for i in range(n): p(f"v_max_f32 v{dst[i]}, 0, v{regs[i]}")
            for i in range(0, n, 2): p(f"v_pk_add_f32 v[{tm+i}:{tm+i+1}], v[{tm+i}:{tm+i+1}], s[66:67]")
            for i in range(0, n, 2): p(f"v_pk_add_f32 v[{dst[i]}:{dst[i]+1}], v[{dst[i]}:{dst[i]+1}], v[{tm+i}:{tm+i+1}]")
        for st in range(4):
            phi_group([acc(K0, st)+i for i in range(4)] + [acc(K1, st)+i for i in range(4)], T0)
            a = acc(X, st)
            phi_group([a+i for i in range(4)], T0, dst=[T0+4+i for i in range(4)])
            for i in range(4): p(f"v_cndmask_b32 v{a+i}, v{a+i}, v{T0+4+i}, s[56:57]")
        self.stamp3(2)
        for t in (K0, K1, V0, V1, X):
            for kk in range(2):
                a, b = acc(t, 2*kk), acc(t, 2*kk+1)
                p(f"v_cvt_pk_bf16_f32 v{a}, v{a}, v{a+1}")
                p(f"v_cvt_pk_bf16_f32 v{a+1}, v{a+2}, v{a+3}")
                p(f"v_cvt_pk_bf16_f32 v{a+2}, v{b}, v{b+1}")
                p(f"v_cvt_pk_bf16_f32 v{a+3}, v{b+2}, v{b+3}")
        fr = lambda t, kk: vr(acc(t, 2*kk), 4)
        free = [acc(t, s) for t in (K0, K1, V0, V1, X) for s in (1, 3)]
        KV0, KV1, KX0, KX1, XV0, XV1, XX, Z0, Z1, ZX = free
        ONES = T0
        for i in range(4): p(f"v_mov_b32 v{ONES+i}, 0x3f803f80")
        ones = vr(ONES, 4)
        for kk in range(2):
            for (d, A, B) in ((KV0, fr(K0,kk), fr(V0,kk)), (KV1, fr(K1,kk), fr(V1,kk)), (KX0, fr(K0,kk), fr(X,kk)),
                              (KX1, fr(K1,kk), fr(X,kk)), (XV0, fr(X,kk), fr(V0,kk)), (XV1, fr(X,kk), fr(V1,kk)),
                              (XX, fr(X,kk), fr(X,kk)), (Z0, fr(K0,kk), ones), (Z1, fr(K1,kk), ones), (ZX, fr(X,kk), ones)):
                c = "0" if kk == 0 else vr(d, 4)
                p(f"v_mfma_f32_16x16x32_bf16 {vr(d,4)}, {A}, {B}, {c}")
        p("v_bfe_u32 v4, v3, 2, 1"); p("v_cmp_eq_u32 s[60:61], 1, v4")
        p("v_and_b32 v4, 1, v2"); p("v_cmp_eq_u32 s[62:63], 1, v4")
        p("v_and_b32 v4, 1, v3"); p("v_cmp_eq_u32 s[64:65], 1, v4")
        for i in range(4): p(f"v_cndmask_b32 v{KX0+i}, v{KX0+i}, v{KX1+i}, s[60:61]")
        for i in range(4): p(f"v_cndmask_b32 v{XV0+i}, v{XV0+i}, v{XV1+i}, s[62:63]")
        for i in range(4): p(f"v_cndmask_b32 v{Z0+i}, v{Z0+i}, v{Z1+i}, s[64:65]")
        p("s_lshl_b32 s44, s49, 2"); p("v_lshrrev_b32 v4, 1, v3"); p("v_cmp_eq_u32 s[60:61], s44, v4")
        p("s_lshl_b32 s44, s49, 3"); p("s_add_u32 s44, s44, 4"); p("v_cmp_eq_u32 s[62:63], s44, v3")
        for i in range(4): p(f"v_cndmask_b32 v{XX+i}, v{XX+i}, v{Z0+i}, s[60:61]")
        for i in range(4): p(f"v_cndmask_b32 v{XX+i}, v{XX+i}, v{ZX+i}, s[62:63]")
        self.stamp3(3)
        tiles = [KV0, KV1, KX0, XV0, XX]
        p("s_mul_i32 s44, s49, 5120"); p(f"s_add_u32 s44, s44, {KVRED}")
        p("v_add_u32 v4, s44, v18")
        R0 = p.newlabel("L_kr")
        p("s_cmp_eq_u32 s48, 0"); p(f"s_cbranch_scc1 {R0}")
        for j, t in enumerate(tiles): p(f"ds_write_b128 v4, {vr(t,4)} offset:{j*1024}")
        p.label(R0)
        self.cbar(vtmp=(5, 6))
        self.stamp3(4)
        TMs = [acc(t, 0) for t in range(5)]
        for j in range(5): p(f"ds_read_b128 {vr(TMs[j],4)}, v4 offset:{j*1024}")
        p("s_waitcnt lgkmcnt(0)")
        for j, t in enumerate(tiles):
            m = TMs[j]
            p(f"v_pk_add_f32 v[{t}:{t+1}], v[{t}:{t+1}], v[{m}:{m+1}]")
            p(f"v_pk_add_f32 v[{t+2}:{t+3}], v[{t+2}:{t+3}], v[{m+2}:{m+3}]")
        for i in range(4): p(f"v_cndmask_b32 v{KX0+i}, v{KX0+i}, 0, s[56:57]")
        for i in range(4): p(f"v_cndmask_b32 v{XV0+i}, 0, v{XV0+i}, s[58:59]")
        self.lds_wait(W_ZOK, 2, vtmp=(5, 6))
        self.stamp3(5)
        p(f"""
        s_lshl_b32 s44, s27, 13
        s_add_u32 s44, s44, {WS_KVS}
        s_cmp_eq_u32 s48, 0
        s_cselect_b32 s44, s44, {OOB}
        v_lshlrev_b32 v4, 2, v1
        v_add_u32 v4, s44, v4
        s_lshl_b32 s45, s49, 11
        v_add_u32 v5, s45, v4
        v_add_u32 v6, 4096, v4
        s_lshl_b32 s45, s49, 10
        v_add_u32 v7, s45, v4
        v_add_u32 v7, 6144, v7
        """)
        for (t, a, off) in ((KV0, "v5", 0), (KV1, "v5", 1024), (KX0, "v6", 0), (XV0, "v6", 1024), (XX, "v7", 0)):
            for e in range(4):
                p(f"buffer_atomic_add_f32 v{t+e}, {a}, s[40:43], 0 offen offset:{off + 256*e}")

    def t4(self):
        p = self.p
        ACC = 32
        acc = lambda sg, t: ACC + (sg*5 + t)*4
        def frag(setn, f):
            idx = setn*9 + f
            return ar(idx*4, 4) if idx < 24 else vr(112 + (idx-24)*4, 4)
        AF = lambda j, t: frag(j % PD, 4 + t)
        BF = lambda j, sg: frag(j % PD, sg)
        VB = 8; VA, VA2 = 6, 7
        def stile(sg, out):
            p(f"s_add_u32 s44, s25, {sg}"); p("s_and_b32 s44, s44, 3")
            p("s_lshr_b32 s45, s44, 1"); p("s_lshl_b32 s45, s45, 2"); p("s_and_b32 s46, s44, 1"); p("s_add_u32 s45, s45, s46")
            p("s_lshl_b32 s46, s28, 1"); p("s_add_u32 s45, s45, s46"); p("s_lshl_b32 s46, s26, 3"); p(f"s_add_u32 {out}, s45, s46")
        for sg in range(4):
            stile(sg, "s47")
            if sg == 0: p("s_mov_b32 s71, s47")
            p(f"s_mul_i32 s47, s47, {AP_ST}"); p(f"s_add_u32 s47, s47, {WS_AP}")
            p(f"v_add_u32 v{VB+sg}, s47, v18")
        p(f"s_mul_i32 s44, s27, {WP_CG}"); p(f"s_add_u32 s44, s44, {WS_WP}")
        p(f"v_add_u32 v{VA}, s44, v18"); p(f"v_add_u32 v{VA2}, 4096, v{VA}")
        p("s_mul_i32 s52, s25, 12"); p("s_mul_i32 s53, s25, 5"); p("s_add_u32 s53, s53, 48")
        self.t4_rot()
        def ks_next(j):
            if j < 12:
                p("s_add_u32 s54, s52, s56")
                p("s_add_u32 s56, s56, 1"); p("s_cmp_eq_u32 s56, 12"); p("s_cselect_b32 s56, 0, s56")
            else:
                p("s_add_u32 s54, s53, s57")
                p("s_add_u32 s57, s57, 1"); p("s_cmp_eq_u32 s57, 5"); p("s_cselect_b32 s57, 0, s57")
            p(f"s_lshl_b32 s{62 + (j % PD)}, s54, 10")
            p("s_mul_i32 s55, s54, 5120")
        def loadA(j):
            for t in range(4): p(f"buffer_load_dwordx4 {AF(j,t)}, v{VA}, s[40:43], s55 offen offset:{t*1024} sc1")
            p(f"buffer_load_dwordx4 {AF(j,4)}, v{VA2}, s[40:43], s55 offen sc1")
        def loadB(j):
            for sg in range(4):
                p(f"buffer_load_dwordx4 {BF(j, sg)}, v{VB+sg}, s[40:43], s{62 + (j % PD)} offen sc1")
        q = []
        def wait_for(tag):
            tags = [t for t, _ in q]
            if tag not in tags: return
            idx = tags.index(tag)
            p(f"s_waitcnt vmcnt({sum(k for _, k in q[idx+1:])})")
            del q[:idx+1]
        self.lds_wait(W_GT, 4)
        p("v_and_b32 v5, 15, v1"); p("v_lshlrev_b32 v5, 2, v5")
        for sg in range(4):
            p(f"s_add_u32 s44, s25, {sg}"); p("s_and_b32 s44, s44, 3"); p("s_lshl_b32 s44, s44, 6"); p(f"s_add_u32 s44, s44, {GL}")
            p("v_add_u32 v16, s44, v5")
            p(f"ds_read_b32 v{12+sg}, v16 offset:{GR-GL}")
            if sg == 0: p("ds_read_b32 v19, v16")
        self.lds_wait(W_JOK, 3, sleep=self.cfg.csleep)
        for j in range(PD):
            ks_next(j); loadA(j); q.append((f"A{j}", 5))
        self.lds_wait(W_HR, 1, sleep=self.cfg.csleep)
        self.stamp2(3)
        for j in range(PD):
            loadB(j); q.append((f"B{j}", 4))
        self.stamp(5)
        self.stamp2(4)
        NS = 17
        self.stamp(6)
        for j in range(NS):
            nxt = j + PD
            wait_for(f"A{j}"); wait_for(f"B{j}")
            if j == 1: self.stamp(7); self.stamp2(5)
            if j == 12:
                self.stamp(8)
                for sg in range(4):
                    for t in range(5):
                        for i in range(4): p(f"v_mul_f32 v{acc(sg,t)+i}, v{acc(sg,t)+i}, v{12+sg}")
            for sg in range(4):
                for t in range(5):
                    c = vr(acc(sg, t), 4)
                    p(f"v_mfma_f32_16x16x32_bf16 {c}, {AF(j,t)}, {BF(j,sg)}, {'0' if j == 0 else c}")
            if nxt < NS:
                ks_next(nxt); loadA(nxt); q.append((f"A{nxt}", 5))
                if nxt < 12 or nxt > 11 + PD:
                    loadB(nxt); q.append((f"B{nxt}", 4))
            if j == 11:
                if self.cfg.span: self.span_mark(5)
                self.stamp2(6); self.lds_wait(W_OR, 1, sleep=self.cfg.csleep); self.stamp2(7)
                if self.cfg.span: self.span_mark(6)
                for jj in range(12, min(NS, 12 + PD)):
                    loadB(jj); q.append((f"B{jj}", 4))
        self.stamp2(8)
        for sg in range(1, 4):
            p(f"s_add_u32 s44, s25, {sg}"); p("s_and_b32 s44, s44, 3"); p("s_mul_i32 s44, s44, 3"); p(f"s_add_u32 s44, s44, {sg-1}")
            p("s_mul_i32 s45, s44, 5120")
            p("v_add_u32 v5, s45, v18")
            for t in range(5): p(f"ds_write_b128 v5, {vr(acc(sg,t),4)} offset:{t*1024}")
        self.cbar()
        p("s_mul_i32 s45, s25, 15360")
        p("v_add_u32 v5, s45, v18")
        for k in range(3):
            for t in range(5): p(f"ds_read_b128 {vr(acc(1+k,t),4)}, v5 offset:{k*5120+t*1024}")
        p("s_waitcnt lgkmcnt(0)")
        for k in range(3):
            for t in range(5):
                a, b = acc(0, t), acc(1+k, t)
                p(f"v_pk_add_f32 v[{a}:{a+1}], v[{a}:{a+1}], v[{b}:{b+1}]")
                p(f"v_pk_add_f32 v[{a+2}:{a+3}], v[{a+2}:{a+3}], v[{b+2}:{b+3}]")
        O = 112
        for t in range(5):
            for i in range(4): p(f"v_mul_f32 v{acc(0,t)+i}, v{acc(0,t)+i}, v19")
        for t in range(5):
            a = acc(0, t)
            p(f"v_cvt_pk_bf16_f32 v{O+2*t}, v{a}, v{a+1}")
            p(f"v_cvt_pk_bf16_f32 v{O+2*t+1}, v{a+2}, v{a+3}")
        p("""
        s_mov_b32 s32, s18
        s_mov_b32 s33, s19
        s_mov_b32 s34, 2621440
        s_mov_b32 s35, 0x20000
        v_lshrrev_b32 v2, 4, v1
        v_and_b32 v3, 15, v1
        s_lshl_b32 s44, s71, 4
        v_add_u32 v3, s44, v3
        v_mul_u32_u24 v3, 1280, v3
        v_mul_u32_u24 v2, 40, v2
        s_mul_i32 s44, s27, 160
        v_add3_u32 v3, v3, v2, s44
        """)
        p(f"buffer_store_dwordx4 v[{O}:{O+3}], v3, s[32:35], 0 offen")
        p(f"buffer_store_dwordx4 v[{O+4}:{O+7}], v3, s[32:35], 0 offen offset:16")
        p(f"buffer_store_dwordx2 v[{O+8}:{O+9}], v3, s[32:35], 0 offen offset:32")
        self.stamp(9)
        self.stamp2(9)
        self.stamp_flush(10)
        if self.cfg.span:
            self.span_mark(1)

    def span_mark(self, word):
        p = self.p
        D = p.newlabel("L_sm")
        p("s_and_b32 s44, s2, 0xf7"); p("s_cmp_eq_u32 s44, 0x21"); p(f"s_cbranch_scc0 {D}")
        p("s_cmp_eq_u32 s24, 0"); p(f"s_cbranch_scc0 {D}")
        p("s_memrealtime s[44:45]"); p("s_waitcnt lgkmcnt(0)")
        p("s_sub_u32 s44, s44, s30")
        p("s_mov_b32 s96, s20"); p("s_mov_b32 s97, s21"); p("s_movk_i32 s98, 256"); p("s_mov_b32 s99, 0x20000")
        p("s_lshl_b32 s45, s28, 5"); p(f"s_add_u32 s45, s45, {4*word}")
        p("v_mov_b32 v2, s44"); p("v_mov_b32 v3, s45")
        p("s_mov_b64 exec, 1")
        p("buffer_store_dword v2, v3, s[96:99], 0 offen sc1")
        p("s_mov_b64 exec, -1")
        p.label(D)

def kd(name, vgpr, accum, sgpr=102):
    return f""".amdhsa_kernel {name}
  .amdhsa_next_free_vgpr {vgpr}
  .amdhsa_next_free_sgpr {sgpr}
  .amdhsa_accum_offset {accum}
  .amdhsa_group_segment_fixed_size 0
  .amdhsa_kernarg_size 80
  .amdhsa_user_sgpr_count 2
  .amdhsa_user_sgpr_kernarg_segment_ptr 1
  .amdhsa_system_sgpr_workgroup_id_x 1
.end_amdhsa_kernel
"""

def head_comment():
    f = "cdna_kernels/" + NAME + ".s.ref"
    return open(f).read().split("; Override launch")[0] if os.path.exists(f) else ""

def build(cfg):
    g = Gen(cfg); g.emit()
    body = g.p.text(verbose=True)
    hdr = head_comment() + f"""; @launch grid=(256,1,1) block=(512,1,1) lds={LDS_BYTES}
.amdgcn_target "amdgcn-amd-amdhsa--gfx950"
.text
.globl {KNAME}
.p2align 8
.type {KNAME},@function
{KNAME}:
"""
    body = body.replace("CODE_BYTES_M", f".Lcode_end-{KNAME}-512")
    tail = ".Lcode_end:\n"
    return hdr + body + tail + '.section .rodata,"a"\n.p2align 6\n' + kd(KNAME, 256, 160)

if __name__ == "__main__":
    cfg = Cfg()
    cfg.stamps = "stamps" in sys.argv
    cfg.dbg2 = "dbg2" in sys.argv
    cfg.rot = "norot" not in sys.argv
    cfg.local = "nolocal" not in sys.argv
    cfg.t12only = "t12only" in sys.argv
    cfg.map81 = "map81" in sys.argv
    cfg.spoll = "vpoll" not in sys.argv
    cfg.kv1 = "kv1" in sys.argv
    cfg.prio = "noprio" not in sys.argv
    cfg.edge = "edge" in sys.argv
    cfg.edge2 = "edgekv" in sys.argv
    cfg.csleep = "csleep" in sys.argv
    for a in sys.argv:
        if a.startswith("prio0="): cfg.prio0 = int(a[6:])
    for a in sys.argv:
        if a.startswith("kt="): cfg.kt = int(a[3:])
    cfg.hst = "hst" in sys.argv
    if cfg.hst: cfg.dbg2 = True; cfg.dbg3 = True
    cfg.dbg3 = "dbg3" in sys.argv
    if cfg.dbg3: cfg.dbg2 = True
    for a in sys.argv:
        if a.startswith("j="): cfg.jl, cfg.jp, cfg.jf = [int(x) for x in a[2:].split(",")]
    for a in sys.argv:
        if a.startswith("rtab="): cfg.rtab = [int(c, 16) for c in a[5:]]
    cfg.span = "span" in sys.argv
    cfg.noqdma = "noqdma" in sys.argv
    cfg.noqread = "noqread" in sys.argv
    cfg.nomfma = "nomfma" in sys.argv
    cfg.stouch = "stouch" in sys.argv
    for a in sys.argv:
        if a.startswith("wpre="): cfg.wpre = tuple(int(x) for x in a[5:].split(","))
    cfg.w45late = "w45early" not in sys.argv
    for a in sys.argv:
        if a.startswith("or="): cfg.orstep = int(a[3:])
    cfg.early_s1 = "es1" in sys.argv
    if not cfg.map81: cfg.local = False
    out = [a for a in sys.argv[1:] if a.endswith(".s")]
    open(out[0] if out else "x6.s", "w").write(build(cfg))
```

```python
import sys, os
from asmlib import *

NAME = "gated_mix__linear_attn_block__dense_activation_relu__prompt"
KNAME = NAME + "_kernel"

AP_ST = 68 * 1024
WS_AP = 0
WS_WP = 9 << 20
WP_CG = 68 * 5 * 1024
WS_KVP = 13 << 20
WS_KVS = 14 << 20
WS_F = 15 << 20
F_H = WS_F
F_KV = WS_F + 16384
F_O = WS_F + 32768
F_X = WS_F + 65536
F_KS = WS_F + 73728
F_J = WS_F + 98304
WS_TS = 16 << 20
WS_SIZE = 17 << 20
OOB = 0x80000000

STG = 51200
SEG = 10256
QOFF = 40960
WBASE = [51200, 71680, 102400, 122880, 0, 20480]
KVRED = 92160
BQL0, BQL1 = 40960, 143360
KVT = 153600
GW = 159744
GL = 161024
GR = 161280
SY = 161536
LDS_BYTES = 161792
W_TAG, W_KVR, W_HR, W_OR, W_PUB1, W_BQ, W_PUB2, W_KVF, W_LOC, W_P01, W_P23, W_GT, W_KF1, W_ZOK, W_JOK, W_PUB3 = [4*i for i in range(16)]
W_CB = 64
LOG2E = 0x3fb8aa3b
EPS6 = 0x358637bd
POLL_MAX = 1 << 15
PD = 3
for _a in sys.argv:
    if _a.startswith('pd='): PD = int(_a[3:])
JSCR = 51200

class Cfg:
    stamps = False
    dbg2 = False
    rot = True
    local = True
    t12only = False
    map81 = False
    spoll = True
    kv1 = False
    prio = True
    prio0 = 0
    edge = False
    edge2 = False
    csleep = False
    kt = 0
    hst = False
    dbg3 = False
    jl = 1
    jp = 4
    jf = 7
    rtab = None
    span = False
    noqdma = False
    noqread = False
    nomfma = False
    stouch = False
    wpre = (7, 8)
    w45late = True
    orstep = 11
    early_s1 = False

class Gen:
    def __init__(self, cfg):
        self.p = Prog(); self.cfg = cfg; self.ncb = 0
    def stamp(self, idx):
        if self.cfg.stamps and (idx == 0 or not self.cfg.dbg2): self.p(f"s_memtime s[{80+2*idx}:{81+2*idx}]")
    def stamp2(self, idx):
        if self.cfg.stamps and self.cfg.dbg2 and not (self.cfg.dbg3 and idx >= 2) and not self.cfg.hst: self.p(f"s_memtime s[{80+2*idx}:{81+2*idx}]")
    def stamp3(self, idx):
        if self.cfg.stamps and self.cfg.dbg3 and not self.cfg.hst: self.p(f"s_memtime s[{80+2*idx}:{81+2*idx}]")
    def stamp_flush(self, n):
        if not self.cfg.stamps: return
        p = self.p
        p("s_waitcnt lgkmcnt(0)")
        p("s_memrealtime s[78:79]")
        p("s_lshl_b32 s100, s2, 3"); p("s_add_u32 s100, s100, s24")
        p("s_lshl_b32 s100, s100, 7")
        p(f"s_add_u32 s100, s100, {WS_TS}")
        p("v_mov_b32 v4, s100")
        p("s_waitcnt lgkmcnt(0)")
        p("s_mov_b64 exec, 1")
        regs = [80 + 2*i for i in range(n)]
        for i, r in enumerate(regs + [76, 78]):
            off = 8*i if i < n else (112 + 8*(i-n))
            p(f"v_mov_b32 v2, s{r}"); p(f"v_mov_b32 v3, s{r+1}")
            p(f"buffer_store_dwordx2 v[2:3], v4, s[40:43], 0 offen offset:{off}")
            p("s_nop 1")
        p("s_mov_b64 exec, -1")
    def lds_signal(self, word, vtmp=(2, 3)):
        p = self.p; a, b = vtmp
        p(f"v_mov_b32 v{a}, {SY}"); p(f"v_mov_b32 v{b}, 1")
        p("s_mov_b64 exec, 1")
        p(f"ds_add_u32 v{a}, v{b} offset:{word}")
        p("s_mov_b64 exec, -1")
    def lds_wait(self, word, target, vtmp=(2, 3), sleep=False):
        p = self.p; a, b = vtmp
        L = p.newlabel("L_lw"); D = p.newlabel("L_lwd")
        p(f"v_mov_b32 v{a}, {SY}")
        p(f"s_mov_b32 s47, {POLL_MAX*32}")
        p.label(L)
        p(f"ds_read_b32 v{b}, v{a} offset:{word}")
        p("s_waitcnt lgkmcnt(0)")
        p(f"v_readfirstlane_b32 s46, v{b}")
        p(f"s_cmp_ge_u32 s46, {target}")
        p(f"s_cbranch_scc1 {D}")
        if sleep: p("s_sleep 1")
        p("s_sub_u32 s47, s47, 1")
        p("s_cmp_lg_u32 s47, 0")
        p(f"s_cbranch_scc1 {L}")
        p.label(D)
    def cbar(self, vtmp=(2, 3)):
        w = W_CB + 4 * self.ncb; self.ncb += 1
        assert w < 256
        self.p("s_waitcnt lgkmcnt(0)")
        self.lds_signal(w, vtmp)
        self.lds_wait(w, 4, vtmp)
    def poll_flags(self, addr_s, nwords, vt=(2, 3)):
        p = self.p; a, b = vt
        L = p.newlabel("L_pf"); D = p.newlabel("L_pfd")
        if self.cfg.spoll:
            p(f"s_add_u32 s4, s22, {addr_s}"); p("s_addc_u32 s5, s23, 0")
            p(f"s_mov_b32 s47, {POLL_MAX}")
            p.label(L)
            p("s_mov_b32 s46, 0")
            for base in range(0, nwords, 8):
                m = min(8, nwords - base)
                for i in range(m): p(f"s_load_dword s{8+i}, s[4:5], {(base+i)*128} glc")
                p("s_waitcnt lgkmcnt(0)")
                for i in range(m):
                    p(f"s_xor_b32 s{8+i}, s{8+i}, s30"); p(f"s_or_b32 s46, s46, s{8+i}")
            p("s_cmp_eq_u32 s46, 0")
            p(f"s_cbranch_scc1 {D}")
            p("s_sleep 1")
            p("s_sub_u32 s47, s47, 1")
            p("s_cmp_lg_u32 s47, 0")
            p(f"s_cbranch_scc1 {L}")
            p.label(D)
            return
        p(f"v_min_u32 v{a}, {nwords-1}, v1")
        p(f"v_lshlrev_b32 v{a}, 7, v{a}")
        p(f"v_add_u32 v{a}, {addr_s}, v{a}")
        p(f"s_mov_b32 s47, {POLL_MAX}")
        p.label(L)
        p(f"buffer_load_dword v{b}, v{a}, s[40:43], 0 offen sc1")
        p("s_waitcnt vmcnt(0)")
        p(f"v_cmp_eq_u32 vcc, s30, v{b}")
        p("s_nop 1")
        p("s_cmp_eq_u64 vcc, -1")
        p(f"s_cbranch_scc1 {D}")
        p("s_sleep 2")
        p("s_sub_u32 s47, s47, 1")
        p("s_cmp_lg_u32 s47, 0")
        p(f"s_cbranch_scc1 {L}")
        p.label(D)
    def poll_flags_safe(self, addr_s, nwords):
        p = self.p
        L = p.newlabel("L_pf"); D = p.newlabel("L_pfd")
        p(f"s_add_u32 s100, s22, {addr_s}"); p("s_addc_u32 s101, s23, 0")
        p(f"s_mov_b32 s47, {POLL_MAX}")
        p.label(L)
        p("s_mov_b32 s46, 0")
        for half in range(2):
            for i in range(4): p(f"s_load_dword s{76+i}, s[100:101], {(4*half+i)*128} glc")
            p("s_waitcnt lgkmcnt(0)")
            for i in range(4):
                p(f"s_xor_b32 s{76+i}, s{76+i}, s30"); p(f"s_or_b32 s46, s46, s{76+i}")
        p("s_cmp_eq_u32 s46, 0")
        p(f"s_cbranch_scc1 {D}")
        p("s_sleep 1")
        p("s_sub_u32 s47, s47, 1")
        p("s_cmp_lg_u32 s47, 0")
        p(f"s_cbranch_scc1 {L}")
        p.label(D)
    def dual(self, emit):
        p = self.p
        if not self.cfg.local:
            emit(" sc1"); return
        A, B = p.newlabel("L_du"), p.newlabel("L_du")
        p("s_cmp_eq_u32 s72, 1"); p(f"s_cbranch_scc1 {A}")
        emit(" sc1")
        p(f"s_branch {B}")
        p.label(A)
        emit("")
        p.label(B)
    def flag_store(self, addr_s, vt=(2, 3), dual=False):
        p = self.p; a, b = vt
        p(f"v_mov_b32 v{a}, {addr_s}"); p(f"v_mov_b32 v{b}, s30")
        p("s_mov_b64 exec, 1")
        if dual: self.dual(lambda sc: p(f"buffer_store_dword v{b}, v{a}, s[40:43], 0 offen{sc}"))
        else: p(f"buffer_store_dword v{b}, v{a}, s[40:43], 0 offen sc1")
        p("s_mov_b64 exec, -1")
    def publish_last(self, word, target, addr_s, vt=(2, 3), dual=False):
        p = self.p; a, b = vt
        p(f"v_mov_b32 v{a}, {SY}"); p(f"v_mov_b32 v{b}, 1")
        p("s_mov_b64 exec, 1")
        p(f"ds_add_rtn_u32 v{b}, v{a}, v{b} offset:{word}")
        p("s_mov_b64 exec, -1")
        p("s_waitcnt lgkmcnt(0)")
        p(f"v_readfirstlane_b32 s46, v{b}")
        p(f"s_cmp_eq_u32 s46, {target-1}")
        p(f"s_cselect_b32 s47, {addr_s}, {OOB}")
        self.flag_store("s47", vt, dual)
    def read_loc(self, vt=(2, 3)):
        p = self.p; a, b = vt
        p(f"v_mov_b32 v{a}, {SY}"); p(f"ds_read_b32 v{b}, v{a} offset:{W_LOC}"); p("s_waitcnt lgkmcnt(0)")
        p(f"v_readfirstlane_b32 s72, v{b}")
    def rot10(self, dst):
        p = self.p
        if not self.cfg.rot or self.cfg.kt:
            p(f"s_mov_b32 {dst}, 0"); return
        if self.cfg.rtab is not None:
            t = self.cfg.rtab
            w = [sum(t[8*k + i] << (4*i) for i in range(8)) for k in range(4)]
            p(f"s_mov_b32 {dst}, {hex(w[0])}")
            for k in range(1, 4):
                p(f"s_lshr_b32 s45, s31, 3"); p(f"s_cmp_eq_u32 s45, {k}"); p(f"s_cselect_b32 {dst}, {hex(w[k])}, {dst}")
            p("s_and_b32 s45, s31, 7"); p("s_lshl_b32 s45, s45, 2"); p(f"s_lshr_b32 {dst}, {dst}, s45"); p(f"s_and_b32 {dst}, {dst}, 15")
        elif self.cfg.map81:
            p(f"""
            s_and_b32 s45, s26, 1
            s_mul_i32 s45, s45, 5
            s_add_u32 {dst}, s27, s45
            s_add_u32 {dst}, {dst}, s73
            s_cmp_ge_u32 {dst}, 10
            s_cselect_b32 s45, 10, 0
            s_sub_u32 {dst}, {dst}, s45
            s_cmp_ge_u32 {dst}, 10
            s_cselect_b32 s45, 10, 0
            s_sub_u32 {dst}, {dst}, s45
            """)
        else:
            p(f"""
            s_and_b32 s45, s27, 3
            s_lshl_b32 s45, s45, 1
            s_add_u32 {dst}, s45, s28
            s_and_b32 s45, s26, 3
            s_mul_i32 s45, s45, 3
            s_add_u32 {dst}, {dst}, s45
            s_cmp_ge_u32 {dst}, 10
            s_cselect_b32 s45, 10, 0
            s_sub_u32 {dst}, {dst}, s45
            """)
    def wpattern(self, dst, kind, stride, tmp=(2, 3, 4, 5, 6), out=None):
        L = []
        e = L.append
        a, b, c, d, f = tmp
        for u in range(5):
            e(f"v_add_u32 v{a}, {64*u}, v1")
            e(f"v_mul_u32_u24 v{b}, 6554, v{a}")
            e(f"v_lshrrev_b32 v{b}, 16, v{b}")
            e(f"v_mul_u32_u24 v{c}, 10, v{b}")
            e(f"v_sub_u32 v{c}, v{a}, v{c}")
            if kind == 'B':
                e(f"v_lshrrev_b32 v{d}, 4, v{b}"); e(f"v_mul_u32_u24 v{d}, 20, v{d}")
                e(f"v_and_b32 v{b}, 15, v{b}"); e(f"v_add_u32 v{b}, v{b}, v{d}")
            elif kind == 'C':
                e(f"v_lshrrev_b32 v{d}, 4, v{b}"); e(f"v_lshlrev_b32 v{d}, 2, v{d}")
                e(f"v_bfe_u32 v{f}, v{b}, 2, 2"); e(f"v_add_u32 v{f}, 2, v{f}"); e(f"v_and_b32 v{f}, 3, v{f}")
                e(f"v_add_u32 v{d}, v{d}, v{f}"); e(f"v_mul_u32_u24 v{d}, 20, v{d}")
                e(f"v_and_b32 v{b}, 3, v{b}"); e(f"v_add3_u32 v{b}, v{b}, v{d}, 16")
            e(f"v_mul_u32_u24 v{b}, {stride}, v{b}")
            e(f"v_lshl_add_u32 v{b}, v{c}, 4, v{b}")
            if 0 < u < 4: e(f"v_subrev_u32 v{dst+u}, {1024*u}, v{b}")
            else: e(f"v_mov_b32 v{dst+u}, v{b}")
        if out is not None: out += L
        else:
            for x in L: self.p(x)
    def wdma(self, pat, srd, soff, m0_s):
        p = self.p
        p(f"s_mov_b32 m0, {m0_s}")
        for u in range(4):
            p(f"buffer_load_dwordx4 v{pat+u}, {srd}, {soff} offen offset:{1024*u} lds")
        p(f"s_add_u32 m0, {m0_s}, 4096")
        p(f"buffer_load_dwordx4 v{pat+4}, {srd}, {soff} offen lds")
    def t4_rot(self, rb="s56", ro="s57"):
        p = self.p
        if self.cfg.rot and not self.cfg.map81:
            p("s_and_b32 s44, s29, 7"); p("s_and_b32 s45, s27, 3")
            p("s_mul_i32 s46, s45, 3"); p(f"s_add_u32 {rb}, s44, s46")
            p(f"s_cmp_ge_u32 {rb}, 12"); p("s_cselect_b32 s46, 12, 0"); p(f"s_sub_u32 {rb}, {rb}, s46")
            p(f"s_add_u32 {ro}, s44, s45")
            p(f"s_cmp_ge_u32 {ro}, 10"); p("s_cselect_b32 s46, 10, 0"); p(f"s_sub_u32 {ro}, {ro}, s46")
            p(f"s_cmp_ge_u32 {ro}, 5"); p("s_cselect_b32 s46, 5, 0"); p(f"s_sub_u32 {ro}, {ro}, s46")
        elif self.cfg.rot:
            p("s_and_b32 s44, s29, 3"); p("s_mul_i32 s45, s44, 3"); p(f"s_add_u32 {rb}, s45, s73")
            p(f"s_cmp_ge_u32 {rb}, 12"); p("s_cselect_b32 s46, 12, 0"); p(f"s_sub_u32 {rb}, {rb}, s46")
            p(f"s_add_u32 {ro}, s44, s73")
            p(f"s_cmp_ge_u32 {ro}, 10"); p("s_cselect_b32 s46, 10, 0"); p(f"s_sub_u32 {ro}, {ro}, s46")
            p(f"s_cmp_ge_u32 {ro}, 5"); p("s_cselect_b32 s46, 5, 0"); p(f"s_sub_u32 {ro}, {ro}, s46")
        else:
            p(f"s_mov_b32 {rb}, 0"); p(f"s_mov_b32 {ro}, 0")

    def emit(self):
        p = self.p; cfg = self.cfg
        if cfg.stamps: p("s_memrealtime s[76:77]")
        if cfg.map81:
            MAP = """s_and_b32 s73, s2, 7
        s_lshr_b32 s31, s2, 3
        s_and_b32 s44, s31, 1
        s_lshl_b32 s26, s73, 1
        s_add_u32 s26, s26, s44
        s_bfe_u32 s28, s31, 0x10001
        s_lshr_b32 s27, s31, 2
        s_lshl_b32 s29, s26, 1
        s_add_u32 s29, s29, s28"""
        else:
            MAP = """s_and_b32 s44, s2, 7
        s_lshr_b32 s31, s2, 3
        s_lshr_b32 s73, s44, 1
        s_and_b32 s3, s44, 1
        s_and_b32 s28, s31, 1
        s_lshr_b32 s45, s31, 1
        s_and_b32 s26, s45, 3
        s_lshl_b32 s46, s73, 2
        s_add_u32 s26, s26, s46
        s_lshr_b32 s27, s45, 2
        s_lshl_b32 s46, s3, 2
        s_add_u32 s27, s27, s46
        s_lshl_b32 s29, s26, 1
        s_add_u32 s29, s29, s28"""
        p(f"""
        s_cmp_ge_u32 s2, 256
        s_cbranch_scc1 L_end
        s_load_dwordx16 s[4:19], s[0:1], 0
        s_load_dwordx4 s[20:23], s[0:1], 64
        s_getpc_b64 s[74:75]
        v_and_b32 v1, 63, v0
        v_lshrrev_b32 v2, 6, v0
        v_readfirstlane_b32 s24, v2
        {MAP}
        s_and_b32 s25, s24, 3
        s_mov_b32 s72, 0
        s_waitcnt lgkmcnt(0)
        """)
        self.stamp(0)
        p(f"""
        s_mov_b32 s40, s22
        s_mov_b32 s41, s23
        s_mov_b32 s42, {WS_SIZE}
        s_mov_b32 s43, 0x20000
        s_cmp_ge_u32 s24, 4
        s_cbranch_scc0 L_compute
        s_cmp_eq_u32 s28, 0
        s_cbranch_scc0 L_helper_h
        """)
        self.helper_t12('kv')
        p("s_branch L_hp_post")
        p.label("L_helper_h")
        self.helper_t12('h')
        p.label("L_hp_post")
        self.helper_post()
        p.label("L_compute")
        self.compute_path()
        p.label("L_end")
        p("s_endpgm")

    def helper_t12(self, kind):
        p = self.p; cfg = self.cfg
        VO = 8; SD = 48
        NW = 5 if kind == 'kv' else 6
        n = 4 + NW + (3 if kind == 'kv' and not cfg.noqdma else 0)
        wstep = 245760 if kind == 'kv' else 196608
        p(f"""
        s_mul_i32 s44, s26, 163840
        s_add_u32 s32, s4, s44
        s_addc_u32 s33, s5, 0
        s_sub_u32 s34, 2621440, s44
        s_mov_b32 s35, 0x20000
        v_lshrrev_b32 v2, 3, v1
        v_and_b32 v3, 7, v1
        v_xor_b32 v4, v3, v2
        v_lshlrev_b32 v4, 4, v4
        s_lshl_b32 s44, s25, 5
        v_add_u32 v5, s44, v2
        v_mul_u32_u24 v5, 1280, v5
        v_add_u32 v8, v5, v4
        v_add_u32 v9, 10240, v8
        v_add_u32 v10, 20480, v8
        v_add_u32 v11, 30720, v8
        s_lshl_b32 s48, s25, 12
        s_add_u32 s49, s48, 1024
        s_add_u32 s50, s48, 2048
        s_add_u32 s51, s48, 3072
        s_mov_b32 s60, 0
        """)
        if cfg.prio and cfg.prio0: p(f"s_setprio {cfg.prio0}")
        self.rot10("s59")
        p("s_lshl_b32 s61, s59, 7")
        p(f"s_mul_i32 s62, s59, {wstep}")
        p("s_mul_i32 s66, s59, 245760")
        for b in range(4):
            p(f"s_mov_b32 m0, s{SD+b}")
            p(f"buffer_load_dwordx4 v{VO+b}, s[32:35], s61 offen lds")
        if kind == 'kv':
            p("s_mul_i32 s44, s27, 160"); p("s_add_u32 s44, s44, 1280")
            p("s_add_u32 s36, s6, s44"); p("s_addc_u32 s37, s7, 0"); p("s_sub_u32 s38, 2457600, s44")
        else:
            p("s_mul_i32 s44, s27, 384")
            p("s_add_u32 s36, s12, s44"); p("s_addc_u32 s37, s13, 0"); p("s_sub_u32 s38, 1966080, s44")
        p("s_mov_b32 s39, 0x20000")
        def seg_pattern(dst):
            p(f"""
            v_mul_u32_u24 v3, 6554, v2
            v_lshrrev_b32 v3, 16, v3
            v_mul_u32_u24 v4, 10, v3
            v_sub_u32 v4, v2, v4
            v_and_b32 v5, 0x33, v3
            v_and_b32 v6, 4, v3
            v_lshl_or_b32 v5, v6, 1, v5
            v_and_b32 v6, 8, v3
            v_lshrrev_b32 v6, 1, v6
            v_or_b32 v5, v5, v6
            v_mul_u32_u24 v5, 3840, v5
            v_lshl_add_u32 v{dst}, v4, 4, v5
            """)
        if kind == 'kv':
            for a in range(5):
                p(f"""
                s_add_u32 s44, s25, {4*a}
                s_cmp_ge_u32 s44, 10
                s_cselect_b32 s45, 1, 0
                s_mul_i32 s46, s45, 10
                s_sub_u32 s46, s44, s46
                s_lshl_b32 s47, s46, 6
                v_add_u32 v2, s47, v1
                """)
                seg_pattern(VO+4+a)
                p(f"""
                s_mul_i32 s47, s45, 1280
                v_add_u32 v{VO+4+a}, s47, v{VO+4+a}
                s_mul_i32 s47, s45, {SEG}
                s_lshl_b32 s46, s46, 10
                s_add_u32 s47, s47, s46
                s_add_u32 s{SD+4+a}, s47, 16384
                s_mov_b32 m0, s{SD+4+a}
                buffer_load_dwordx4 v{VO+4+a}, s[36:39], s62 offen lds
                """)
        else:
            for a in range(6):
                pat = a % 3
                p(f"""
                v_add_u32 v2, {64*pat}, v1
                v_mul_u32_u24 v3, 2731, v2
                v_lshrrev_b32 v3, 16, v3
                v_mul_u32_u24 v4, 24, v3
                v_sub_u32 v4, v2, v4
                v_and_b32 v5, 6, v3
                v_xor_b32 v4, v4, v5
                v_lshrrev_b32 v5, 2, v3
                v_lshlrev_b32 v5, 3, v5
                v_and_b32 v6, 3, v3
                v_add_u32 v5, v5, v6
                s_lshl_b32 s44, s25, 4
                s_add_u32 s44, s44, {4*(a//3)}
                v_add_u32 v5, s44, v5
                v_mul_u32_u24 v5, 3072, v5
                v_lshl_add_u32 v{VO+4+a}, v4, 4, v5
                s_mul_i32 s44, s25, 6144
                s_add_u32 s{SD+4+a}, s44, {16384 + a*1024}
                s_mov_b32 m0, s{SD+4+a}
                buffer_load_dwordx4 v{VO+4+a}, s[36:39], s62 offen lds
                """)
        if kind == 'kv':
            p("s_mul_i32 s44, s27, 160")
            p("s_add_u32 s68, s6, s44"); p("s_addc_u32 s69, s7, 0"); p("s_sub_u32 s70, 2457600, s44"); p("s_mov_b32 s71, 0x20000")
            p("s_mul_i32 s44, s25, 160"); p("s_mul_i32 s67, s25, 2560"); p(f"s_add_u32 s67, s67, {QOFF}")
            for a in range(3):
                p(f"v_add_u32 v2, s44, v1")
                if a: p(f"v_add_u32 v2, {64*a}, v2")
                p("v_min_u32 v2, 639, v2")
                seg_pattern(20 + a)
        def issue_q(buf):
            if kind != 'kv' or cfg.noqdma: return
            for a in range(3):
                p(f"s_add_u32 m0, {buf}, s67") if a == 0 else p(f"s_add_u32 m0, m0, 1024")
                if a == 2: p("s_mov_b32 exec_hi, 0")
                p(f"buffer_load_dwordx4 v{20+a}, s[68:71], s66 offen lds")
                if a == 2: p("s_mov_b64 exec, -1")
        issue_q("s60")
        def advance():
            p(f"s_add_u32 s60, s60, {STG}")
            p(f"s_cmp_eq_u32 s60, {3*STG}")
            p("s_cselect_b32 s60, 0, s60")
            p("s_add_u32 s61, s61, 128")
            p(f"s_add_u32 s62, s62, {wstep}")
            p("s_add_u32 s66, s66, 245760")
            p("s_add_u32 s59, s59, 1")
            p("s_cmp_eq_u32 s59, 10")
            p("s_cselect_b32 s59, 0, s59")
            p("s_cselect_b32 s61, 0, s61")
            p("s_cselect_b32 s62, 0, s62")
            p("s_cselect_b32 s66, 0, s66")
        def issue():
            for i in range(4 + NW):
                p(f"s_add_u32 m0, s60, s{SD+i}")
                srd, so = ("s[32:35]", "s61") if i < 4 else ("s[36:39]", "s62")
                p(f"buffer_load_dwordx4 v{VO+i}, {srd}, {so} offen lds")
            issue_q("s60")
            advance()
        p("s_mov_b32 s96, s16"); p("s_mov_b32 s97, s17"); p("s_movk_i32 s98, 1280"); p("s_mov_b32 s99, 0x20000")
        p("v_lshlrev_b32 v2, 4, v1")
        p(f"s_mov_b32 m0, {GW}")
        p("buffer_load_dwordx4 v2, s[96:99], 0 offen lds")
        p("s_mov_b32 exec_lo, 0xffff"); p("s_mov_b32 exec_hi, 0")
        p("buffer_load_dwordx4 v2, s[96:99], 0 offen offset:1024 lds")
        p("s_mov_b64 exec, -1")
        advance()
        self.stamp(1)
        q = [("s0", n), ("gw", 2)]
        def push(tag, k): q.append((tag, k))
        def wait_for(tag):
            tags = [t for t, _ in q]
            if tag not in tags: return
            idx = tags.index(tag)
            p(f"s_waitcnt vmcnt({sum(k for _, k in q[idx+1:])})")
            del q[:idx+1]
        if cfg.early_s1:
            issue(); push("s1", n)
        wait_for("gw")
        self.stamp(2)
        p("s_barrier")
        if not cfg.early_s1:
            issue(); push("s1", n)
        issue(); push("s2", n)
        p(f"v_mov_b32 v2, {SY}")
        p(f"ds_read_b32 v3, v2 offset:{W_TAG}")
        p("s_waitcnt lgkmcnt(0)")
        p("v_readfirstlane_b32 s30, v3")
        for i in range(10):
            if i <= 8: wait_for(f"s{i+1}")
            p("s_barrier")
            if i == 0: self.stamp(3)
            if cfg.hst and cfg.stamps and i in (0, 1, 2, 4, 6, 8, 9): p(f"s_memtime s[{80+2*(1+(0,1,2,4,6,8,9).index(i))}:{81+2*(1+(0,1,2,4,6,8,9).index(i))}]")
            if i <= 6: issue(); push(f"s{i+3}", n)
            if i == 0 and kind == 'h':
                p("s_lshl_b32 s44, s27, 13"); p("s_lshl_b32 s45, s26, 9"); p("s_add_u32 s44, s44, s45"); p(f"s_add_u32 s44, s44, {WS_KVS}")
                p("s_cmp_eq_u32 s25, 0"); p(f"s_cselect_b32 s44, s44, {OOB}")
                p("v_and_b32 v2, 31, v1"); p("v_lshlrev_b32 v2, 4, v2"); p("v_add_u32 v2, s44, v2")
                for e in range(4): p(f"v_mov_b32 v{32+e}, 0")
                p("s_mov_b32 exec_hi, 0")
                p("buffer_store_dwordx4 v[32:35], v2, s[40:43], 0 offen sc1")
                p("s_mov_b64 exec, -1")
                push("zs", 1)
            if i == 3 and kind == 'h':
                wait_for("zs")
                p("s_lshl_b32 s44, s27, 11"); p("s_lshl_b32 s45, s26, 7"); p("s_add_u32 s44, s44, s45"); p(f"s_add_u32 s58, s44, {F_KS}")
                p("s_cmp_eq_u32 s25, 0"); p(f"s_cselect_b32 s58, s58, {OOB}")
                self.flag_store("s58"); push("zf", 1)
            if cfg.stouch and i in (2, 4, 6):
                if i == 2 or i == 4:
                    k0 = 0 if i == 2 else 8
                    p("s_mul_i32 s44, s2, 7680"); p("s_mul_i32 s45, s25, 1920"); p("s_add_u32 s44, s44, s45")
                    p("s_add_u32 s46, s14, s44"); p("s_addc_u32 s47, s15, 0")
                    for k in range(k0, min(15, k0 + 8)): p(f"s_load_dword s3, s[46:47], {128*k}")
                else:
                    p("s_mul_i32 s44, s2, 3200"); p("s_mul_i32 s45, s25, 800"); p("s_add_u32 s44, s44, s45")
                    p(f"s_min_u32 s44, s44, {819200 - 7*128}")
                    p("s_add_u32 s46, s8, s44"); p("s_addc_u32 s47, s9, 0")
                    for k in range(7): p(f"s_load_dword s3, s[46:47], {128*k}")
            if i == 5 and cfg.local:
                p("v_min_u32 v2, 15, v1"); p("v_lshlrev_b32 v2, 2, v2")
                p("s_lshl_b32 s44, s26, 7"); p(f"s_add_u32 s44, s44, {F_X}")
                p("buffer_load_dword v31, v2, s[40:43], s44 offen sc1")
                push("xc", 1)
            if i == 6 and kind == 'kv':
                NZ = p.newlabel("L_nz")
                p("s_sub_u32 s3, s25, 1"); p("s_cmp_lt_u32 s3, 2"); p(f"s_cbranch_scc0 {NZ}")
                p("s_lshl_b32 s58, s27, 11"); p("s_lshl_b32 s44, s3, 10"); p("s_add_u32 s58, s58, s44"); p(f"s_add_u32 s58, s58, {F_KS}")
                self.poll_flags_safe("s58", 8)
                self.lds_signal(W_ZOK)
                p.label(NZ)
            if i == 7 and cfg.local:
                wait_for("xc")
                p("s_getreg_b32 s45, hwreg(HW_REG_XCC_ID)"); p("s_and_b32 s45, s45, 7")
                p("s_and_b32 s44, s30, 0xfffffff0"); p("s_or_b32 s44, s44, 8"); p("s_or_b32 s44, s44, s45")
                p("v_cmp_eq_u32 vcc, s44, v31")
                p("s_nop 1")
                p("s_cmp_eq_u64 vcc, -1")
                p("s_cselect_b32 s72, 1, 2")
                p(f"v_mov_b32 v2, {SY}"); p("v_mov_b32 v3, s72")
                p(f"ds_write_b32 v2, v3 offset:{W_LOC}")
                p("s_waitcnt lgkmcnt(0)")
            if i == 8 and not cfg.t12only:
                NJ = p.newlabel("L_nj")
                p("s_cmp_eq_u32 s25, 0"); p(f"s_cbranch_scc1 {NJ}")
                p("s_lshr_b32 s58, s27, 1"); p("s_lshl_b32 s58, s58, 12")
                p("s_sub_u32 s44, s25, 1"); p("s_mul_i32 s44, s44, 6"); p("s_min_u32 s44, s44, 11"); p("s_lshl_b32 s44, s44, 7")
                p("s_add_u32 s58, s58, s44"); p(f"s_add_u32 s58, s58, {F_J}")
                Lp, Dp = p.newlabel("L_jp"), p.newlabel("L_jpd")
                p("s_add_u32 s4, s22, s58"); p("s_addc_u32 s5, s23, 0")
                p(f"s_mov_b32 s47, {POLL_MAX}")
                p.label(Lp)
                p("s_mov_b32 s46, 0")
                for b in range(2):
                    for i in range(3): p(f"s_load_dwordx4 s[{8+4*i}:{11+4*i}], s[4:5], {(3*b+i)*128} glc")
                    p("s_waitcnt lgkmcnt(0)")
                    for i in range(12):
                        p(f"s_xor_b32 s{8+i}, s{8+i}, s30"); p(f"s_or_b32 s46, s46, s{8+i}")
                p("s_cmp_eq_u32 s46, 0"); p(f"s_cbranch_scc1 {Dp}")
                p("s_sleep 1")
                p("s_sub_u32 s47, s47, 1"); p("s_cmp_lg_u32 s47, 0"); p(f"s_cbranch_scc1 {Lp}")
                p.label(Dp)
                self.lds_signal(W_JOK)
                p.label(NJ)
            if kind == 'h' and not cfg.t12only:
                if i == cfg.jl: self.job_load(); push("jl", 10)
                if i == cfg.jp:
                    wait_for("jl"); self.job_proc(); push("js", 10)
                if i == cfg.jf:
                    wait_for("js"); self.flag_store("s65"); push("jf", 1)

    def job_load(self):
        p = self.p
        p(f"""
        s_and_b32 s44, s2, 7
        s_lshl_b32 s44, s44, 4
        s_lshr_b32 s45, s31, 1
        s_add_u32 s64, s44, s45
        s_lshl_b32 s44, s25, 7
        s_add_u32 s64, s64, s44
        s_mul_i32 s70, s64, 964
        s_lshr_b32 s70, s70, 16
        s_mul_i32 s44, s70, 68
        s_sub_u32 s71, s64, s44
        s_mul_i32 s68, s25, {STG}
        s_add_u32 s68, s68, 40960
        s_cmp_eq_u32 s25, 3
        s_cselect_b32 s68, {KVT}, s68
        s_cselect_b32 s67, 0, 1024
        s_lshl_b32 s44, s70, 12
        s_lshr_b32 s45, s71, 2
        s_lshl_b32 s45, s45, 7
        s_add_u32 s44, s44, s45
        s_and_b32 s45, s71, 3
        s_lshl_b32 s45, s45, 2
        s_add_u32 s44, s44, s45
        s_add_u32 s65, s44, {F_J}
        s_cmp_ge_u32 s64, 272
        s_cselect_b32 s65, {OOB}, s65
        """)
        for u in range(10):
            p(f"""
            v_add_u32 v2, {64*u}, v1
            v_mul_u32_u24 v3, 3277, v2
            v_lshrrev_b32 v{32+u}, 16, v3
            v_mul_u32_u24 v4, 20, v{32+u}
            v_sub_u32 v4, v2, v4
            v_lshlrev_b32 v{44+u}, 4, v4
            """)
        B, C, Dn = [p.newlabel("L_jr") for _ in range(3)]
        p("s_cmp_lt_u32 s71, 48")
        p("s_cselect_b32 s96, s14, s8"); p("s_cselect_b32 s97, s15, s9")
        p("s_mov_b32 s98, 819200"); p("s_cselect_b32 s98, 1966080, s98")
        p(f"s_cbranch_scc0 {B}")
        p("s_lshl_b32 s44, s71, 5")
        for u in range(10): p(f"v_add_u32 v{32+u}, s44, v{32+u}")
        p(f"s_branch {Dn}")
        p.label(B)
        p("s_cmp_lt_u32 s71, 64"); p(f"s_cbranch_scc0 {C}")
        p("s_sub_u32 s44, s71, 48"); p("s_mul_i32 s44, s44, 40")
        for u in range(10):
            p(f"""
            v_lshrrev_b32 v2, 4, v{32+u}
            v_mul_u32_u24 v2, 20, v2
            v_and_b32 v3, 15, v{32+u}
            v_add3_u32 v{32+u}, v2, v3, s44
            """)
        p(f"s_branch {Dn}")
        p.label(C)
        p("s_sub_u32 s44, s71, 64"); p("s_lshl_b32 s44, s44, 3")
        for u in range(10):
            p(f"""
            v_lshrrev_b32 v2, 4, v{32+u}
            v_lshlrev_b32 v2, 2, v2
            v_bfe_u32 v3, v{32+u}, 2, 2
            v_add_u32 v3, 2, v3
            v_and_b32 v3, 3, v3
            v_add3_u32 v2, v2, v3, s44
            v_mul_u32_u24 v2, 20, v2
            v_and_b32 v3, 3, v{32+u}
            v_add3_u32 v{32+u}, v2, v3, 16
            """)
        p.label(Dn)
        p("s_mov_b32 s99, 0x20000")
        p("s_mul_i32 s44, s70, 320")
        p("s_cmp_ge_u32 s64, 272")
        p(f"s_cselect_b32 s44, {OOB}, s44")
        for u in range(10):
            p(f"v_mul_u32_u24 v2, 1280, v{32+u}")
            p(f"v_add3_u32 v{32+u}, v2, v{44+u}, s44")
        p("s_mov_b32 s44, s68")
        for u in range(10):
            p("s_mov_b32 m0, s44")
            p(f"buffer_load_dwordx4 v{32+u}, s[96:99], 0 offen lds")
            p("s_add_u32 s44, s44, s67")

    def job_proc(self):
        p = self.p
        p("""
        v_lshrrev_b32 v2, 4, v1
        v_bfe_u32 v3, v1, 2, 2
        v_and_b32 v4, 3, v1
        v_lshl_add_u32 v5, v2, 2, v3
        v_mul_u32_u24 v5, 320, v5
        v_mul_u32_u24 v6, 40, v4
        v_add3_u32 v5, v5, v6, s68
        """)
        for hf in range(2):
            for t in range(5):
                for b2 in range(2):
                    r = 32 + (hf*5 + t)*4 + 2*b2
                    p(f"ds_read_b64_tr_b16 v[{r}:{r+1}], v5 offset:{16*b2*320 + hf*160 + 8*t}")
        p(f"s_mul_i32 s44, s70, {2*WP_CG}"); p("s_mul_i32 s45, s71, 5120"); p("s_add_u32 s44, s44, s45"); p(f"s_add_u32 s44, s44, {WS_WP}")
        p("s_cmp_ge_u32 s64, 272"); p(f"s_cselect_b32 s44, {OOB}, s44")
        p("v_lshlrev_b32 v3, 4, v1"); p("v_add_u32 v3, s44, v3")
        p("v_add_u32 v4, 4096, v3"); p(f"v_add_u32 v6, {WP_CG}, v3"); p(f"v_add_u32 v7, {WP_CG+4096}, v3")
        p("s_waitcnt lgkmcnt(0)")
        for hf in range(2):
            for t in range(5):
                r = 32 + (hf*5 + t)*4
                a = ("v3" if t < 4 else "v4") if hf == 0 else ("v6" if t < 4 else "v7")
                off = (t*1024) if t < 4 else 0
                p(f"buffer_store_dwordx4 v[{r}:{r+3}], {a}, s[40:43], 0 offen offset:{off} sc1")

    def helper_post(self):
        p = self.p
        if self.cfg.t12only:
            p("s_waitcnt vmcnt(0)"); self.stamp_flush(8); p("s_branch L_end"); return
        self.stamp(4)
        if self.cfg.prio: p("s_setprio 3")
        N0 = p.newlabel("L_n0")
        p("s_cmp_eq_u32 s25, 0"); p(f"s_cbranch_scc0 {N0}")
        p(f"s_lshl_b32 s58, s26, 10"); p(f"s_add_u32 s58, s58, {F_H}")
        self.poll_flags("s58", 8)
        self.lds_signal(W_HR)
        self.stamp(5)
        p.label(N0)
        p("s_cmp_eq_u32 s28, 0"); p("s_cbranch_scc1 L_hp_kvcu")
        p("s_branch L_hp_or")
        p.label("L_hp_kvcu")
        N3x = p.newlabel("L_n3x")
        p("s_sub_u32 s59, s25, 1"); p("s_cmp_lt_u32 s59, 2"); p(f"s_cbranch_scc0 {N3x}")
        p("s_lshl_b32 s58, s27, 11"); p("s_lshl_b32 s44, s59, 10"); p("s_add_u32 s58, s58, s44"); p(f"s_add_u32 s58, s58, {F_KV}")
        self.poll_flags("s58", 8)
        self.lds_signal(W_KVF)
        p.label(N3x)
        self.lds_wait(W_KVF, 2)
        self.stamp2(4)
        p("v_lshrrev_b32 v2, 4, v1"); p("v_and_b32 v3, 15, v1")
        p(f"v_mov_b32 v7, {OOB}")
        p("v_add_u32 v4, 2, v2"); p("v_and_b32 v4, 3, v4"); p("v_lshrrev_b32 v5, 2, v3")
        p("v_cmp_eq_u32 s[56:57], v4, v5")
        VT = 8
        LA, LB, LE = [p.newlabel("L_kt") for _ in range(3)]
        p("v_lshlrev_b32 v4, 2, v1"); p("v_lshrrev_b32 v5, 1, v2"); p("v_lshlrev_b32 v6, 6, v2")
        p("s_cmp_ge_u32 s25, 2"); p(f"s_cbranch_scc1 {LA}")
        p("s_mul_i32 s44, s25, 3072")
        for i in range(3):
            p(f"v_add_u32 v{VT+i}, s44, v4")
            if i: p(f"v_add_u32 v{VT+i}, {1024*i}, v{VT+i}")
        p(f"s_branch {LE}")
        p.label(LA)
        p("s_cmp_eq_u32 s25, 2"); p(f"s_cbranch_scc0 {LB}")
        p("v_lshlrev_b32 v11, 10, v5"); p("v_add3_u32 v11, v11, v4, 0"); p("v_add_u32 v11, 6144, v11")
        p(f"v_cndmask_b32 v{VT}, v7, v11, s[56:57]")
        p(f"v_add_u32 v{VT+1}, {6144}, v6")
        p(f"v_add_u32 v{VT+2}, {6144+4}, v6")
        p(f"s_branch {LE}")
        p.label(LB)
        p(f"v_add_u32 v{VT}, {7168+32}, v6")
        p(f"v_add_u32 v{VT+1}, {7168+36}, v6")
        p(f"v_mul_u32_u24 v11, {1024+32}, v5")
        p(f"v_add3_u32 v{VT+2}, v11, v6, 0"); p(f"v_add_u32 v{VT+2}, {6144+16}, v{VT+2}")
        p.label(LE)
        SUM = 16
        p(f"s_lshl_b32 s48, s27, 13"); p(f"s_add_u32 s48, s48, {WS_KVS}")
        for i in range(3):
            for e in range(4):
                p(f"buffer_load_dword v{SUM+4*i+e}, v{VT+i}, s[40:43], s48 offen offset:{256*e} sc1")
        p("s_waitcnt vmcnt(0)")
        self.stamp2(5)
        p("s_mul_i32 s44, s25, 1536"); p(f"s_add_u32 s44, s44, {KVT}")
        p("v_lshlrev_b32 v4, 3, v1"); p("v_add_u32 v5, s44, v4")
        for i in range(3):
            p(f"v_cvt_pk_bf16_f32 v{SUM+4*i}, v{SUM+4*i}, v{SUM+4*i+1}")
            p(f"v_cvt_pk_bf16_f32 v{SUM+4*i+1}, v{SUM+4*i+2}, v{SUM+4*i+3}")
            p(f"ds_write_b64 v5, v[{SUM+4*i}:{SUM+4*i+1}] offset:{i*512}")
        p("s_waitcnt lgkmcnt(0)")
        self.lds_signal(W_KVR)
        self.lds_wait(W_KVR, 4)
        self.stamp(6)
        self.stamp2(6)
        TT = 68
        p("v_lshlrev_b32 v5, 3, v1"); p(f"v_add_u32 v5, {KVT}, v5")
        for tau in range(12): p(f"ds_read_b64 v[{TT+2*tau}:{TT+2*tau+1}], v5 offset:{tau*512}")
        p("v_lshrrev_b32 v2, 4, v1"); p("v_and_b32 v3, 15, v1"); p("v_lshrrev_b32 v5, 2, v3")
        for h in range(4):
            p(f"v_cmp_eq_u32 s[{56+2*h}:{57+2*h}], {h}, v2")
            p(f"v_cmp_eq_u32 s[{64+2*h}:{65+2*h}], {(h+2)&3}, v5")
        p("s_waitcnt lgkmcnt(0)")
        KVt = lambda h: TT + 2*h
        EXL, E0H, XXt = TT + 8, TT + 10, TT + 12
        ZL = lambda h: TT + 14 + 2*h
        ZH = TT + 22
        FR = 96
        for h in range(4):
            e0 = FR + 12*h; ex = e0 + 4; dn = e0 + 8
            mg, mr = f"s[{56+2*h}:{57+2*h}]", f"s[{64+2*h}:{65+2*h}]"
            p(f"v_mov_b32 v{e0}, v{KVt(h)}"); p(f"v_mov_b32 v{e0+1}, v{KVt(h)+1}")
            p(f"v_cndmask_b32 v{e0+2}, 0, v{E0H}, {mg}"); p(f"v_cndmask_b32 v{e0+3}, 0, v{E0H+1}, {mg}")
            p(f"v_cndmask_b32 v{ex}, 0, v{EXL}, {mr}"); p(f"v_cndmask_b32 v{ex+1}, 0, v{EXL+1}, {mr}")
            p(f"v_cndmask_b32 v{ex+2}, 0, v{XXt}, {mr}"); p(f"v_cndmask_b32 v{ex+3}, 0, v{XXt+1}, {mr}")
            p(f"v_mov_b32 v{dn}, v{ZL(h)}"); p(f"v_mov_b32 v{dn+1}, v{ZL(h)+1}")
            p(f"v_cndmask_b32 v{dn+2}, 0, v{ZH}, {mg}"); p(f"v_cndmask_b32 v{dn+3}, 0, v{ZH+1}, {mg}")
        self.lds_wait(W_BQ, 4, vtmp=(6, 7))
        for k in range(2):
            BQ = 16 if k == 0 else 32
            p(f"s_lshl_b32 s44, s25, 1"); p(f"s_add_u32 s44, s44, {k}")
            p("s_and_b32 s45, s44, 3"); p("s_mul_i32 s45, s45, 2560")
            p(f"s_mov_b32 s46, {BQL1}"); p("s_cmp_lt_u32 s44, 4"); p(f"s_cselect_b32 s46, {BQL0}, s46"); p("s_add_u32 s45, s45, s46")
            p("v_lshlrev_b32 v4, 3, v1"); p("v_add_u32 v5, s45, v4")
            for h in range(4):
                p(f"ds_read_b64 v[{BQ+4*h}:{BQ+4*h+1}], v5 offset:{h*512}")
                p(f"ds_read_b64 v[{BQ+4*h+2}:{BQ+4*h+3}], v5 offset:2048")
        p("v_lshlrev_b32 v4, 4, v1")
        p("s_waitcnt lgkmcnt(0)")
        NUM = 48; DN = 64; EXO = 80; RR = 144; OO = 84
        for k in range(2):
            BQ = 16 if k == 0 else 32
            bq = lambda h: vr(BQ + 4*h, 4)
            for h in range(4):
                e0 = FR + 12*h
                p(f"v_mfma_f32_16x16x32_bf16 {vr(NUM+4*h,4)}, {vr(e0,4)}, {bq(h)}, 0")
                p(f"v_mfma_f32_16x16x32_bf16 {vr(DN+4*h,4)}, {vr(e0+8,4)}, {bq(h)}, 0")
                c = "0" if h == 0 else vr(EXO, 4)
                p(f"v_mfma_f32_16x16x32_bf16 {vr(EXO,4)}, {vr(e0+4,4)}, {bq(h)}, {c}")
            p(f"s_mov_b32 s44, {EPS6}")
            for h in range(4): p(f"v_add_f32 v{RR+h}, s44, v{DN+4*h}")
            for h in range(4): p(f"v_rcp_f32 v{RR+h}, v{RR+h}")
            p(f"v_cndmask_b32 v{RR+4}, v{RR}, v{RR+2}, s[56:57]")
            p(f"v_cndmask_b32 v{RR+4}, v{RR+4}, v{RR+3}, s[58:59]")
            p(f"v_cndmask_b32 v{RR+4}, v{RR+4}, v{RR+1}, s[62:63]")
            for h in range(4):
                for i in range(4): p(f"v_mul_f32 v{NUM+4*h+i}, v{NUM+4*h+i}, v{RR+h}")
            for i in range(4): p(f"v_mul_f32 v{EXO+i}, v{EXO+i}, v{RR+4}")
            O_ = OO if k == 0 else 148
            for h in range(4):
                p(f"v_cvt_pk_bf16_f32 v{O_+2*h}, v{NUM+4*h}, v{NUM+4*h+1}")
                p(f"v_cvt_pk_bf16_f32 v{O_+2*h+1}, v{NUM+4*h+2}, v{NUM+4*h+3}")
            p(f"v_cvt_pk_bf16_f32 v{O_+8}, v{EXO}, v{EXO+1}")
            p(f"v_cvt_pk_bf16_f32 v{O_+9}, v{EXO+2}, v{EXO+3}")
            p("s_lshl_b32 s50, s26, 3"); p("s_lshl_b32 s44, s25, 1"); p("s_add_u32 s50, s50, s44"); p(f"s_add_u32 s50, s50, {k}")
            p(f"""
            s_mul_i32 s44, s50, {AP_ST}
            s_add_u32 s44, s44, {WS_AP}
            s_lshl_b32 s45, s27, 11
            s_add_u32 s45, s45, s44
            s_add_u32 s45, s45, {48*1024}
            v_add_u32 v5, s45, v4
            s_lshr_b32 s45, s27, 1
            s_lshl_b32 s45, s45, 10
            s_and_b32 s46, s27, 1
            s_lshl_b32 s46, s46, 3
            s_add_u32 s45, s45, s46
            s_add_u32 s45, s45, s44
            s_add_u32 s45, s45, {64*1024}
            v_add_u32 v6, s45, v4
            """)
            p(f"buffer_store_dwordx4 v[{O_}:{O_+3}], v5, s[40:43], 0 offen sc1")
            p(f"buffer_store_dwordx4 v[{O_+4}:{O_+7}], v5, s[40:43], 0 offen offset:1024 sc1")
            p(f"buffer_store_dwordx2 v[{O_+8}:{O_+9}], v6, s[40:43], 0 offen sc1")
        p("s_waitcnt vmcnt(0)")
        p("s_lshl_b32 s44, s26, 10"); p("s_lshl_b32 s45, s27, 7"); p("s_add_u32 s44, s44, s45"); p(f"s_add_u32 s58, s44, {F_O}")
        self.publish_last(W_PUB2, 4, "s58")
        self.stamp2(7)
        p.label("L_hp_or")
        N1 = p.newlabel("L_n1")
        p("s_cmp_eq_u32 s25, 0"); p(f"s_cbranch_scc0 {N1}")
        p(f"s_lshl_b32 s58, s26, 10"); p(f"s_add_u32 s58, s58, {F_O}")
        self.poll_flags("s58", 8)
        self.lds_signal(W_OR)
        self.stamp(7)
        p.label(N1)
        p("s_waitcnt lgkmcnt(0)")
        self.stamp_flush(8)
        p("s_branch L_end")

    def compute_path(self):
        p = self.p; cfg = self.cfg
        p("s_cmp_eq_u32 s25, 0"); p("s_cbranch_scc0 L_c_n0")
        p("v_lshlrev_b32 v3, 2, v1"); p(f"v_add_u32 v3, {SY}, v3"); p("v_mov_b32 v4, 0")
        p("s_mov_b64 exec, -2")
        p("ds_write_b32 v3, v4")
        p("s_mov_b64 exec, -1")
        p("s_cmp_eq_u32 s2, 0"); p("s_cbranch_scc0 L_c_n0")
        p("s_memrealtime s[44:45]")
        p("s_mov_b32 s96, s20"); p("s_mov_b32 s97, s21"); p("s_movk_i32 s98, 256"); p("s_mov_b32 s99, 0x20000")
        p("s_waitcnt lgkmcnt(0)")
        p("s_or_b32 s44, s44, 1")
        p("v_mov_b32 v3, s44"); p("v_mov_b32 v4, 0")
        p("s_mov_b64 exec, 1")
        p("buffer_store_dword v3, v4, s[96:99], 0 offen sc1")
        p("s_mov_b64 exec, -1")
        p.label("L_c_n0")
        p("s_cmp_eq_u32 s25, 3"); p("s_cbranch_scc0 L_c_n3")
        p("s_mov_b64 exec, 0xff")
        p("s_lshl_b32 s44, s31, 10")
        p("v_lshlrev_b32 v3, 7, v1"); p("v_add_u32 v3, s44, v3")
        p(f"v_min_u32 v3, CODE_BYTES_M, v3")
        p(f"global_load_dword v31, v3, s[74:75]")
        p("s_mov_b64 exec, -1")
        p("s_mov_b32 s96, s20"); p("s_mov_b32 s97, s21"); p("s_movk_i32 s98, 256"); p("s_mov_b32 s99, 0x20000")
        p("v_mov_b32 v4, 0")
        p(f"s_mov_b32 s47, {POLL_MAX*4}")
        p.label("L_c_tag")
        p("buffer_load_dword v3, v4, s[96:99], 0 offen sc1")
        p("s_waitcnt vmcnt(0)")
        p("v_readfirstlane_b32 s44, v3")
        p("s_cmp_lg_u32 s44, 0"); p("s_cbranch_scc1 L_c_tagd")
        p("s_sub_u32 s47, s47, 1"); p("s_cmp_lg_u32 s47, 0"); p("s_cbranch_scc1 L_c_tag")
        p.label("L_c_tagd")
        p(f"v_mov_b32 v2, {SY}")
        p(f"ds_write_b32 v2, v3 offset:{W_TAG}")
        if cfg.local:
            p("s_getreg_b32 s45, hwreg(HW_REG_XCC_ID)")
            p("s_and_b32 s45, s45, 7")
            p("s_and_b32 s44, s44, 0xfffffff0"); p("s_or_b32 s44, s44, 8"); p("s_or_b32 s44, s44, s45")
            p("s_lshl_b32 s45, s26, 7"); p("s_lshl_b32 s46, s28, 5"); p("s_add_u32 s45, s45, s46")
            p("s_lshl_b32 s46, s27, 2"); p("s_add_u32 s45, s45, s46"); p(f"s_add_u32 s45, s45, {F_X}")
            p("v_mov_b32 v4, s45"); p("v_mov_b32 v5, s44")
            p("s_mov_b64 exec, 1")
            p("buffer_store_dword v5, v4, s[40:43], 0 offen sc1")
            p("s_mov_b64 exec, -1")
        p.label("L_c_n3")
        if cfg.edge:
            DE = p.newlabel("L_edge")
            p("s_cmp_eq_u32 s28, 1"); p(f"s_cbranch_scc0 {DE}")
            p("s_cmp_eq_u32 s25, 1"); p(f"s_cbranch_scc0 {DE}")
            p("s_mov_b32 s64, s6"); p("s_mov_b32 s65, s7"); p("s_mov_b32 s66, 2457600"); p("s_mov_b32 s67, 0x20000")
            p("s_lshr_b32 s44, s31, 1"); p("s_mul_i32 s44, s44, 40")
            p("s_and_b32 s45, s2, 1"); p("s_mul_i32 s45, s45, 640")
            for m in range(4):
                p(f"""
                v_add_u32 v2, {64*m}, v1
                v_min_u32 v2, 239, v2
                v_mul_u32_u24 v3, 10923, v2
                v_lshrrev_b32 v3, 16, v3
                v_mul_u32_u24 v4, 6, v3
                v_sub_u32 v4, v2, v4
                v_lshrrev_b32 v5, 1, v4
                v_mul_u32_u24 v5, 1280, v5
                v_and_b32 v4, 1, v4
                v_lshlrev_b32 v4, 9, v4
                v_add_u32 v3, s44, v3
                v_mul_u32_u24 v3, 3840, v3
                v_add3_u32 v3, v3, v4, v5
                v_add_u32 v3, s45, v3
                buffer_load_dword v{28+m}, v3, s[64:67], 0 offen
                """)
            p.label(DE)
        if cfg.edge2:
            DE = p.newlabel("L_edge2")
            p("s_cmp_eq_u32 s28, 0"); p(f"s_cbranch_scc0 {DE}")
            p("s_and_b32 s46, s27, 3"); p("s_sub_u32 s46, s46, 1"); p("s_cmp_lt_u32 s46, 2"); p(f"s_cbranch_scc0 {DE}")
            p("s_sub_u32 s47, s25, 1"); p("s_cmp_lt_u32 s47, 2"); p(f"s_cbranch_scc0 {DE}")
            p("s_mov_b32 s64, s6"); p("s_mov_b32 s65, s7"); p("s_mov_b32 s66, 2457600"); p("s_mov_b32 s67, 0x20000")
            p("s_lshl_b32 s46, s46, 2"); p("s_and_b32 s44, s26, 3"); p("s_add_u32 s44, s44, s46")
            p("s_lshl_b32 s44, s44, 1"); p("s_add_u32 s44, s44, s47"); p("s_mul_i32 s44, s44, 40")
            p("s_and_b32 s45, s2, 1"); p("s_mul_i32 s45, s45, 640")
            for m in range(4):
                p(f"""
                v_add_u32 v2, {64*m}, v1
                v_min_u32 v2, 239, v2
                v_mul_u32_u24 v3, 10923, v2
                v_lshrrev_b32 v3, 16, v3
                v_mul_u32_u24 v4, 6, v3
                v_sub_u32 v4, v2, v4
                v_lshrrev_b32 v5, 1, v4
                v_mul_u32_u24 v5, 1280, v5
                v_and_b32 v4, 1, v4
                v_lshlrev_b32 v4, 9, v4
                v_add_u32 v3, s44, v3
                v_mul_u32_u24 v3, 3840, v3
                v_add3_u32 v3, v3, v4, v5
                v_add_u32 v3, s45, v3
                buffer_load_dword v{28+m}, v3, s[64:67], 0 offen
                """)
            p.label(DE)
        if cfg.kt: self.touch_setup()
        p("s_cmp_eq_u32 s28, 0")
        p("s_cbranch_scc0 L_c_h")
        self.t12_compute('kv')
        p("s_branch L_c_t4")
        p.label("L_c_h")
        self.t12_compute('h')
        p.label("L_c_t4")
        self.t4()
        p("s_branch L_end")

    def touch_setup(self):
        p = self.p; D = self.cfg.kt
        L1, L2, LX, LD = [p.newlabel("L_tc") for _ in range(4)]
        p("s_mov_b32 s67, 0x20000"); p("s_and_b32 s47, s2, 1")
        p("s_cmp_eq_u32 s25, 1"); p(f"s_cbranch_scc1 {L1}")
        p("s_cmp_eq_u32 s25, 2"); p(f"s_cbranch_scc1 {L2}")
        p("s_mov_b32 s64, s4"); p("s_mov_b32 s65, s5"); p("s_mov_b32 s66, 2621440"); p("s_mov_b32 s68, 0")
        p("s_cmp_eq_u32 s25, 0"); p(f"s_cbranch_scc0 {LX}")
        p("s_lshl_b32 s44, s73, 9"); p("s_lshl_b32 s45, s31, 4"); p("s_add_u32 s44, s44, s45"); p("s_mul_i32 s44, s44, 1280")
        p("v_lshlrev_b32 v28, 7, v1"); p("v_add_u32 v28, s44, v28")
        p("buffer_load_dword v29, v28, s[64:67], 0 offen")
        p("v_add_u32 v28, 8192, v28"); p("buffer_load_dword v30, v28, s[64:67], 0 offen")
        p("v_add_u32 v28, 8192, v28"); p("s_mov_b32 exec_hi, 0"); p("buffer_load_dword v31, v28, s[64:67], 0 offen"); p("s_mov_b64 exec, -1")
        p.label(LX)
        p(f"v_mov_b32 v28, {OOB}")
        p(f"s_branch {LD}")
        p.label(L1)
        p("s_mov_b32 s64, s6"); p("s_mov_b32 s65, s7"); p("s_mov_b32 s66, 2457600"); p("s_mov_b32 s68, 245760")
        p("""
        v_min_u32 v2, 29, v1
        v_cmp_le_u32 vcc, 15, v2
        v_cndmask_b32 v3, 0, 1, vcc
        v_mul_u32_u24 v4, 15, v3
        v_sub_u32 v4, v2, v4
        v_mul_u32_u24 v5, 13, v4
        v_lshrrev_b32 v5, 6, v5
        v_mul_u32_u24 v6, 5, v5
        v_sub_u32 v6, v4, v6
        s_lshl_b32 s44, s31, 1
        v_add_u32 v3, s44, v3
        v_mul_u32_u24 v3, 3840, v3
        v_mul_u32_u24 v5, 1280, v5
        v_lshl_add_u32 v3, v6, 7, v3
        s_mul_i32 s44, s47, 640
        v_add3_u32 v28, v3, v5, s44
        """)
        p(f"s_branch {LD + 'i'}")
        p.label(L2)
        p("s_mov_b32 s64, s12"); p("s_mov_b32 s65, s13"); p("s_mov_b32 s66, 1966080"); p("s_mov_b32 s68, 196608")
        p("""
        v_min_u32 v2, 23, v1
        v_cmp_le_u32 vcc, 12, v2
        v_cndmask_b32 v3, 0, 1, vcc
        v_mul_u32_u24 v4, 12, v3
        v_sub_u32 v4, v2, v4
        s_lshl_b32 s44, s31, 1
        v_add_u32 v3, s44, v3
        v_mul_u32_u24 v3, 3072, v3
        v_lshl_add_u32 v3, v4, 7, v3
        s_mul_i32 s44, s47, 1536
        v_add_u32 v28, s44, v3
        """)
        p.label(LD + 'i')
        for st in range(D):
            p(f"buffer_load_dword v29, v28, s[64:67], 0 offen")
            p("v_add_u32 v28, s68, v28")
        p.label(LD)

    def t12_compute(self, kind):
        p = self.p
        typ = 0 if kind == 'kv' else 1
        NT = 5 if kind == 'kv' else 6
        SETSZ = 16 + 4 * NT
        ACC = 32
        def xf(s, st): return SETSZ * s + 4 * st
        def wf(s, t): return SETSZ * s + 16 + 4 * t
        def acc(t, st): return ACC + (t * 4 + st) * 4
        if kind == 'kv':
            QACC = lambda i, st: 112 + (i*4 + st)*4
            QXACC = lambda k: 144 + 4*k
            GACC = 152
            QF = [72, 76, 80]; GF = 84
            NACC = 124
        else:
            GACC = 128; GF = 80; NACC = 100
        p("""
        s_lshr_b32 s48, s25, 1
        s_and_b32 s49, s25, 1
        v_lshrrev_b32 v2, 4, v1
        v_bfe_u32 v3, v1, 2, 2
        v_and_b32 v4, 3, v1
        v_bfe_u32 v5, v1, 3, 1
        s_lshl_b32 s44, s48, 3
        v_add_u32 v5, s44, v5
        v_lshlrev_b32 v5, 10, v5
        v_and_b32 v6, 7, v1
        v_lshl_add_u32 v5, v6, 7, v5
        v_xor_b32 v7, v2, v6
        v_lshl_add_u32 v8, v7, 4, v5
        v_xor_b32 v7, 4, v7
        v_lshl_add_u32 v9, v7, 4, v5
        v_lshrrev_b32 v5, 1, v2
        v_lshlrev_b32 v5, 4, v5
        v_and_b32 v6, 1, v2
        v_lshl_add_u32 v5, v6, 2, v5
        v_add_u32 v5, v5, v3
        """)
        self.rot10("s53")
        p("s_lshl_b32 s44, s53, 7"); p(f"s_add_u32 s44, s44, {GW}")
        p("v_lshlrev_b32 v19, 4, v2"); p("v_add_u32 v19, s44, v19")
        if kind == 'kv':
            p(f"""
            v_mul_u32_u24 v6, 160, v5
            v_add_u32 v7, {QOFF}, v6
            s_mul_i32 s44, s49, 80
            v_lshlrev_b32 v16, 3, v4
            v_add3_u32 v16, v16, v7, s44
            v_mul_u32_u24 v17, 40, v4
            v_add3_u32 v17, v17, v7, 32
            v_add_u32 v6, 16384, v6
            v_lshlrev_b32 v7, 3, v4
            v_add3_u32 v10, v6, v7, s44
            v_lshrrev_b32 v7, 1, v4
            v_xor_b32 v7, s49, v7
            v_mul_u32_u24 v7, {SEG}, v7
            v_and_b32 v13, 1, v4
            v_mul_u32_u24 v13, 40, v13
            v_add3_u32 v13, v13, v6, s44
            v_add3_u32 v11, v13, v7, 32
            """)
            def wread(t, s, b2):
                ro = (32 * s + 8 * b2) * 160
                if t in (0, 1): return ("v10", 40 * t + ro)
                if t in (2, 3): return ("v10", SEG + 40 * (t - 2) + ro)
                return ("v11", ro)
            addr_regs = [8, 9, 10, 11, 16, 17]
            transposed = lambda t: False
        else:
            p(f"""
            v_mul_u32_u24 v6, 384, v5
            v_add_u32 v6, 16384, v6
            v_and_b32 v7, 1, v4
            v_lshl_add_u32 v6, v7, 3, v6
            v_and_b32 v7, 6, v5
            v_lshrrev_b32 v20, 1, v4
            s_mul_i32 s44, s49, 12
            v_add_u32 v20, s44, v20
            """)
            for t in range(6):
                p(f"""
                v_add_u32 v21, {2*t}, v20
                v_xor_b32 v21, v21, v7
                v_lshl_add_u32 v{10+t}, v21, 4, v6
                """)
            def wread(t, s, b2): return (f"v{10+t}", (32 * s + 8 * b2) * 384)
            addr_regs = [8, 9, 10, 11, 12, 13, 14, 15]
            transposed = lambda t: True
        def base_reads(s_dst, s_k):
            vx = "v8" if s_k == 0 else "v9"
            xs = [f"ds_read_b128 {ar(xf(s_dst, st), 4)}, {vx} offset:{st*2048}" for st in range(4)]
            ws = []
            for t in range(NT):
                for b2 in range(2):
                    a, off = wread(t, s_k, b2)
                    ws.append(f"ds_read_b64_tr_b16 {ar(wf(s_dst, t) + 2*b2, 2)}, {a} offset:{off}")
            return [xs[0]] + ws[:4] + [xs[1]] + ws[4:8] + [xs[2]] + ws[8:10] + [xs[3]] + ws[10:]
        def q_reads(s_k):
            L = []
            if kind == 'kv' and not self.cfg.noqread:
                for b2 in range(2):
                    ro = (32 * s_k + 8 * b2) * 160
                    L.append(f"ds_read_b64_tr_b16 {ar(QF[0]+2*b2, 2)}, v16 offset:{ro}")
                    L.append(f"ds_read_b64_tr_b16 {ar(QF[1]+2*b2, 2)}, v16 offset:{ro + 40}")
                    L.append(f"ds_read_b64_tr_b16 {ar(QF[2]+2*b2, 2)}, v17 offset:{ro}")
            L.append(f"ds_read_b128 {ar(GF, 4)}, v19 offset:{64*s_k}")
            return L
        def base_mfmas(s):
            L = []
            for st in range(4):
                for t in range(NT):
                    A, B = (ar(wf(s, t), 4), ar(xf(s, st), 4)) if transposed(t) else (ar(xf(s, st), 4), ar(wf(s, t), 4))
                    c = vr(acc(t, st), 4)
                    L.append(f"v_mfma_f32_16x16x32_bf16 {c}, {A}, {B}, {c}")
            return L
        def q_mfmas(s):
            if self.cfg.noqread: return
            if kind == 'kv':
                for st in range(4):
                    for i in range(2):
                        c = vr(QACC(i, st), 4)
                        p(f"v_mfma_f32_16x16x32_bf16 {c}, {ar(QF[i],4)}, {ar(xf(s, st),4)}, {c}")
            LA, LB = p.newlabel("L_qm"), p.newlabel("L_qm")
            p("s_cmp_eq_u32 s49, 0"); p(f"s_cbranch_scc0 {LA}")
            for ch in range(2):
                if ch == 1: p.label(LA)
                if kind == 'kv':
                    for k in range(2):
                        c = vr(QXACC(k), 4)
                        p(f"v_mfma_f32_16x16x32_bf16 {c}, {ar(QF[2],4)}, {ar(xf(s, 2*ch + k),4)}, {c}")
                c = vr(GACC, 4)
                p(f"v_mfma_f32_16x16x32_bf16 {c}, {ar(GF,4)}, {ar(xf(s, 2*typ + ch),4)}, {c}")
                if ch == 0: p(f"s_branch {LB}")
            p.label(LB)
        def phase(s, rd, extra=()):
            q_mfmas(s)
            M = base_mfmas(s); other = list(rd) + list(extra)
            k = 0
            for i, m in enumerate(M):
                if not self.cfg.nomfma: p(m)
                for _ in range(2):
                    if k < len(other): p(other[k]); k += 1
            while k < len(other): p(other[k]); k += 1
        for i in range(NACC): p(f"v_mov_b32 v{ACC+i}, 0")
        p("s_mov_b32 s50, 0"); p("s_mov_b32 s51, 10"); p(f"s_mov_b32 s55, {STG}"); p("s_movk_i32 s54, 128")
        p("s_waitcnt lgkmcnt(0)")
        self.stamp(1)
        p("s_barrier")
        p(f"v_mov_b32 v2, {SY}")
        p(f"ds_read_b32 v3, v2 offset:{W_TAG}")
        for r in base_reads(0, 0) + q_reads(0): p(r)
        p("s_waitcnt lgkmcnt(0)")
        p("v_readfirstlane_b32 s30, v3")
        self.stamp(2)
        if self.cfg.span: self.span_mark(2)
        L = f"L_t12_loop_{kind}"
        p.label(L)
        upd = ["s_add_u32 s50, s50, 1", "s_cmp_eq_u32 s50, 3",
               f"s_cselect_b32 s52, {(-2*STG) & 0xffffffff}, s55", "s_cselect_b32 s50, 0, s50"] + \
              [f"v_add_u32 v{r}, s52, v{r}" for r in addr_regs] + \
              ["s_add_u32 s53, s53, 1", "s_cmp_eq_u32 s53, 10", f"s_cselect_b32 s52, {(-1152) & 0xffffffff}, s54", "s_cselect_b32 s53, 0, s53",
               "v_add_u32 v19, s52, v19"]
        phase(0, q_reads(1) + base_reads(1, 1), upd)
        p("s_waitcnt lgkmcnt(0)")
        p("s_barrier")
        tch = ["buffer_load_dword v29, v28, s[64:67], 0 offen", "v_add_u32 v28, s68, v28"] if self.cfg.kt else []
        phase(1, q_reads(0) + base_reads(0, 0), tch)
        p("s_waitcnt lgkmcnt(0)")
        p("s_sub_u32 s51, s51, 1"); p("s_cmp_lg_u32 s51, 0"); p(f"s_cbranch_scc1 {L}")
        self.stamp(3)
        self.stamp2(1)
        if self.cfg.span: self.span_mark(3)
        if self.cfg.t12only:
            for k in range(4, 10): self.stamp(k)
            self.stamp_flush(10)
            p("s_branch L_end")
        p("s_waitcnt vmcnt(0)")
        p("v_lshlrev_b32 v18, 4, v1")
        self.early_A()
        if kind == 'h':
            self.epilogue_h(acc, last=True)
            self.epilogue_gate(GACC)
        else:
            self.epilogue_kv(acc)
            self.stamp3(6)
            self.epilogue_gate(GACC)
            self.epilogue_q(QACC, QXACC)
            self.stamp3(7)
        p("s_waitcnt vmcnt(0)")
        self.stamp3(8)
        if kind == 'h':
            p("s_lshl_b32 s44, s26, 10"); p("s_lshl_b32 s45, s27, 7"); p("s_add_u32 s44, s44, s45"); p(f"s_add_u32 s44, s44, {F_H}")
        else:
            p("s_lshl_b32 s44, s27, 11"); p("s_lshl_b32 s45, s26, 7"); p("s_add_u32 s44, s44, s45"); p(f"s_add_u32 s44, s44, {F_KV}")
        self.publish_last(W_PUB1, 4, "s44")
        self.stamp3(9)
        self.stamp(4)
        self.stamp2(2)
        if self.cfg.span: self.span_mark(4)

    def early_A(self):
        p = self.p
        def frag(setn, f):
            idx = setn*9 + f
            return ar(idx*4, 4)
        self.lds_wait(W_JOK, 3)
        p(f"s_mul_i32 s44, s27, {WP_CG}"); p(f"s_add_u32 s44, s44, {WS_WP}")
        p("v_add_u32 v30, s44, v18"); p("v_add_u32 v31, 4096, v30")
        self.t4_rot("s62", "s63")
        for j in range(2):
            p("s_mul_i32 s44, s25, 12"); p("s_add_u32 s44, s44, s62")
            p("s_add_u32 s62, s62, 1"); p("s_cmp_eq_u32 s62, 12"); p("s_cselect_b32 s62, 0, s62")
            p("s_mul_i32 s44, s44, 5120")
            for t in range(4): p(f"buffer_load_dwordx4 {frag(j, 4+t)}, v30, s[40:43], s44 offen offset:{t*1024} sc1")
            p(f"buffer_load_dwordx4 {frag(j, 8)}, v31, s[40:43], s44 offen sc1")

    def epilogue_gate(self, GACC):
        p = self.p
        p(f"s_mov_b32 s58, {LOG2E}")
        p(f"v_mul_f32 v6, s58, v{GACC}")
        p("v_sub_f32 v6, 0, v6")
        p("s_mov_b32 s59, 0x42700000")
        p("v_min_f32 v6, s59, v6")
        p("v_exp_f32 v6, v6")
        p("v_add_f32 v7, 1.0, v6"); p("v_rcp_f32 v7, v7")
        p("s_lshl_b32 s44, s25, 6")
        p("v_and_b32 v5, 15, v1"); p("v_lshlrev_b32 v5, 2, v5"); p("v_add_u32 v5, s44, v5")
        p(f"v_add_u32 v5, {GL}, v5")
        p("ds_write_b32 v5, v7")
        p(f"ds_write_b32 v5, v6 offset:{GR-GL}")
        p("s_waitcnt lgkmcnt(0)")
        self.lds_signal(W_GT)

    def epilogue_q(self, QACC, QXACC):
        p = self.p
        regs = [QACC(i, st) + e for i in range(2) for st in range(4) for e in range(4)] + [QXACC(k) + e for k in range(2) for e in range(4)]
        tmp = [32 + (t*4 + st)*4 + e for t in range(5) for st in (0, 2) for e in range(4)]
        p(f"s_mov_b32 s58, {LOG2E}"); p(f"s_mov_b32 s59, {LOG2E}"); p(f"s_mov_b32 s66, {EPS6}"); p(f"s_mov_b32 s67, {EPS6}")
        n = len(regs)
        for i in range(0, n, 2): p(f"v_pk_mul_f32 v[{tmp[i]}:{tmp[i]+1}], v[{regs[i]}:{regs[i]+1}], s[58:59]")
        for a, t in zip(regs, tmp): p(f"v_exp_f32 v{t}, v{t} clamp")
        for a in regs: p(f"v_max_f32 v{a}, 0, v{a}")
        for i in range(0, n, 2): p(f"v_pk_add_f32 v[{tmp[i]}:{tmp[i]+1}], v[{tmp[i]}:{tmp[i]+1}], s[66:67]")
        for i in range(0, n, 2): p(f"v_pk_add_f32 v[{regs[i]}:{regs[i]+1}], v[{regs[i]}:{regs[i]+1}], v[{tmp[i]}:{tmp[i]+1}]")
        p(f"s_mov_b32 s44, {BQL1}"); p("s_cmp_eq_u32 s48, 0"); p(f"s_cselect_b32 s44, {BQL0}, s44")
        p("s_lshl_b32 s45, s49, 10"); p("s_add_u32 s45, s45, s44")
        p("v_lshlrev_b32 v5, 3, v1"); p("v_add_u32 v6, s45, v5")
        for i in range(2):
            for st in range(4):
                a = QACC(i, st)
                p(f"v_cvt_pk_bf16_f32 v{a}, v{a}, v{a+1}"); p(f"v_cvt_pk_bf16_f32 v{a+1}, v{a+2}, v{a+3}")
                p(f"ds_write_b64 v6, v[{a}:{a+1}] offset:{st*2560 + i*512}")
        p("s_mul_i32 s45, s49, 5120"); p("s_add_u32 s45, s45, s44"); p("v_add_u32 v6, s45, v5")
        for k in range(2):
            a = QXACC(k)
            p(f"v_cvt_pk_bf16_f32 v{a}, v{a}, v{a+1}"); p(f"v_cvt_pk_bf16_f32 v{a+1}, v{a+2}, v{a+3}")
            p(f"ds_write_b64 v6, v[{a}:{a+1}] offset:{k*2560 + 2048}")
        p("s_waitcnt lgkmcnt(0)")
        self.lds_signal(W_BQ)

    def epilogue_h(self, acc, last):
        p = self.p
        p(f"""
        s_lshl_b32 s44, s26, 3
        s_lshl_b32 s45, s48, 2
        s_add_u32 s44, s44, s45
        s_mul_i32 s44, s44, {AP_ST}
        s_mul_i32 s45, s27, 6
        s_mul_i32 s46, s49, 3
        s_add_u32 s45, s45, s46
        s_lshl_b32 s45, s45, 10
        s_add_u32 s44, s44, s45
        s_add_u32 s44, s44, {WS_AP}
        v_add_u32 v5, s44, v18
        """)
        if self.cfg.local: self.read_loc()
        for st in range(4):
            for pp in range(3):
                a0, a1 = acc(2*pp, st), acc(2*pp+1, st)
                p(f"v_cvt_pk_bf16_f32 v{a0}, v{a0}, v{a0+1}")
                p(f"v_cvt_pk_bf16_f32 v{a0+1}, v{a0+2}, v{a0+3}")
                p(f"v_cvt_pk_bf16_f32 v{a0+2}, v{a1}, v{a1+1}")
                p(f"v_cvt_pk_bf16_f32 v{a0+3}, v{a1+2}, v{a1+3}")
                for i in range(4): p(f"v_pk_max_i16 v{a0+i}, v{a0+i}, 0")
        for st in range(1, 4): p(f"v_add_u32 v{7+st}, {AP_ST*st}, v5")
        p("v_mov_b32 v7, v5")
        def stores(sc):
            for st in range(4):
                for pp in range(3):
                    a0 = acc(2*pp, st)
                    p(f"buffer_store_dwordx4 v[{a0}:{a0+3}], v{7+st}, s[40:43], 0 offen offset:{pp*1024}{sc}")
        self.dual(stores)

    def epilogue_kv(self, acc):
        p = self.p
        K0, K1, V0, V1, X = range(5)
        p(f"s_mov_b32 s53, {LOG2E}"); p(f"s_mov_b32 s54, {EPS6}")
        p("v_lshrrev_b32 v2, 4, v1"); p("v_and_b32 v3, 15, v1")
        p("v_lshrrev_b32 v4, 3, v3"); p("v_cmp_eq_u32 s[56:57], s49, v4")
        p("v_lshrrev_b32 v7, 1, v2"); p("v_cmp_eq_u32 s[58:59], s49, v7")
        T0 = 20
        p(f"s_mov_b32 s52, {LOG2E}"); p(f"s_mov_b32 s66, {EPS6}"); p(f"s_mov_b32 s67, {EPS6}")
        def phi_group(regs, tm, dst=None):
            n = len(regs); dst = dst or regs
            for i in range(0, n, 2): p(f"v_pk_mul_f32 v[{tm+i}:{tm+i+1}], v[{regs[i]}:{regs[i]+1}], s[52:53]")
            for i in range(n): p(f"v_exp_f32 v{tm+i}, v{tm+i} clamp")
            for i in range(n): p(f"v_max_f32 v{dst[i]}, 0, v{regs[i]}")
            for i in range(0, n, 2): p(f"v_pk_add_f32 v[{tm+i}:{tm+i+1}], v[{tm+i}:{tm+i+1}], s[66:67]")
            for i in range(0, n, 2): p(f"v_pk_add_f32 v[{dst[i]}:{dst[i]+1}], v[{dst[i]}:{dst[i]+1}], v[{tm+i}:{tm+i+1}]")
        for st in range(4):
            phi_group([acc(K0, st)+i for i in range(4)] + [acc(K1, st)+i for i in range(4)], T0)
            a = acc(X, st)
            phi_group([a+i for i in range(4)], T0, dst=[T0+4+i for i in range(4)])
            for i in range(4): p(f"v_cndmask_b32 v{a+i}, v{a+i}, v{T0+4+i}, s[56:57]")
        self.stamp3(2)
        for t in (K0, K1, V0, V1, X):
            for kk in range(2):
                a, b = acc(t, 2*kk), acc(t, 2*kk+1)
                p(f"v_cvt_pk_bf16_f32 v{a}, v{a}, v{a+1}")
                p(f"v_cvt_pk_bf16_f32 v{a+1}, v{a+2}, v{a+3}")
                p(f"v_cvt_pk_bf16_f32 v{a+2}, v{b}, v{b+1}")
                p(f"v_cvt_pk_bf16_f32 v{a+3}, v{b+2}, v{b+3}")
        fr = lambda t, kk: vr(acc(t, 2*kk), 4)
        free = [acc(t, s) for t in (K0, K1, V0, V1, X) for s in (1, 3)]
        KV0, KV1, KX0, KX1, XV0, XV1, XX, Z0, Z1, ZX = free
        ONES = T0
        for i in range(4): p(f"v_mov_b32 v{ONES+i}, 0x3f803f80")
        ones = vr(ONES, 4)
        for kk in range(2):
            for (d, A, B) in ((KV0, fr(K0,kk), fr(V0,kk)), (KV1, fr(K1,kk), fr(V1,kk)), (KX0, fr(K0,kk), fr(X,kk)),
                              (KX1, fr(K1,kk), fr(X,kk)), (XV0, fr(X,kk), fr(V0,kk)), (XV1, fr(X,kk), fr(V1,kk)),
                              (XX, fr(X,kk), fr(X,kk)), (Z0, fr(K0,kk), ones), (Z1, fr(K1,kk), ones), (ZX, fr(X,kk), ones)):
                c = "0" if kk == 0 else vr(d, 4)
                p(f"v_mfma_f32_16x16x32_bf16 {vr(d,4)}, {A}, {B}, {c}")
        p("v_bfe_u32 v4, v3, 2, 1"); p("v_cmp_eq_u32 s[60:61], 1, v4")
        p("v_and_b32 v4, 1, v2"); p("v_cmp_eq_u32 s[62:63], 1, v4")
        p("v_and_b32 v4, 1, v3"); p("v_cmp_eq_u32 s[64:65], 1, v4")
        for i in range(4): p(f"v_cndmask_b32 v{KX0+i}, v{KX0+i}, v{KX1+i}, s[60:61]")
        for i in range(4): p(f"v_cndmask_b32 v{XV0+i}, v{XV0+i}, v{XV1+i}, s[62:63]")
        for i in range(4): p(f"v_cndmask_b32 v{Z0+i}, v{Z0+i}, v{Z1+i}, s[64:65]")
        p("s_lshl_b32 s44, s49, 2"); p("v_lshrrev_b32 v4, 1, v3"); p("v_cmp_eq_u32 s[60:61], s44, v4")
        p("s_lshl_b32 s44, s49, 3"); p("s_add_u32 s44, s44, 4"); p("v_cmp_eq_u32 s[62:63], s44, v3")
        for i in range(4): p(f"v_cndmask_b32 v{XX+i}, v{XX+i}, v{Z0+i}, s[60:61]")
        for i in range(4): p(f"v_cndmask_b32 v{XX+i}, v{XX+i}, v{ZX+i}, s[62:63]")
        self.stamp3(3)
        tiles = [KV0, KV1, KX0, XV0, XX]
        p("s_mul_i32 s44, s49, 5120"); p(f"s_add_u32 s44, s44, {KVRED}")
        p("v_add_u32 v4, s44, v18")
        R0 = p.newlabel("L_kr")
        p("s_cmp_eq_u32 s48, 0"); p(f"s_cbranch_scc1 {R0}")
        for j, t in enumerate(tiles): p(f"ds_write_b128 v4, {vr(t,4)} offset:{j*1024}")
        p.label(R0)
        self.cbar(vtmp=(5, 6))
        self.stamp3(4)
        TMs = [acc(t, 0) for t in range(5)]
        for j in range(5): p(f"ds_read_b128 {vr(TMs[j],4)}, v4 offset:{j*1024}")
        p("s_waitcnt lgkmcnt(0)")
        for j, t in enumerate(tiles):
            m = TMs[j]
            p(f"v_pk_add_f32 v[{t}:{t+1}], v[{t}:{t+1}], v[{m}:{m+1}]")
            p(f"v_pk_add_f32 v[{t+2}:{t+3}], v[{t+2}:{t+3}], v[{m+2}:{m+3}]")
        for i in range(4): p(f"v_cndmask_b32 v{KX0+i}, v{KX0+i}, 0, s[56:57]")
        for i in range(4): p(f"v_cndmask_b32 v{XV0+i}, 0, v{XV0+i}, s[58:59]")
        self.lds_wait(W_ZOK, 2, vtmp=(5, 6))
        self.stamp3(5)
        p(f"""
        s_lshl_b32 s44, s27, 13
        s_add_u32 s44, s44, {WS_KVS}
        s_cmp_eq_u32 s48, 0
        s_cselect_b32 s44, s44, {OOB}
        v_lshlrev_b32 v4, 2, v1
        v_add_u32 v4, s44, v4
        s_lshl_b32 s45, s49, 11
        v_add_u32 v5, s45, v4
        v_add_u32 v6, 4096, v4
        s_lshl_b32 s45, s49, 10
        v_add_u32 v7, s45, v4
        v_add_u32 v7, 6144, v7
        """)
        for (t, a, off) in ((KV0, "v5", 0), (KV1, "v5", 1024), (KX0, "v6", 0), (XV0, "v6", 1024), (XX, "v7", 0)):
            for e in range(4):
                p(f"buffer_atomic_add_f32 v{t+e}, {a}, s[40:43], 0 offen offset:{off + 256*e}")

    def t4(self):
        p = self.p
        ACC = 32
        acc = lambda sg, t: ACC + (sg*5 + t)*4
        def frag(setn, f):
            idx = setn*9 + f
            return ar(idx*4, 4) if idx < 24 else vr(112 + (idx-24)*4, 4)
        AF = lambda j, t: frag(j % PD, 4 + t)
        BF = lambda j, sg: frag(j % PD, sg)
        VB = 8; VA, VA2 = 6, 7
        def stile(sg, out):
            p(f"s_add_u32 s44, s25, {sg}"); p("s_and_b32 s44, s44, 3")
            p("s_lshr_b32 s45, s44, 1"); p("s_lshl_b32 s45, s45, 2"); p("s_and_b32 s46, s44, 1"); p("s_add_u32 s45, s45, s46")
            p("s_lshl_b32 s46, s28, 1"); p("s_add_u32 s45, s45, s46"); p("s_lshl_b32 s46, s26, 3"); p(f"s_add_u32 {out}, s45, s46")
        for sg in range(4):
            stile(sg, "s47")
            if sg == 0: p("s_mov_b32 s71, s47")
            p(f"s_mul_i32 s47, s47, {AP_ST}"); p(f"s_add_u32 s47, s47, {WS_AP}")
            p(f"v_add_u32 v{VB+sg}, s47, v18")
        p(f"s_mul_i32 s44, s27, {WP_CG}"); p(f"s_add_u32 s44, s44, {WS_WP}")
        p(f"v_add_u32 v{VA}, s44, v18"); p(f"v_add_u32 v{VA2}, 4096, v{VA}")
        p("s_mul_i32 s52, s25, 12"); p("s_mul_i32 s53, s25, 5"); p("s_add_u32 s53, s53, 48")
        self.t4_rot()
        def ks_next(j):
            if j < 12:
                p("s_add_u32 s54, s52, s56")
                p("s_add_u32 s56, s56, 1"); p("s_cmp_eq_u32 s56, 12"); p("s_cselect_b32 s56, 0, s56")
            else:
                p("s_add_u32 s54, s53, s57")
                p("s_add_u32 s57, s57, 1"); p("s_cmp_eq_u32 s57, 5"); p("s_cselect_b32 s57, 0, s57")
            p(f"s_lshl_b32 s{62 + (j % PD)}, s54, 10")
            p("s_mul_i32 s55, s54, 5120")
        def loadA(j):
            for t in range(4): p(f"buffer_load_dwordx4 {AF(j,t)}, v{VA}, s[40:43], s55 offen offset:{t*1024} sc1")
            p(f"buffer_load_dwordx4 {AF(j,4)}, v{VA2}, s[40:43], s55 offen sc1")
        def loadB(j):
            for sg in range(4):
                p(f"buffer_load_dwordx4 {BF(j, sg)}, v{VB+sg}, s[40:43], s{62 + (j % PD)} offen sc1")
        q = []
        def wait_for(tag):
            tags = [t for t, _ in q]
            if tag not in tags: return
            idx = tags.index(tag)
            p(f"s_waitcnt vmcnt({sum(k for _, k in q[idx+1:])})")
            del q[:idx+1]
        self.lds_wait(W_GT, 4)
        p("v_and_b32 v5, 15, v1"); p("v_lshlrev_b32 v5, 2, v5")
        for sg in range(4):
            p(f"s_add_u32 s44, s25, {sg}"); p("s_and_b32 s44, s44, 3"); p("s_lshl_b32 s44, s44, 6"); p(f"s_add_u32 s44, s44, {GL}")
            p("v_add_u32 v16, s44, v5")
            p(f"ds_read_b32 v{12+sg}, v16 offset:{GR-GL}")
            if sg == 0: p("ds_read_b32 v19, v16")
        for j in range(PD):
            ks_next(j)
            if j >= 2: loadA(j); q.append((f"A{j}", 5))
        self.lds_wait(W_HR, 1, sleep=self.cfg.csleep)
        self.stamp2(3)
        for j in range(PD):
            loadB(j); q.append((f"B{j}", 4))
        self.stamp(5)
        self.stamp2(4)
        NS = 17
        self.stamp(6)
        for j in range(NS):
            nxt = j + PD
            wait_for(f"A{j}"); wait_for(f"B{j}")
            if j == 1: self.stamp(7); self.stamp2(5)
            if j == 12:
                self.stamp(8)
                for sg in range(4):
                    for t in range(5):
                        for i in range(4): p(f"v_mul_f32 v{acc(sg,t)+i}, v{acc(sg,t)+i}, v{12+sg}")
            for sg in range(4):
                for t in range(5):
                    c = vr(acc(sg, t), 4)
                    p(f"v_mfma_f32_16x16x32_bf16 {c}, {AF(j,t)}, {BF(j,sg)}, {'0' if j == 0 else c}")
            if nxt < NS:
                ks_next(nxt); loadA(nxt); q.append((f"A{nxt}", 5))
                if nxt < 12 or nxt > 11 + PD:
                    loadB(nxt); q.append((f"B{nxt}", 4))
            if j == 11:
                if self.cfg.span: self.span_mark(5)
                self.stamp2(6); self.lds_wait(W_OR, 1, sleep=self.cfg.csleep); self.stamp2(7)
                if self.cfg.span: self.span_mark(6)
                for jj in range(12, min(NS, 12 + PD)):
                    loadB(jj); q.append((f"B{jj}", 4))
        self.stamp2(8)
        for sg in range(1, 4):
            p(f"s_add_u32 s44, s25, {sg}"); p("s_and_b32 s44, s44, 3"); p("s_mul_i32 s44, s44, 3"); p(f"s_add_u32 s44, s44, {sg-1}")
            p("s_mul_i32 s45, s44, 5120")
            p("v_add_u32 v5, s45, v18")
            for t in range(5): p(f"ds_write_b128 v5, {vr(acc(sg,t),4)} offset:{t*1024}")
        self.cbar()
        p("s_mul_i32 s45, s25, 15360")
        p("v_add_u32 v5, s45, v18")
        for k in range(3):
            for t in range(5): p(f"ds_read_b128 {vr(acc(1+k,t),4)}, v5 offset:{k*5120+t*1024}")
        p("s_waitcnt lgkmcnt(0)")
        for k in range(3):
            for t in range(5):
                a, b = acc(0, t), acc(1+k, t)
                p(f"v_pk_add_f32 v[{a}:{a+1}], v[{a}:{a+1}], v[{b}:{b+1}]")
                p(f"v_pk_add_f32 v[{a+2}:{a+3}], v[{a+2}:{a+3}], v[{b+2}:{b+3}]")
        O = 112
        for t in range(5):
            for i in range(4): p(f"v_mul_f32 v{acc(0,t)+i}, v{acc(0,t)+i}, v19")
        for t in range(5):
            a = acc(0, t)
            p(f"v_cvt_pk_bf16_f32 v{O+2*t}, v{a}, v{a+1}")
            p(f"v_cvt_pk_bf16_f32 v{O+2*t+1}, v{a+2}, v{a+3}")
        p("""
        s_mov_b32 s32, s18
        s_mov_b32 s33, s19
        s_mov_b32 s34, 2621440
        s_mov_b32 s35, 0x20000
        v_lshrrev_b32 v2, 4, v1
        v_and_b32 v3, 15, v1
        s_lshl_b32 s44, s71, 4
        v_add_u32 v3, s44, v3
        v_mul_u32_u24 v3, 1280, v3
        v_mul_u32_u24 v2, 40, v2
        s_mul_i32 s44, s27, 160
        v_add3_u32 v3, v3, v2, s44
        """)
        p(f"buffer_store_dwordx4 v[{O}:{O+3}], v3, s[32:35], 0 offen")
        p(f"buffer_store_dwordx4 v[{O+4}:{O+7}], v3, s[32:35], 0 offen offset:16")
        p(f"buffer_store_dwordx2 v[{O+8}:{O+9}], v3, s[32:35], 0 offen offset:32")
        self.stamp(9)
        self.stamp2(9)
        self.stamp_flush(10)
        if self.cfg.span:
            self.span_mark(1)

    def span_mark(self, word):
        p = self.p
        D = p.newlabel("L_sm")
        p("s_and_b32 s44, s2, 0xf7"); p("s_cmp_eq_u32 s44, 0x21"); p(f"s_cbranch_scc0 {D}")
        p("s_cmp_eq_u32 s24, 0"); p(f"s_cbranch_scc0 {D}")
        p("s_memrealtime s[44:45]"); p("s_waitcnt lgkmcnt(0)")
        p("s_sub_u32 s44, s44, s30")
        p("s_mov_b32 s96, s20"); p("s_mov_b32 s97, s21"); p("s_movk_i32 s98, 256"); p("s_mov_b32 s99, 0x20000")
        p("s_lshl_b32 s45, s28, 5"); p(f"s_add_u32 s45, s45, {4*word}")
        p("v_mov_b32 v2, s44"); p("v_mov_b32 v3, s45")
        p("s_mov_b64 exec, 1")
        p("buffer_store_dword v2, v3, s[96:99], 0 offen sc1")
        p("s_mov_b64 exec, -1")
        p.label(D)

def kd(name, vgpr, accum, sgpr=102):
    return f""".amdhsa_kernel {name}
  .amdhsa_next_free_vgpr {vgpr}
  .amdhsa_next_free_sgpr {sgpr}
  .amdhsa_accum_offset {accum}
  .amdhsa_group_segment_fixed_size 0
  .amdhsa_kernarg_size 80
  .amdhsa_user_sgpr_count 2
  .amdhsa_user_sgpr_kernarg_segment_ptr 1
  .amdhsa_system_sgpr_workgroup_id_x 1
.end_amdhsa_kernel
"""

def head_comment():
    f = "cdna_kernels/" + NAME + ".s.ref"
    return open(f).read().split("; Override launch")[0] if os.path.exists(f) else ""

def build(cfg):
    g = Gen(cfg); g.emit()
    body = g.p.text(verbose=True)
    hdr = head_comment() + f"""; @launch grid=(256,1,1) block=(512,1,1) lds={LDS_BYTES}
.amdgcn_target "amdgcn-amd-amdhsa--gfx950"
.text
.globl {KNAME}
.p2align 8
.type {KNAME},@function
{KNAME}:
"""
    body = body.replace("CODE_BYTES_M", f".Lcode_end-{KNAME}-512")
    tail = ".Lcode_end:\n"
    return hdr + body + tail + '.section .rodata,"a"\n.p2align 6\n' + kd(KNAME, 256, 160)

if __name__ == "__main__":
    cfg = Cfg()
    cfg.stamps = "stamps" in sys.argv
    cfg.dbg2 = "dbg2" in sys.argv
    cfg.rot = "norot" not in sys.argv
    cfg.local = "nolocal" not in sys.argv
    cfg.t12only = "t12only" in sys.argv
    cfg.map81 = "map81" in sys.argv
    cfg.spoll = "vpoll" not in sys.argv
    cfg.kv1 = "kv1" in sys.argv
    cfg.prio = "noprio" not in sys.argv
    cfg.edge = "edge" in sys.argv
    cfg.edge2 = "edgekv" in sys.argv
    cfg.csleep = "csleep" in sys.argv
    for a in sys.argv:
        if a.startswith("prio0="): cfg.prio0 = int(a[6:])
    for a in sys.argv:
        if a.startswith("kt="): cfg.kt = int(a[3:])
    cfg.hst = "hst" in sys.argv
    if cfg.hst: cfg.dbg2 = True; cfg.dbg3 = True
    cfg.dbg3 = "dbg3" in sys.argv
    if cfg.dbg3: cfg.dbg2 = True
    for a in sys.argv:
        if a.startswith("j="): cfg.jl, cfg.jp, cfg.jf = [int(x) for x in a[2:].split(",")]
    for a in sys.argv:
        if a.startswith("rtab="): cfg.rtab = [int(c, 16) for c in a[5:]]
    cfg.span = "span" in sys.argv
    cfg.noqdma = "noqdma" in sys.argv
    cfg.noqread = "noqread" in sys.argv
    cfg.nomfma = "nomfma" in sys.argv
    cfg.stouch = "stouch" in sys.argv
    for a in sys.argv:
        if a.startswith("wpre="): cfg.wpre = tuple(int(x) for x in a[5:].split(","))
    cfg.w45late = "w45early" not in sys.argv
    for a in sys.argv:
        if a.startswith("or="): cfg.orstep = int(a[3:])
    cfg.early_s1 = "es1" in sys.argv
    if not cfg.map81: cfg.local = False
    out = [a for a in sys.argv[1:] if a.endswith(".s")]
    open(out[0] if out else "x9.s", "w").write(build(cfg))
```
